```python
import torch

def _softmax(x, axis=-1):
    return torch.softmax(x, dim=axis)
def _gelu(x):
    return torch.nn.functional.gelu(x, approximate="tanh")
def _silu(x):
    return torch.nn.functional.silu(x)
def _sigmoid(x):
    return torch.sigmoid(x)
def _layernorm(x, axis=-1, eps=1e-5):
    m = x.mean(dim=axis, keepdim=True)
    v = x.var(dim=axis, keepdim=True, unbiased=False)
    return (x - m) / torch.sqrt(v + eps)
def _scatter_add(tgt, idx, src, axis=0):
    return tgt.clone().index_add_(axis, idx, src)
def _segment_sum(src, seg, n):
    out = torch.zeros((n,) + src.shape[1:], dtype=src.dtype)
    return out.index_add_(0, seg, src)
def _pad(x, pw):
    flat = tuple(v for pair in reversed(pw) for v in pair)
    return torch.nn.functional.pad(x, flat)

kernel_name = 'standalone__hybrid_graph_tf_exphormer__graph'

def setup_inputs():

    _w = (lambda a: (lambda t: t.to(torch.bfloat16) if t.is_floating_point() else t)(torch.as_tensor(a)))
    N, deg, D = 10000, 16, 256
    E = N * deg
    exp_deg = 4
    Ee = N * exp_deg
    src = (lambda lo, hi, *s: torch.randint(lo, hi, s))(0, N, E).to(torch.int64)
    dst = (lambda lo, hi, *s: torch.randint(lo, hi, s))(0, N, E).to(torch.int64)
    esrc = (lambda lo, hi, *s: torch.randint(lo, hi, s))(0, N, Ee).to(torch.int64)
    edst = torch.repeat_interleave(torch.arange(N), exp_deg).to(torch.int64)
    deg_cnt = torch.bincount(dst, minlength=N).to(float) + 1.0
    return {
        "x": _w((lambda *s: torch.randn(*s, dtype=torch.bfloat16) * 0.05)(N, D)),
        "src": _w(src),
        "dst": _w(dst),
        "esrc": _w(esrc),
        "edst": _w(edst),
        "deg_inv_sqrt": _w(1.0 / (lambda _x: torch.sqrt(torch.as_tensor(_x)))(deg_cnt)),
        "w_l": _w((lambda *s: torch.randn(*s, dtype=torch.bfloat16) * 0.05)(D, D)),
        "wq": _w((lambda *s: torch.randn(*s, dtype=torch.bfloat16) * 0.05)(D, D)),
        "wk": _w((lambda *s: torch.randn(*s, dtype=torch.bfloat16) * 0.05)(D, D)),
        "wv": _w((lambda *s: torch.randn(*s, dtype=torch.bfloat16) * 0.05)(D, D)),
    }

def reference(x, src, dst, esrc, edst, deg_inv_sqrt, w_l, wq, wk, wv):
    N, D = x.shape
    h = x @ w_l
    msg = h[src] * deg_inv_sqrt[src, None] * deg_inv_sqrt[dst, None]
    h_local = _segment_sum(msg, dst, N)
    q = x @ wq
    k = x @ wk
    v = x @ wv
    e = (q[edst] * k[esrc]).sum(-1) * (D ** -0.5)
    exp_e = torch.exp(e)
    denom = _segment_sum(exp_e[:, None], edst, N)[:, 0] + 1e-9
    alpha = exp_e / denom[edst]
    h_attn = _segment_sum(alpha[:, None] * v[esrc], edst, N)
    return h_local + h_attn
```

```python
NAME = "standalone__hybrid_graph_tf_exphormer__graph"

HEADER_COMMENT = """; Kernarg layout for this problem (104 bytes, ptrs only, base s[0:1]):
"""

class Asm:
    def __init__(self):
        self.lines = []
    def __call__(self, s=""):
        for l in s.split("\n"):
            l = l.strip()
            if not l:
                continue
            self.lines.append(l if l.endswith(":") else "    " + l)
    def text(self):
        return "\n".join(self.lines) + "\n"

def kernel_begin(label):
    return f""".globl {label}
.p2align 8
.type {label},@function
{label}:
"""

def descriptor(label, vgpr, sgpr=102, accum=None):
    if accum is None:
        accum = min(256, (vgpr + 3) // 4 * 4)
    return f""".p2align 6
.amdhsa_kernel {label}
  .amdhsa_next_free_vgpr {vgpr}
  .amdhsa_next_free_sgpr {sgpr}
  .amdhsa_accum_offset {accum}
  .amdhsa_group_segment_fixed_size 0
  .amdhsa_kernarg_size 104
  .amdhsa_user_sgpr_count 2
  .amdhsa_user_sgpr_kernarg_segment_ptr 1
  .amdhsa_system_sgpr_workgroup_id_x 1
  .amdhsa_float_denorm_mode_32 3
.end_amdhsa_kernel
"""

def wrap(kernels, about=""):
    out = HEADER_COMMENT
    if len(kernels) == 1 and kernels[0]["label"] == NAME + "_kernel":
        k = kernels[0]
        out += f"; @launch grid=({k['grid']},1,1) block=({k['block']},1,1) lds={k['lds']}\n"
    else:
        for k in kernels:
            out += f"; @launch kernel={k['label']} grid=({k['grid']},1,1) block=({k['block']},1,1) lds={k['lds']}\n"
    out += about
    out += '.amdgcn_target "amdgcn-amd-amdhsa--gfx950"\n.text\n'
    seen = []
    for k in kernels:
        if k["label"] in seen:
            continue
        seen.append(k["label"])
        out += kernel_begin(k["label"]) + k["body"]
    out += '.section .rodata,"a"\n'
    done = []
    for k in kernels:
        if k["label"] in done:
            continue
        done.append(k["label"])
        out += descriptor(k["label"], k["vgpr"], k.get("sgpr", 102), k.get("accum"))
    return out
```

```python
import sys
from asmlib import *

NMAIN, NWG = 250, 253
WS_FLAG, WS_M, WS_INBOX, WS_STAMP = 0x1000, 0x10000, 0x100000, 0x8000000
NREP = 16
XT, TT, AG, DIS = 0, 20480, 40960, 61440
LIST, LSTRIDE = 81920, 516
CNT = 92416
C_BIN, C_XT, C_LIST, C_OVF, C_AG = CNT, CNT + 4, CNT + 8, CNT + 12, CNT + 16
WST = 92672
LDS_BYTES = WST + 65536
BST, BCNT = AG, AG + 16384
EMPTY, OVF = 126 << 14, 127 << 14
OOB = 0x80000000


class Gen:
    def __init__(self, prof=False, npre=8, spin=1 << 26):
        self.a = Asm()
        self.prof, self.npre, self.spin = prof, npre, spin
        self.uid = 0

    def lab(self, p):
        self.uid += 1
        return f"L_{p}_{self.uid}"

    def stamp(self, i):
        if self.prof:
            self.a(f"s_memrealtime s[{80+2*i}:{81+2*i}]")

    def srd(self, r, p, size, add=0):
        a = self.a
        if add:
            a(f"s_add_u32 s{r}, s{p}, {add}\ns_addc_u32 s{r+1}, s{p+1}, 0\ns_and_b32 s{r+1}, s{r+1}, 0xffff")
        else:
            a(f"s_mov_b32 s{r}, s{p}\ns_and_b32 s{r+1}, s{p+1}, 0xffff")
        a(f"s_mov_b32 s{r+2}, {size}\ns_mov_b32 s{r+3}, 0x20000")

    def signal(self, off, vz, vone):
        self.a(f"""
        s_waitcnt lgkmcnt(0)
        s_mov_b64 exec, 1
        ds_add_u32 v{vz}, v{vone} offset:{off - CNT}
        s_mov_b64 exec, -1
        """)

    def wait_cnt(self, off, target, vz, vt):
        l, d = self.lab("spin"), self.lab("go")
        self.a(f"""
        {l}:
        ds_read_b32 v{vt}, v{vz} offset:{off - CNT}
        s_waitcnt lgkmcnt(0)
        v_readfirstlane_b32 s64, v{vt}
        s_cmp_ge_u32 s64, {target}
        s_cbranch_scc1 {d}
        s_sub_u32 s79, s79, 1
        s_cbranch_scc1 L_end
        s_sleep 1
        s_branch {l}
        {d}:
        """)

    def hash_tag(self):
        self.a("s_mul_i32 s30, s30, 0x9E3779B1\ns_add_u32 s30, s30, 0x7F4A7C15")

    def dump(self, vlane):
        if not self.prof:
            return
        a = self.a
        a("s_memtime s[98:99]\ns_waitcnt lgkmcnt(0)\nv_mov_b32 v10, 0")
        for i in range(20):
            a(f"v_writelane_b32 v10, s{80+i}, {i}")
        a(f"""
        s_getreg_b32 s64, hwreg(HW_REG_XCC_ID)
        v_writelane_b32 v10, s64, 20
        s_lshl_b32 s64, s2, 3
        s_add_u32 s64, s64, s3
        s_lshl_b32 s64, s64, 7
        s_add_u32 s64, s64, {WS_STAMP}
        v_mbcnt_lo_u32_b32 v11, -1, 0
        v_mbcnt_hi_u32_b32 v11, -1, v11
        v_cmp_gt_u32 vcc, 32, v11
        v_lshl_add_u32 v11, v11, 2, s64
        s_and_saveexec_b64 s[66:67], vcc
        global_store_dword v11, v10, s[28:29]
        """)

    def entry(self):
        a = self.a
        if self.prof:
            a("s_memrealtime s[80:81]\ns_memtime s[96:97]")
        a(f"""
        s_cmp_ge_u32 s2, {NWG}
        s_cbranch_scc1 L_end
        s_load_dwordx16 s[4:19], s[0:1], 0
        s_load_dwordx8 s[20:27], s[0:1], 64
        s_load_dwordx2 s[28:29], s[0:1], 96
        v_lshrrev_b32 v1, 6, v0
        v_and_b32 v2, 63, v0
        s_mov_b32 s79, {self.spin}
        v_readfirstlane_b32 s3, v1
        v_and_b32 v3, 15, v2
        v_lshrrev_b32 v4, 4, v2
        """)
        if self.prof:
            for i in range(1, 8):
                a(f"s_mov_b64 s[{80+2*i}:{81+2*i}], 0")
        a("""
        s_and_b32 s31, s3, 3
        s_cmp_ge_u32 s3, 4
        s_cbranch_scc1 L_sparse
        """)

    def gemm_waves(self):
        a = self.a
        W = lambda jb, ks: 128 + (ks * 4 + jb) * 4
        ACC = lambda b, jb: 80 + (b * 4 + jb) * 4
        MR = lambda n: 40 + (n % 10) * 4
        BF = lambda s, b: 16 + (s * 3 + b) * 4
        r4 = lambda r: f"v[{r}:{r+3}]"
        vN, vG = 3, 4
        vB = [5, 6, 7, 8]
        vTR = [9, 10]
        vD, vM, vZ, vOne, vT = 11, 12, 13, 14, 15
        X, WV, WL, WS, OUT = 32, 36, 40, 44, 48

        a(f"s_cmp_ge_u32 s2, {NMAIN}\ns_cbranch_scc1 L_end")
        a(f"""
        v_lshrrev_b32 v0, 5, v2
        s_lshl_b32 s64, s31, 1
        v_add_u32 v0, s64, v0
        v_and_b32 v1, 31, v2
        v_xor_b32 v1, v1, v0
        v_lshlrev_b32 v1, 4, v1
        v_lshl_add_u32 v0, v0, 9, v1
        v_xor_b32 v1, 0x80, v0
        """)
        a(f"""
        v_lshrrev_b32 v{vD}, 3, v2
        v_lshrrev_b32 v{vT}, 2, v2
        v_and_b32 v{vT}, 4, v{vT}
        v_and_b32 v{vM}, 7, v2
        v_xor_b32 v{vT}, v{vT}, v{vM}
        v_lshlrev_b32 v{vT}, 4, v{vT}
        v_lshl_add_u32 v{vD}, v{vD}, 9, v{vT}
        s_lshl_b32 s64, s31, 7
        v_add_u32 v{vD}, s64, v{vD}
        s_mul_i32 s65, s2, 20480
        s_lshl_b32 s66, s31, 10
        s_lshl_b32 s70, s31, 14
        s_add_u32 s70, s70, {WST}
        s_mov_b32 s71, 3072
        s_mov_b32 s72, 6144
        s_mov_b32 s73, 9216
        s_waitcnt lgkmcnt(0)
        s_load_dword s30, s[28:29], 0
        """)
        self.srd(X, 4, 5120000)
        self.srd(WV, 22, 131072)
        for i in range(5):
            a(f"s_add_u32 m0, s66, {XT + i*4096}")
            if i:
                a("s_add_u32 s65, s65, 4096")
            else:
                a("s_nop 0")
            a(f"buffer_load_dwordx4 v{i & 1}, s[{X}:{X+3}], s65 offen lds")

        def dma_list(srd, slot):
            so = ["0", "s71", "s72", "s73"]
            ops = []
            for i in range(4):
                pre = f"s_add_u32 m0, s70, {slot*4096}\ns_nop 0\n" if i == 0 else ""
                post = f"\nv_add_u32 v{vD}, 0x4000, v{vD}" if i == 3 else ""
                ops.append(pre + f"buffer_load_dwordx4 v{vD}, s[{srd}:{srd+3}], {so[i]} offen offset:{i*1024} lds" + post)
            return ops

        def dma(srd, slot):
            for o in dma_list(srd, slot):
                a(o)

        def tr(ks, slot):
            for jb in range(4):
                for hh in range(2):
                    r = W(jb, ks) + 2 * hh
                    a(f"ds_read_b64_tr_b16 v[{r}:{r+1}], v{vTR[jb >> 1]} offset:{slot*4096 + hh*512 + (jb & 1)*8}")

        dma(WV, 0)
        self.srd(WL, 16, 131072)
        self.srd(WS, 28, 0x100000)
        self.srd(OUT, 24, 5120000)
        a(f"""
        v_xor_b32 v{vT}, v{vG}, v{vN}
        v_lshlrev_b32 v{vT}, 4, v{vT}
        v_lshl_add_u32 v{vB[0]}, v{vN}, 9, v{vT}
        v_xor_b32 v{vB[1]}, 64, v{vB[0]}
        v_xor_b32 v{vB[2]}, 0x80, v{vB[0]}
        v_xor_b32 v{vB[3]}, 0xc0, v{vB[0]}
        v_lshrrev_b32 v{vT}, 2, v{vN}
        v_lshl_add_u32 v{vT}, v{vG}, 3, v{vT}
        v_lshlrev_b32 v{vT}, 7, v{vT}
        v_lshrrev_b32 v{vM}, 1, v{vN}
        v_and_b32 v{vM}, 4, v{vM}
        v_and_b32 v{vZ}, 3, v{vN}
        v_xor_b32 v{vM}, v{vM}, v{vZ}
        v_lshl_add_u32 v{vT}, v{vM}, 4, v{vT}
        v_add_u32 v{vTR[0]}, s70, v{vT}
        v_xor_b32 v{vTR[1]}, 64, v{vTR[0]}
        v_mov_b32 v{vZ}, {CNT}
        v_mov_b32 v{vOne}, 1
        s_waitcnt lgkmcnt(0)
        s_barrier
        """)
        self.hash_tag()
        self.stamp(1)
        for s in range(1, 4):
            dma(WV, s)
        for ks in range(8):
            a(f"s_waitcnt vmcnt({12 if ks < 4 else 4*(7-ks)})")
            if ks == 0:
                self.signal(C_XT, vZ, vOne)
            tr(ks, ks & 3)
            if ks < 4:
                a("s_waitcnt lgkmcnt(0)")
                dma(WV, ks)
        self.stamp(2)
        l, d = self.lab("mpoll"), self.lab("mgo")
        a(f"""
        v_and_b32 v0, 31, v2
        v_lshlrev_b32 v0, 2, v0
        s_and_b32 s64, s2, {NREP-1}
        s_lshl_b32 s64, s64, 9
        s_lshl_b32 s65, s31, 7
        s_add_u32 s64, s64, s65
        s_add_u32 s74, s64, {WS_FLAG}
        v_subrev_u32 v{vD}, 0x20000, v{vD}
        v_lshlrev_b32 v{vM}, 4, v2
        s_lshl_b32 s75, s31, 15
        s_add_u32 s75, s75, {WS_M}
        {l}:
        buffer_load_dword v1, v0, s[{WS}:{WS+3}], s74 offen sc1
        s_waitcnt vmcnt(0)
        v_cmp_ne_u32 vcc, s30, v1
        s_cbranch_vccz {d}
        s_sub_u32 s79, s79, 1
        s_cbranch_scc1 L_end
        s_sleep 2
        s_branch {l}
        {d}:
        """)
        self.stamp(3)

        def mload(n):
            s = f"buffer_load_dwordx4 {r4(MR(n))}, v{vM}, s[{WS}:{WS+3}], s75 offen offset:{(n & 3)*1024} sc1"
            if n & 3 == 3:
                s += "\ns_add_u32 s75, s75, 4096"
            return s

        def bread(tile, ks, b, r):
            a(f"ds_read_b128 {r4(r)}, v{vB[ks & 3]} offset:{tile + b*8192 + (ks >> 2)*256}")

        for n in range(10):
            a(mload(n))
        self.wait_cnt(C_XT, 4, vZ, vT)
        follow = [mload(n) for n in range(10, 32)] + sum((dma_list(WL, s) for s in range(4)), [])
        for b in range(3):
            bread(XT, 0, b, BF(0, b))
        for ks in range(8):
            if ks < 7:
                for b in range(3):
                    bread(XT, ks + 1, b, BF((ks + 1) & 1, b))
            a(f"s_waitcnt lgkmcnt({3 if ks < 7 else 0})")
            for jb in range(4):
                n = 4 * ks + jb
                a("s_waitcnt vmcnt(9)")
                for b in range(3):
                    c = r4(ACC(b, jb)) if ks else "0"
                    a(f"v_mfma_f32_16x16x32_bf16 {r4(ACC(b, jb))}, {r4(MR(n))}, {r4(BF(ks & 1, b))}, {c}")
                a(follow.pop(0))
        a(f"""
        s_lshl_b32 s64, s31, 3
        v_add_u32 v0, s64, v{vG}
        v_xor_b32 v0, v0, v{vN}
        v_lshlrev_b32 v0, 4, v0
        v_lshl_add_u32 v0, v{vN}, 9, v0
        v_xor_b32 v1, 64, v0
        s_mov_b32 s76, 0x00ff00ff
        s_mov_b32 s77, 0x00ff00ff
        """)

        def pack(b, h, r):
            for k in range(2):
                s = ACC(b, 2 * h + k)
                a(f"v_cvt_pk_bf16_f32 v{r+2*k}, v{s}, v{s+1}\nv_cvt_pk_bf16_f32 v{r+2*k+1}, v{s+2}, v{s+3}")

        for b in range(3):
            if b == 2:
                a("s_mov_b64 exec, s[76:77]")
            for h in range(2):
                r = 16 + (b * 2 + h) * 4
                pack(b, h, r)
                a(f"ds_write_b128 v{h}, {r4(r)} offset:{TT + b*8192}")
        a("s_mov_b64 exec, -1\ns_waitcnt lgkmcnt(0)\ns_barrier")
        self.stamp(4)
        for o in follow:
            a(o)
        a(f"""
        v_lshlrev_b32 v0, 4, v{vG}
        v_lshl_add_u32 v0, v{vN}, 9, v0
        s_mul_i32 s74, s2, 20480
        s_lshl_b32 s64, s31, 7
        s_add_u32 s74, s74, s64
        s_waitcnt vmcnt(0)
        s_barrier
        """)
        self.stamp(5)
        for b in range(3):
            bread(XT, 0, b, BF(0, b))
        for ks in range(8):
            if ks < 7:
                for b in range(3):
                    bread(XT, ks + 1, b, BF((ks + 1) & 1, b))
            young = (3 if ks < 7 else 0) + (8 if 1 <= ks <= 4 else 0)
            a(f"s_waitcnt lgkmcnt({young})")
            for jb in range(4):
                for b in range(3):
                    c = r4(ACC(b, jb)) if ks else "0"
                    a(f"v_mfma_f32_16x16x32_bf16 {r4(ACC(b, jb))}, {r4(W(jb, ks))}, {r4(BF(ks & 1, b))}, {c}")
            if 1 <= ks <= 4:
                a("s_waitcnt lgkmcnt(3)")
                dma(WL, ks - 1)
            if ks < 4:
                tr(ks, ks)
        for ks in range(4, 8):
            a(f"s_waitcnt vmcnt({4*(7-ks)})")
            tr(ks, ks & 3)
        self.stamp(6)
        FB = lambda ks: 16 + ks * 4
        for b in range(3):
            self.wait_cnt(C_AG + 4 * b, 8 if b < 2 else 4, vZ, vT)
            for ks in range(8):
                bread(AG, ks, b, FB(ks))
            for ks in range(8):
                a(f"s_waitcnt lgkmcnt({7-ks})")
                for jb in range(4):
                    a(f"v_mfma_f32_16x16x32_bf16 {r4(ACC(b, jb))}, {r4(W(jb, ks))}, {r4(FB(ks))}, {r4(ACC(b, jb))}")
            a("s_nop 5")
            if b == 2:
                a("s_mov_b64 exec, s[76:77]")
            for h in range(2):
                r = 48 + (b * 2 + h) * 4
                pack(b, h, r)
                a(f"buffer_store_dwordx4 {r4(r)}, v0, s[{OUT}:{OUT+3}], s74 offen offset:{h*64}")
            if b < 2:
                a("s_add_u32 s74, s74, 8192")
        l = self.lab("noepoch")
        a(f"""
        s_mov_b64 exec, -1
        s_or_b32 s64, s2, s3
        s_cbranch_scc1 {l}
        v_mov_b32 v0, 0
        v_mov_b32 v1, s30
        s_mov_b64 exec, 1
        buffer_store_dword v1, v0, s[{WS}:{WS+3}], 0 offen
        s_mov_b64 exec, -1
        {l}:
        """)
        if self.prof:
            a("s_waitcnt vmcnt(0)")
        self.stamp(7)
        self.dump(2)
        a("s_endpgm")

    def sparse_waves(self):
        a = self.a
        r4 = lambda r: f"v[{r}:{r+3}]"
        AT = lambda t, h: 176 + t * 8 + 4 * h
        RG = lambda t, h: 48 + t * 8 + 4 * h
        vN, vG = 3, 4
        vZ, vOne, vLo, vEs, vSc, vFa = 5, 6, 7, 0, 1, 2
        SEL, A, ACC = 8, 12, 16
        EA = [24, 26, 28, 30]
        EW = [25, 27, 29, 31]
        TMP = 32
        X, DS, IB, DST, SRC, WQ, WK = 32, 36, 40, 44, 48, 52, 56
        sRem, sNb, sJ, sRet, sSlow = 68, 69, 70, 72, 71
        sB = [74, 75, 76, 77, 78]
        sQ = [4, 5, 6, 7, 8]
        sC = [10, 11, 12, 13, 14]

        a("L_sparse:\ns_setprio 3")
        a(f"""
        v_and_b32 v32, 0xff, v0
        v_mov_b32 v{vZ}, {CNT}
        v_mov_b32 v{vOne}, 1
        v_mov_b32 v36, 0
        v_lshlrev_b32 v33, 2, v32
        ds_write_b32 v33, v36 offset:{BCNT}
        v_mul_u32_u24 v34, {LSTRIDE}, v32
        v_add_u32 v34, {LIST}, v34
        v_add_u32 v35, {CNT}, v33
        v_mov_b32 v37, 4
        v_cmp_gt_u32 vcc, 20, v32
        s_and_saveexec_b64 s[64:65], vcc
        ds_write_b32 v34, v37
        ds_write_b32 v35, v36
        s_mov_b64 exec, -1
        v_lshlrev_b32 v34, 4, v32
        v_mov_b32 v36, {EMPTY}
        v_mov_b32 v37, {EMPTY}
        v_mov_b32 v38, {EMPTY}
        v_mov_b32 v39, {EMPTY}
        """)
        for i in range(4):
            a(f"ds_write_b128 v34, v[36:39] offset:{BST + i*4096}")
        a(f"""
        v_lshrrev_b32 v40, 2, v{vN}
        v_lshlrev_b32 v40, 4, v40
        v_and_b32 v41, 3, v{vN}
        v_add_u32 v40, v40, v41
        s_lshl_b32 s64, s31, 1
        v_mov_b32 v41, s64
        v_lshlrev_b32 v42, 1, v41
        v_cmp_gt_u32 vcc, 8, v{vN}
        s_mul_i32 s65, s2, 640
        s_lshr_b32 s66, s2, 4
        v_cndmask_b32 v41, v41, v42, vcc
        v_add_u32 v40, v40, v41
        v_min_u32 v40, 39, v40
        v_lshlrev_b32 v40, 4, v40
        v_lshl_add_u32 v40, v{vG}, 2, v40
        v_add_u32 v40, s65, v40
        s_lshl_b32 s66, s66, 3
        s_and_b32 s67, s2, 7
        s_or_b32 s73, s66, s67
        v_lshlrev_b32 v{vLo}, 4, v{vN}
        s_waitcnt lgkmcnt(0)
        s_load_dword s30, s[28:29], 0
        """)
        self.srd(DST, 8, 640000)
        self.srd(SRC, 6, 640000)
        self.srd(WQ, 18, 131072)
        self.srd(WK, 20, 131072)
        lm, lj = self.lab("mrole"), self.lab("roled")
        a(f"""
        s_bitcmp1_b32 s2, 3
        s_cbranch_scc0 {lm}
        s_mul_i32 s64, s73, 5120
        s_add_u32 s65, s64, 4096
        buffer_load_dwordx4 v[48:51], v34, s[{DST}:{DST+3}], s64 offen
        buffer_load_dword v52, v33, s[{DST}:{DST+3}], s65 offen
        buffer_load_dwordx4 v[56:59], v34, s[{SRC}:{SRC+3}], s64 offen
        buffer_load_dword v60, v33, s[{SRC}:{SRC+3}], s65 offen
        s_branch {lj}
        {lm}:
        s_cmp_lg_u32 s31, 0
        s_cbranch_scc1 {lj}
        v_lshrrev_b32 v41, 2, v{vN}
        v_and_b32 v42, 3, v{vN}
        v_lshl_add_u32 v41, v41, 3, v42
        v_lshlrev_b32 v42, 4, v{vG}
        v_lshl_add_u32 v41, v41, 9, v42
        s_bfe_u32 s64, s73, 0x30002
        s_lshl_b32 s64, s64, 14
        s_lshr_b32 s65, s73, 5
        s_lshl_b32 s65, s65, 15
        s_bfe_u32 s66, s73, 0x10001
        s_lshl_b32 s66, s66, 14
        s_add_u32 s65, s65, s66
        s_and_b32 s66, s73, 1
        s_lshl_b32 s66, s66, 11
        s_add_u32 s65, s65, s66
        """)
        for k in range(8):
            a(f"buffer_load_dwordx4 {r4(48 + 12*k)}, v41, s[{WK}:{WK+3}], s65 offen offset:{64*k}")
            a(f"buffer_load_dwordx4 {r4(52 + 12*k)}, v41, s[{WQ}:{WQ+3}], s64 offen offset:{64*k}")
            a(f"buffer_load_dwordx4 {r4(56 + 12*k)}, v41, s[{WQ}:{WQ+3}], s64 offen offset:{2048 + 64*k}")
        a(f"{lj}:")
        self.srd(X, 10, 160000)
        a(f"s_nop 0\nbuffer_load_dword v{vEs}, v40, s[{X}:{X+3}], 0 offen")
        self.srd(DS, 14, 20000)
        self.srd(IB, 28, 125 * 16384, add=WS_INBOX)
        a(f"""
        v_lshrrev_b32 v40, 3, v{vN}
        v_mul_u32_u24 v40, 0x0202, v40
        v_add_u32 v40, 0x0100, v40
        v_xor_b32 v40, 0x0c0c, v40
        v_and_b32 v41, 1, v{vN}
        v_lshlrev_b32 v41, 4, v41
        v_lshlrev_b32 v40, v41, v40
        v_xor_b32 v40, 0x0c0c0c0c, v40
        v_mov_b32 v41, 0x0c0c0c0c
        v_bfe_u32 v42, v{vN}, 1, 2
        """)
        for r in range(4):
            a(f"v_cmp_eq_u32 vcc, {r}, v42\ns_nop 1\nv_cndmask_b32 v{SEL+r}, v41, v40, vcc")
        a("s_waitcnt lgkmcnt(0)\ns_barrier")
        self.hash_tag()
        a("""
        s_and_b32 s60, s30, 0xffe00000
        s_lshl_b32 s61, s30, 11
        s_and_b32 s61, s61, 0xffe00000
        s_lshl_b32 s62, s30, 21
        s_lshl_b32 s63, s30, 16
        s_and_b32 s63, s63, 0xffe00000
        """)
        self.stamp(1)
        lm, lj = self.lab("mwork"), self.lab("worked")
        a(f"s_bitcmp1_b32 s2, 3\ns_cbranch_scc0 {lm}")
        a("s_waitcnt vmcnt(3)")
        for k in range(5):
            a(f"""
            v_mul_u32_u24 v{64+k}, 52429, v{48+k}
            v_lshrrev_b32 v{64+k}, 22, v{64+k}
            v_lshlrev_b32 v{72+k}, 2, v{64+k}
            ds_add_rtn_u32 v{80+k}, v{72+k}, v{vOne} offset:{BCNT}
            """)
        for k in range(5):
            a(f"v_mul_u32_u24 v{88+k}, 80, v{64+k}\nv_sub_u32 v{88+k}, v{48+k}, v{88+k}")
        a(f"s_waitcnt vmcnt(1)\nv_mov_b32 v40, {OVF}")
        for k in range(5):
            a(f"v_lshl_or_b32 v{88+k}, v{88+k}, 14, v{56+k}")
        a("s_waitcnt lgkmcnt(0)")
        for k in range(5):
            a(f"""
            v_cmp_gt_u32 vcc, 31, v{80+k}
            v_min_u32 v{80+k}, 31, v{80+k}
            v_add_u32 v{80+k}, v{80+k}, v{64+k}
            v_cndmask_b32 v{88+k}, v40, v{88+k}, vcc
            v_and_b32 v{80+k}, 31, v{80+k}
            v_lshl_add_u32 v{80+k}, v{64+k}, 5, v{80+k}
            v_lshlrev_b32 v{80+k}, 2, v{80+k}
            ds_write_b32 v{80+k}, v{88+k} offset:{BST}
            """)
        self.signal(C_BIN, vZ, vOne)
        a("""
        v_lshrrev_b32 v40, 3, v32
        v_and_b32 v41, 7, v32
        v_lshlrev_b32 v41, 4, v41
        v_lshl_add_u32 v40, v40, 14, v41
        s_lshl_b32 s65, s73, 7
        """)
        self.wait_cnt(C_BIN, 4, vZ, 41)
        for i in range(4):
            a(f"ds_read_b128 {r4(48 + 4*i)}, v34 offset:{BST + i*4096}")
        for i in range(4):
            a(f"s_waitcnt lgkmcnt({3-i})")
            for k in range(4):
                a(f"v_or_b32 v{48+4*i+k}, s{60+k}, v{48+4*i+k}")
            a(f"buffer_store_dwordx4 {r4(48 + 4*i)}, v40, s[{IB}:{IB+3}], s65 offen sc1")
            if i < 3:
                a("s_add_u32 s65, s65, 0x80000")
        a(f"""
        s_cmp_ge_u32 s2, {NMAIN}
        s_cbranch_scc1 L_end
        s_waitcnt vmcnt(4)
        s_branch {lj}
        {lm}:
        s_cmp_lg_u32 s31, 0
        s_cbranch_scc1 {lj}_w
        """)
        for k in range(8):
            a(f"s_waitcnt vmcnt({22 - 3*k})")
            for jj in range(2):
                c = r4(ACC + 4 * jj) if k else "0"
                a(f"v_mfma_f32_16x16x32_bf16 {r4(ACC + 4*jj)}, {r4(52 + 12*k + 4*jj)}, {r4(48 + 12*k)}, {c}")
        a(f"""
        s_lshl_b32 s64, s73, 10
        s_add_u32 s64, s64, {WS_M}
        v_lshl_add_u32 v40, v2, 4, s64
        s_lshl_b32 s64, s73, 2
        s_add_u32 s64, s64, {WS_FLAG}
        v_lshl_add_u32 v41, v2, 9, s64
        v_mov_b32 v42, s30
        s_nop 1
        """)
        for k in range(4):
            a(f"v_cvt_pk_bf16_f32 v{44+k}, v{ACC+2*k}, v{ACC+2*k+1}")
        a(f"""
        global_store_dwordx4 v40, v[44:47], s[28:29] sc1
        s_waitcnt vmcnt(0)
        s_mov_b64 exec, {(1 << NREP) - 1}
        global_store_dword v41, v42, s[28:29] sc1
        s_mov_b64 exec, -1
        s_branch {lj}
        {lj}_w:
        s_waitcnt vmcnt(0)
        {lj}:
        """)
        self.stamp(2)
        self.srd(X, 4, 5120000)
        a(f"v_lshlrev_b32 v{vEs}, 9, v{vEs}\ns_setprio 0\ns_nop 0")
        for t in range(10):
            a(f"v_add_u32_dpp v40, v{vEs}, v{vLo} row_newbcast:{t} row_mask:0xf bank_mask:0xf")
            for h in range(2):
                a(f"buffer_load_dwordx4 {r4(AT(t, h))}, v40, s[{X}:{X+3}], 0 offen offset:{256*h}")
            if t % 2 == 1:
                i = t // 2
                a(f"s_lshl_b32 s64, s31, 10\ns_add_u32 m0, s64, {DIS + i*4096}\ns_mov_b32 s65, {i*4096}")
                a(f"buffer_load_dwordx4 v34, s[{DS}:{DS+3}], s65 offen lds")
        l, d = self.lab("ipoll"), self.lab("igo")
        a(f"""
        s_lshr_b32 s64, s2, 1
        s_lshl_b32 s64, s64, 14
        s_add_u32 s65, s64, 4096
        s_add_u32 s66, s64, 8192
        s_add_u32 s67, s64, 12288
        v_cmp_gt_u32 vcc, 0xe8, v32
        s_mov_b64 s[74:75], vcc
        """)
        a(f"{l}:")
        for i in range(4):
            if i == 3:
                a("s_mov_b64 exec, s[74:75]")
            a(f"buffer_load_dwordx4 {r4(48 + 4*i)}, v34, s[{IB}:{IB+3}], s{64+i} offen sc1")
        a("s_mov_b64 exec, -1")
        for k in range(4):
            a(f"v_mov_b32 v{76+k}, {EMPTY}")
        for i in range(4):
            a(f"s_waitcnt vmcnt({3-i})")
            if i == 3:
                a("s_mov_b64 exec, s[74:75]")
            for k in range(4):
                a(f"v_subrev_u32 v{64+4*i+k}, s{60+k}, v{48+4*i+k}")
        a("s_mov_b64 exec, -1\nv_max_u32 v40, v64, v65")
        for k in range(2, 16, 2):
            a(f"v_max3_u32 v40, v40, v{64+k}, v{65+k}")
        a(f"""
        v_cmp_le_u32 vcc, 0x200000, v40
        s_cbranch_vccz {d}
        s_sub_u32 s79, s79, 1
        s_cbranch_scc1 L_end
        s_sleep 2
        s_branch {l}
        {d}:
        """)
        self.stamp(3)
        a(f"""
        v_cmpx_le_u32 vcc, {OVF}, v40
        ds_write_b32 v{vZ}, v{vOne} offset:{C_OVF - CNT}
        s_mov_b64 exec, -1
        s_and_b32 s64, s2, 1
        s_mul_i32 s64, s64, {40 << 14}
        s_mov_b32 s65, {40 << 14}
        s_mov_b32 s66, {LSTRIDE}
        v_mov_b32 v41, {LIST}
        v_mov_b32 v42, 4
        """)
        for k in range(16):
            a(f"""
            v_subrev_u32 v{64+k}, s64, v{64+k}
            v_lshrrev_b32 v{80+k}, 15, v{64+k}
            v_mad_u32_u24 v{80+k}, v{80+k}, s66, v41
            v_cmpx_gt_u32 vcc, s65, v{64+k}
            ds_add_rtn_u32 v{96+k}, v{80+k}, v42
            s_mov_b64 exec, -1
            """)
            if k == 11:
                a("s_waitcnt lgkmcnt(4)")
        a("s_waitcnt lgkmcnt(0)")
        for k in range(16):
            a(f"""
            v_min_u32 v{96+k}, 0x200, v{96+k}
            v_add_u32 v{96+k}, v{96+k}, v{80+k}
            v_cmpx_gt_u32 vcc, s65, v{64+k}
            ds_write_b32 v{96+k}, v{64+k}
            s_mov_b64 exec, -1
            """)
            if k == 11:
                a("s_waitcnt lgkmcnt(4)")
        self.signal(C_LIST, vZ, vOne)
        a(f"""
        s_lshl_b32 s{sQ[0]}, s31, 1
        s_add_u32 s{sQ[1]}, s{sQ[0]}, 1
        s_add_u32 s{sQ[2]}, s{sQ[0]}, 8
        s_add_u32 s{sQ[3]}, s{sQ[0]}, 9
        s_add_u32 s{sQ[4]}, s31, 16
        v_min_u32 v40, 19, v2
        v_mad_u32_u24 v40, v40, s66, v41
        """)
        self.wait_cnt(C_LIST, 4, vZ, 42)
        a(f"""
        ds_read_b32 v42, v40
        ds_read_b32 v43, v{vZ} offset:{C_OVF - CNT}
        s_waitcnt lgkmcnt(0)
        v_readfirstlane_b32 s{sSlow}, v43
        """)
        for j in range(5):
            a(f"v_readlane_b32 s{sC[j]}, v42, s{sQ[j]}")
        a("s_mov_b32 s15, 0")
        for j in range(5):
            a(f"""
            s_cmp_gt_u32 s{sC[j]}, {LSTRIDE}
            s_cselect_b32 s{sSlow}, 1, s{sSlow}
            s_add_u32 s64, s{sC[j]}, 8
            s_lshr_b32 s64, s64, 4
            s_add_u32 s{16+j}, s{15+j}, s64
            s_mul_i32 s{21+j}, s{sQ[j]}, {LSTRIDE}
            s_add_u32 s{21+j}, s{21+j}, {LIST}
            s_add_u32 s{sC[j]}, s{sC[j]}, s{21+j}
            s_lshl_b32 s64, s{15+j}, 4
            s_sub_u32 s{21+j}, s{21+j}, s64
            """)
        a(f"""
        s_cmp_gt_u32 s20, 64
        s_cselect_b32 s{sSlow}, 1, s{sSlow}
        s_mov_b32 s{sRem}, s20
        """)
        for j in range(5):
            a(f"s_sub_u32 s{sB[j]}, s20, s{16+j}")
        a(f"s_cmp_lg_u32 s{sSlow}, 0\ns_cselect_b32 s{sRem}, 0, s{sRem}")

        def build(chunks):
            for c in chunks:
                u, ad, lim = TMP + 3 * c, TMP + 3 * c + 1, TMP + 3 * c + 2
                a(f"v_add_u32 v{u}, {16*c}, v{vN}\nv_mov_b32 v{ad}, s21\nv_mov_b32 v{lim}, s{sC[0]}")
            for j in range(1, 5):
                a(f"v_mov_b32 v44, s{21+j}\nv_mov_b32 v45, s{sC[j]}")
                for c in chunks:
                    u, ad, lim = TMP + 3 * c, TMP + 3 * c + 1, TMP + 3 * c + 2
                    a(f"""
                    v_cmp_le_u32 vcc, s{15+j}, v{u}
                    s_nop 1
                    v_cndmask_b32 v{ad}, v{ad}, v44, vcc
                    v_cndmask_b32 v{lim}, v{lim}, v45, vcc
                    """)
            a(f"v_lshl_add_u32 v44, v{vG}, 2, 4")
            for c in chunks:
                u, ad = TMP + 3 * c, TMP + 3 * c + 1
                a(f"""
                v_lshl_add_u32 v{u}, v{u}, 4, v44
                v_add_u32 v{ad}, v{ad}, v{u}
                ds_read_b32 v{u}, v{ad}
                """)
            for n, c in enumerate(chunks):
                u = TMP + 3 * c
                a(f"""
                s_waitcnt lgkmcnt({len(chunks) - 1})
                v_and_b32 v{EA[c]}, 0x3fff, v{u}
                v_lshlrev_b32 v44, 1, v{EA[c]}
                ds_read_u16 v{EW[c]}, v44 offset:{DIS}
                """)
            a(f"v_mov_b32 v45, {OOB}")
            for n, c in enumerate(chunks):
                u, ad, lim = TMP + 3 * c, TMP + 3 * c + 1, TMP + 3 * c + 2
                a(f"""
                v_cmp_lt_u32 vcc, v{ad}, v{lim}
                v_lshlrev_b32 v{EA[c]}, 9, v{EA[c]}
                v_lshrrev_b32 v{u}, 10, v{u}
                v_and_b32 v{u}, 16, v{u}
                v_cndmask_b32 v{EA[c]}, v45, v{EA[c]}, vcc
                s_waitcnt lgkmcnt({len(chunks) - 1 - n})
                v_lshlrev_b32 v{EW[c]}, v{u}, v{EW[c]}
                v_cndmask_b32 v{EW[c]}, 0, v{EW[c]}, vcc
                """)

        def issue(t, ea, cond=None):
            l = self.lab("ni")
            if cond:
                a(cond + f"\ns_cbranch_scc0 {l}")
            a(f"v_add_u32_dpp v47, v{ea}, v{vLo} row_newbcast:{t} row_mask:0xf bank_mask:0xf")
            for h in range(2):
                a(f"buffer_load_dwordx4 {r4(RG(t, h))}, v47, s[{X}:{X+3}], 0 offen offset:{256*h}")
            if cond:
                a(f"{l}:")

        def pre(t):
            issue(t, EA[0], f"s_cmp_gt_u32 s{sRem}, {t}")

        build([0, 1, 2, 3])
        self.stamp(4)
        a("s_nop 0")
        for t in range(self.npre):
            pre(t)
        pend = list(range(self.npre, 16))
        a(f"""
        v_lshrrev_b32 v44, 1, v{vG}
        v_mul_u32_u24 v44, 528, v44
        v_xor_b32 v44, v44, v{vLo}
        v_and_b32 v45, 1, v{vG}
        v_lshl_or_b32 v{vFa}, v45, 3, v44
        """)
        for j in range(5):
            a(f"""
            s_lshl_b32 s64, s{sQ[j]}, 10
            s_and_b32 s65, s{sQ[j]}, 7
            s_lshl_b32 s65, s65, 5
            s_or_b32 s{21+j}, s64, s65
            """)
        a("s_barrier")
        self.stamp(5)
        TF = lambda s, h: 32 + s * 8 + 4 * h if s == 0 else (40 if h == 0 else ACC)
        vE, vP = 44, 45
        a(f"v_mov_b32 v{vE}, 0")

        def tread(t):
            s = t & 1
            a(f"s_xor_b32 s64, s{21 + t//2}, {528 * s}\nv_xor_b32 v46, s64, v{vLo}")
            for h in range(2):
                a(f"ds_read_b128 {r4(TF(s, h))}, v46 offset:{TT + 256*h}")

        tread(0)
        a("s_mov_b32 s66, 0x00010001\ns_mov_b32 s67, 0x00010001")
        for t in range(10):
            if t < 9:
                tread(t + 1)
            a(f"s_waitcnt lgkmcnt({2 if t < 9 else 0})")
            first = True
            for h in range(2):
                for k in range(4):
                    c = "0" if first else f"v{vP}"
                    a(f"v_dot2_f32_bf16 v{vP}, v{AT(t, h)+k}, v{TF(t & 1, h)+k}, {c}")
                    first = False
            if pend:
                pre(pend.pop(0))
            a("s_nop 2")
            for rot in (8, 4, 2, 1):
                a(f"v_add_f32_dpp v{vP}, v{vP}, v{vP} row_ror:{rot} row_mask:0xf bank_mask:0xf\ns_nop 1")
            a(f"v_cndmask_b32 v{vE}, v{vE}, v{vP}, s[66:67]\ns_lshl_b64 s[66:67], s[66:67], 1")
        a(f"""
        v_mul_f32 v{vE}, 0x3db8aa3b, v{vE}
        v_exp_f32 v{vE}, v{vE}
        s_nop 0
        v_mov_b32 v32, v{vE}
        v_mov_b32 v33, v{vE}
        s_nop 1
        v_permlane32_swap_b32 v32, v33
        v_add_f32 v32, v32, v33
        v_mov_b32 v33, v32
        s_nop 1
        v_permlane16_swap_b32 v32, v33
        v_add_f32 v32, v32, v33
        v_add_f32 v32, 0x3089705f, v32
        v_rcp_f32 v32, v32
        v_and_b32 v33, 1, v{vN}
        v_lshlrev_b32 v33, 4, v33
        v_mul_f32 v{vE}, v{vE}, v32
        v_cvt_pk_bf16_f32 v{vE}, v{vE}, 0
        v_lshlrev_b32 v{vE}, v33, v{vE}
        s_nop 1
        """)

        def weights(t, ew):
            a(f"v_mov_b32_dpp v46, v{ew} row_newbcast:{t} row_mask:0xf bank_mask:0xf")
            for r in range(4):
                a(f"v_perm_b32 v{A+r}, v46, v46, v{SEL+r}")

        AV = lambda p: ACC if p == 0 else 32
        def aflush(j):
            c = AV(j & 1)
            a(f"v_xor_b32 v45, s{21+j}, v{vFa}")
            for h in range(2):
                a(f"""
                v_cvt_pk_bf16_f32 v{40+2*h}, v{c+4*h}, v{c+4*h+1}
                v_cvt_pk_bf16_f32 v{41+2*h}, v{c+4*h+2}, v{c+4*h+3}
                ds_write_b64 v45, v[{40+2*h}:{41+2*h}] offset:{XT + 256*h}
                """)

        for t in range(10):
            weights(t, vE)
            a("s_nop 1")
            c0 = AV((t // 2) & 1)
            for h in range(2):
                c = r4(c0 + 4 * h) if t & 1 else "0"
                a(f"v_mfma_f32_16x16x32_bf16 {r4(c0 + 4*h)}, {r4(A)}, {r4(AT(t, h))}, {c}")
            if pend:
                pre(pend.pop(0))
            if t & 1 and t >= 3:
                aflush(t // 2 - 1)
        a("s_nop 7")
        aflush(4)
        while pend:
            pre(pend.pop(0))
        a(f"""
        s_mul_i32 s9, s2, 80
        s_add_u32 s9, s9, {DIS}
        v_and_b32 v45, 2, v{vG}
        v_add_u32 v{vEs}, s9, v45
        s_lshl_b32 s64, s{sQ[0]}, 2
        v_add_u32 v45, s64, v{vEs}
        v_mov_b32 v{vSc}, 0
        ds_read_u16_d16_hi v{vSc}, v45
        """)
        for k in range(8):
            a(f"v_mov_b32 v{ACC+k}, 0")
        a(f"""
        s_mov_b32 s{sJ}, 0
        s_mov_b32 s{sNb}, s{sB[0]}
        s_waitcnt lgkmcnt(0)
        s_barrier
        """)
        self.stamp(6)
        a(f"""
        s_cmp_lg_u32 s{sSlow}, 0
        s_cbranch_scc1 L_slow
        s_cmp_eq_u32 s{sRem}, s{sNb}
        s_cbranch_scc0 L_ring
        s_call_b64 s[{sRet}:{sRet+1}], L_flush
        L_ring:
        """)
        for t in range(16):
            lw, lf = self.lab("w"), self.lab("nf")
            a(f"""
            s_cmp_lt_u32 s{sRem}, 16
            s_cbranch_scc0 {lw}
            s_call_b64 s[{sRet}:{sRet+1}], L_ladder
            {lw}:
            """)
            weights(t, EW[0])
            a(f"s_sub_u32 s{sRem}, s{sRem}, 1\ns_waitcnt vmcnt(30)")
            for h in range(2):
                a(f"v_mfma_f32_16x16x32_bf16 {r4(ACC + 4*h)}, {r4(A)}, {r4(RG(t, h))}, {r4(ACC + 4*h)}")
            issue(t, EA[1], f"s_cmp_ge_u32 s{sRem}, 16")
            a(f"""
            s_cmp_eq_u32 s{sRem}, s{sNb}
            s_cbranch_scc0 {lf}
            s_call_b64 s[{sRet}:{sRet+1}], L_flush
            {lf}:
            """)
        a(f"""
        v_mov_b32 v{EW[0]}, v{EW[1]}
        v_mov_b32 v{EA[1]}, v{EA[2]}
        v_mov_b32 v{EW[1]}, v{EW[2]}
        v_mov_b32 v{EA[2]}, v{EA[3]}
        v_mov_b32 v{EW[2]}, v{EW[3]}
        s_branch L_ring
        L_ladder:
        s_waitcnt vmcnt(8)
        s_cmp_gt_u32 s{sRem}, 4
        s_cbranch_scc1 L_lad_ret
        s_waitcnt vmcnt(4)
        s_cmp_gt_u32 s{sRem}, 2
        s_cbranch_scc1 L_lad_ret
        s_waitcnt vmcnt(2)
        s_cmp_gt_u32 s{sRem}, 1
        s_cbranch_scc1 L_lad_ret
        s_waitcnt vmcnt(0)
        L_lad_ret:
        s_setpc_b64 s[{sRet}:{sRet+1}]
        L_flush:
        v_xor_b32 v45, s21, v{vFa}
        s_lshr_b32 s64, s{sJ}, 1
        s_lshl_b32 s64, s64, 2
        v_add_u32 v44, s64, v{vZ}
        s_lshl_b32 s64, s{sQ[1]}, 2
        v_add_u32 v43, s64, v{vEs}
        s_nop 2
        s_waitcnt lgkmcnt(0)
        """)
        for k in range(8):
            a(f"v_mul_f32 v{32+k}, v{vSc}, v{ACC+k}")
        a(f"ds_read_u16_d16_hi v{vSc}, v43")
        for h in range(2):
            a(f"""
            v_cvt_pk_bf16_f32 v{32+4*h}, v{32+4*h}, v{33+4*h}
            v_cvt_pk_bf16_f32 v{33+4*h}, v{34+4*h}, v{35+4*h}
            ds_write_b64 v45, v[{32+4*h}:{33+4*h}] offset:{AG + 256*h}
            """)
        for k in range(8):
            a(f"v_mov_b32 v{ACC+k}, 0")
        for j in range(4):
            a(f"s_mov_b32 s{21+j}, s{22+j}\ns_mov_b32 s{sQ[j]}, s{sQ[j+1]}\ns_mov_b32 s{sB[j]}, s{sB[j+1]}")
        a(f"""
        s_mov_b32 s{sNb}, s{sB[0]}
        s_add_u32 s{sJ}, s{sJ}, 1
        """)
        self.signal(C_AG, 44, vOne)
        a(f"""
        s_cmp_eq_u32 s{sJ}, 5
        s_cbranch_scc1 L_sdone
        s_cmp_eq_u32 s{sRem}, s{sNb}
        s_cbranch_scc1 L_flush
        s_setpc_b64 s[{sRet}:{sRet+1}]
        """)
        a(f"""
        L_slow:
        s_mov_b32 s{sRem}, -1
        v_mbcnt_lo_u32_b32 v48, -1, 0
        v_mbcnt_hi_u32_b32 v48, -1, v48
        v_lshlrev_b32 v48, 2, v48
        L_slow_pair:
        s_mul_i32 s15, s2, 40
        s_lshl_b32 s64, s{sQ[0]}, 1
        s_add_u32 s15, s15, s64
        s_mov_b32 s16, 0
        L_slow_chunk:
        buffer_load_dword v49, v48, s[{DST}:{DST+3}], s16 offen
        buffer_load_dword v50, v48, s[{SRC}:{SRC+3}], s16 offen
        s_waitcnt vmcnt(0)
        v_subrev_u32 v49, s15, v49
        v_cmp_gt_u32 vcc, 2, v49
        v_lshlrev_b32 v51, 1, v50
        ds_read_u16 v51, v51 offset:{DIS}
        s_mov_b64 s[18:19], vcc
        v_lshlrev_b32 v49, 4, v49
        v_lshlrev_b32 v50, 9, v50
        s_waitcnt lgkmcnt(0)
        v_lshlrev_b32 v51, v49, v51
        L_slow_edge:
        s_cmp_eq_u64 s[18:19], 0
        s_cbranch_scc1 L_slow_next
        s_ff1_i32_b64 s17, s[18:19]
        s_bitset0_b64 s[18:19], s17
        v_readlane_b32 s64, v50, s17
        v_readlane_b32 s65, v51, s17
        v_mov_b32 v46, 0
        v_mov_b32 v47, {OOB}
        s_mov_b64 exec, 0xffff
        v_mov_b32 v46, s65
        v_add_u32 v47, s64, v{vLo}
        s_mov_b64 exec, -1
        buffer_load_dwordx4 v[56:59], v47, s[{X}:{X+3}], 0 offen
        buffer_load_dwordx4 v[60:63], v47, s[{X}:{X+3}], 0 offen offset:256
        """)
        for r in range(4):
            a(f"v_perm_b32 v{A+r}, v46, v46, v{SEL+r}")
        a(f"""
        s_nop 0
        s_waitcnt vmcnt(0)
        v_mfma_f32_16x16x32_bf16 {r4(ACC)}, {r4(A)}, v[56:59], {r4(ACC)}
        v_mfma_f32_16x16x32_bf16 {r4(ACC+4)}, {r4(A)}, v[60:63], {r4(ACC+4)}
        s_branch L_slow_edge
        L_slow_next:
        s_add_u32 s16, s16, 256
        s_cmp_lt_u32 s16, 640000
        s_cbranch_scc1 L_slow_chunk
        s_call_b64 s[{sRet}:{sRet+1}], L_flush
        s_branch L_slow_pair
        L_sdone:
        """)
        self.stamp(7)
        self.dump(2)
        a("L_end:\ns_endpgm")

    def build(self):
        self.entry()
        self.gemm_waves()
        self.sparse_waves()
        return wrap([dict(label=NAME + "_kernel", body=self.a.text(), grid=NWG, block=512, lds=LDS_BYTES, vgpr=256)])


if __name__ == "__main__":
    out = sys.argv[1]
    opts = dict(kv.split("=") for kv in sys.argv[2:])
    g = Gen(prof=bool(int(opts.get("prof", 0))), npre=int(opts.get("npre", 8)), spin=int(opts.get("spin", 1 << 26)))
    open(out, "w").write(g.build())
```

```python
import sys
from asmlib import *
import gen

def main_k():
    g = gen.Gen()
    g.entry(); g.gemm_waves(); g.sparse_waves()
    return dict(label="main_kernel", body=g.a.text(), grid=gen.NWG, block=512, lds=gen.LDS_BYTES, vgpr=256)

def empty_k():
    return dict(label="empty_kernel", body="    s_endpgm\n", grid=256, block=64, lds=0, vgpr=8)

def touch_k(data=True, code=True, ws=True):
    a = Asm()
    a("""
    s_cmp_ge_u32 s2, 256
    s_cbranch_scc1 L_t_end
    s_load_dwordx16 s[4:19], s[0:1], 0
    s_load_dwordx8 s[20:27], s[0:1], 64
    s_load_dwordx2 s[28:29], s[0:1], 96
    s_lshl_b32 s3, s2, 9
    v_add_u32 v1, s3, v0
    v_lshlrev_b32 v1, 4, v1
    v_lshlrev_b32 v2, 6, v0
    s_waitcnt lgkmcnt(0)
    """)
    def srd(p, size):
        a(f"s_mov_b32 s32, s{p}\ns_and_b32 s33, s{p+1}, 0xffff\ns_mov_b32 s34, {size}\ns_mov_b32 s35, 0x20000\ns_nop 0")
    if data:
        for p, size in ((4, 5120000), (6, 640000), (8, 640000), (10, 160000), (14, 20000), (16, 131072), (18, 131072), (20, 131072), (22, 131072)):
            srd(p, size)
            for i in range((size + 2097151) // 2097152):
                a(f"s_mov_b32 s36, {i*2097152}\nbuffer_load_dwordx4 v[4:7], v1, s[32:35], s36 offen")
    if ws:
        for p, size in ((24, 5120000), (28, 0x300000)):
            srd(p, size)
            for i in range((size + 2097151) // 2097152):
                a(f"s_mov_b32 s36, {i*2097152}\nbuffer_load_dwordx4 v[4:7], v1, s[32:35], s36 offen")
    if code:
        a("""
        s_getpc_b64 s[40:41]
        L_t_pc:
        s_add_u32 s40, s40, main_kernel-L_t_pc
        s_addc_u32 s41, s41, 0
        v_min_u32 v2, 17000, v2
        global_load_dword v8, v2, s[40:41]
        """)
    a("s_waitcnt vmcnt(0)\nL_t_end:\ns_endpgm")
    return dict(label="touch_kernel", body=a.text(), grid=256, block=512, lds=0, vgpr=16)

V = dict(
    K=lambda: [main_k()],
    KK=lambda: [main_k(), main_k()],
    eK=lambda: [empty_k(), main_k()],
    Ke=lambda: [main_k(), empty_k()],
    tK=lambda: [touch_k(), main_k()],
    cK=lambda: [touch_k(data=False, ws=False), main_k()],
    dK=lambda: [touch_k(code=False), main_k()],
    KKK=lambda: [main_k(), main_k(), main_k()],
)
for k in sys.argv[1:]:
    open(f"pr_{k}.s", "w").write(wrap(V[k]()))
```

```python
import sys, importlib
from asmlib import *

def report_k(cls, i, mode, ws_stamp):
    a = Asm()
    a(f"""
    s_cmp_ge_u32 s2, 1
    s_cbranch_scc1 L_r_end
    s_load_dwordx2 s[28:29], s[0:1], 96
    v_lshlrev_b32 v1, 7, v0
    v_add_u32 v1, {ws_stamp}, v1
    v_mov_b32 v2, -1
    v_mov_b32 v3, 0
    v_mov_b32 v4, 0
    v_mov_b32 v10, v0
    s_mov_b32 s4, 0
    s_waitcnt lgkmcnt(0)
    global_load_dword v9, v1, s[28:29]
    s_waitcnt vmcnt(0)
    v_readfirstlane_b32 s10, v9
    s_sub_u32 s10, s10, 1000
    L_r_loop:
    global_load_dword v5, v1, s[28:29]
    global_load_dword v6, v1, s[28:29] offset:{8*i}
    s_waitcnt vmcnt(0)
    v_subrev_u32 v5, s10, v5
    v_subrev_u32 v6, s10, v6
    v_cmp_gt_u32 vcc, 2000, v10
    s_and_saveexec_b64 s[6:7], vcc
    v_min_u32 v2, v2, v5
    v_max_u32 v3, v3, v6
    v_add_u32 v4, v4, v6
    s_mov_b64 exec, -1
    v_add_u32 v1, 8192, v1
    v_add_u32 v10, 64, v10
    s_add_u32 s4, s4, 1
    s_cmp_lt_u32 s4, 32
    s_cbranch_scc1 L_r_loop
    s_mov_b32 s11, -1
    s_mov_b32 s12, 0
    s_mov_b32 s13, 0
    """)
    for l in range(64):
        a(f"v_readlane_b32 s5, v2, {l}\ns_min_u32 s11, s11, s5")
        if cls == "A" or (cls == "G") == ((l & 4) == 0):
            a(f"v_readlane_b32 s5, v3, {l}\ns_max_u32 s12, s12, s5\nv_readlane_b32 s5, v4, {l}\ns_add_u32 s13, s13, s5")
    n = 2000 if cls == "A" else 1000
    if mode == "m":
        a(f"s_mul_hi_u32 s12, s13, {(1 << 32) // n + 1}")
    a("s_sub_u32 s12, s12, s11")
    if mode == "z":
        a("s_mov_b32 s12, 0")
    a("""
    s_min_u32 s12, s12, 10000
    s_lshl_b32 s12, s12, 2
    s_add_u32 s12, s12, 6000
    s_add_u32 s11, s11, s10
    L_r_spin:
    s_memrealtime s[14:15]
    s_waitcnt lgkmcnt(0)
    s_sub_u32 s14, s14, s11
    s_cmp_lt_u32 s14, s12
    s_cbranch_scc1 L_r_spin
    L_r_end:
    s_endpgm
    """)
    return dict(label="report_kernel", body=a.text(), grid=1, block=64, lds=0, vgpr=16)

if __name__ == "__main__":
    gen = importlib.import_module(sys.argv[1])
    opts = dict(kv.split("=") for kv in sys.argv[2:] if "=" in kv)
    for k in [x for x in sys.argv[2:] if "=" not in x]:
        g = gen.Gen(prof=True, **{a: (b if a == 'st' else int(b)) for a, b in opts.items()})
        m = g.kernel("main_kernel")
        open(f"rp_{k}.s", "w").write(wrap([m, report_k(k[0], int(k[1]), k[2], gen.WS_STAMP)]))
```

```python
import sys
from asmlib import *

NMAIN, NWG = 250, 253
WS_FLAG, WS_M, WS_INBOX, WS_STAMP = 0x1000, 0x10000, 0x100000, 0x8000000
NREP = 16
C_BIN, C_XT, C_HV, C_H, C_LIST, C_OVF, C_AG = 0, 4, 8, 12, 16, 20, 32
LCNT, BCNT = 128, 512
XT, TT, AG, DIS, WST = 1024, 21504, 41984, 62464, 82944
LIST, LSTRIDE, LCAP = 148480, 264, 128
LDS_BYTES = 161792
BST = AG
EMPTY, OVF = 30 << 16, 31 << 16
PAD2 = 0x4E204E20
OOB = 0x80000000
DPPF = "row_mask:0xf bank_mask:0xf"
r4 = lambda r: f"v[{r}:{r+3}]"
MF = "v_mfma_f32_16x16x32_bf16"
SM = "v_smfmac_f32_16x16x32_bf16"
r2 = lambda r: f"v[{r}:{r+1}]"


class Gen:
    def __init__(self, prof=0, spin=1 << 26, npre=6, gthr=5, wlfirst=0, ost=5, pf=1, gprio=2, sprio=1, fpos=1, noepoch=0, glow=1, st=None, gfree=7, sthr=4, mring=10, ipos=7, mearly=1, defer=1, xmap=1, stag=7, lag=8, nogemm=0, gsleep=1, gearly=1, m2=0, nodot=0, hot=0, gwait=1, diag=0, fp=1, wlin=10, dummy=1, gstart=3, gthr0=10, touch=1, tlb=1, simd=0, m32=0, al=0):
        self.a = Asm()
        self.prof, self.spin, self.npre, self.gthr, self.wlfirst = prof, spin, npre, gthr, wlfirst
        self.ost, self.pf, self.gprio, self.sprio, self.fpos = ost, pf, gprio, sprio, fpos
        self.noepoch, self.glow, self.gfree, self.sthr, self.mring = noepoch, glow, gfree, sthr, mring
        self.st = (st or 'Gb0,Gf,Gm,Gbt,Gbv,Gwl,Sb0,Srole,Sin,Sent,Sbt,Sbv').split(',') + ['Gend', 'Send']
        self.ipos, self.mearly, self.defer, self.xmap = ipos, mearly, defer, xmap
        self.stag, self.lag, self.nogemm = stag, lag, nogemm
        self.gsleep, self.gearly, self.m2 = gsleep, gearly, m2
        self.nodot, self.hot, self.gwait = nodot, hot, gwait
        self.diag = diag
        self.fp, self.wlin, self.dummy = fp, wlin, dummy
        self.gstart, self.gthr0 = gstart, gthr0
        self.touch = touch
        self.tlb = tlb
        self.simd = simd
        self.m32, self.al = m32, al
        self.uid = 0

    def lab(self, p):
        self.uid += 1
        return f"L_{p}_{self.uid}"

    def stamp(self, name):
        if self.prof:
            sel = [n for n in self.st if n[0] == name[0]]
            if name in sel:
                i = 7 if name[1:] == "end" else 1 + sel.index(name)
                self.a(f"s_memrealtime s[{80+2*i}:{81+2*i}]")

    def srd(self, r, p, size, add=0):
        a = self.a
        if add:
            a(f"s_add_u32 s{r}, s{p}, {add}\ns_addc_u32 s{r+1}, s{p+1}, 0\ns_and_b32 s{r+1}, s{r+1}, 0xffff")
        else:
            a(f"s_mov_b32 s{r}, s{p}\ns_and_b32 s{r+1}, s{p+1}, 0xffff")
        a(f"s_mov_b32 s{r+2}, {size}\ns_mov_b32 s{r+3}, 0x20000")

    def signal(self, off, vz, vone):
        self.a(f"""
        s_waitcnt lgkmcnt(0)
        s_mov_b64 exec, 1
        ds_add_u32 v{vz}, v{vone} offset:{off}
        s_mov_b64 exec, -1
        """)

    def retry(self, l, sleep):
        r = self.lab("retry")
        self.cold.append(f"""
        {r}:
        s_sub_u32 s100, s100, 1
        s_cbranch_scc1 L_end
        {f"s_sleep {sleep}" if sleep else ""}
        s_branch {l}
        """)
        return r

    def wait_cnt(self, off, target, vz, vt, geth=False, sleep=1):
        l = self.lab("spin")
        if geth:
            rd, v = f"ds_read_b128 {r4(vt)}, v{vz}", vt + off // 4
        else:
            rd, v = f"ds_read_b32 v{vt}, v{vz} offset:{off}", vt
        self.a(f"""
        {l}:
        {rd}
        s_waitcnt lgkmcnt(0)
        v_readfirstlane_b32 s101, v{v}
        """)
        if geth:
            self.a(f"v_readfirstlane_b32 s30, v{vt + C_H // 4}")
        self.a(f"s_cmp_ge_u32 s101, {target}\ns_cbranch_scc0 {self.retry(l, sleep)}")

    def mov2(self, d, src):
        if self.m32:
            for k in range(2):
                self.a(f"v_mov_b32 v{d+k}, {0 if src is None else f'v{src+k}'}")
        else:
            self.a(f"v_mov_b64 {r2(d)}, {0 if src is None else r2(src)}")

    def flush_cold(self):
        for c in self.cold:
            self.a(c)
        self.cold = []

    def dump(self):
        if not self.prof:
            return
        a = self.a
        a("s_memtime s[98:99]\ns_waitcnt lgkmcnt(0)\nv_mov_b32 v10, 0")
        for i in range(20):
            a(f"v_writelane_b32 v10, s{80+i}, {i}")
        a(f"""
        s_getreg_b32 s64, hwreg(HW_REG_XCC_ID)
        v_writelane_b32 v10, s64, 20
        s_lshl_b32 s64, s2, 3
        s_add_u32 s64, s64, s3
        s_lshl_b32 s64, s64, 7
        s_add_u32 s64, s64, {WS_STAMP}
        v_mbcnt_lo_u32_b32 v11, -1, 0
        v_mbcnt_hi_u32_b32 v11, -1, v11
        v_cmp_gt_u32 vcc, 32, v11
        v_lshl_add_u32 v11, v11, 2, s64
        s_and_saveexec_b64 s[66:67], vcc
        global_store_dword v11, v10, s[28:29]
        """)

    def entry(self):
        a = self.a
        self.cold = []
        a("L_begin:")
        if self.prof:
            a("s_memrealtime s[80:81]\ns_memtime s[96:97]")
        a(f"""
        s_cmp_ge_u32 s2, {NWG}
        s_cbranch_scc1 L_end
        s_load_dwordx16 s[4:19], s[0:1], 0
        s_load_dwordx8 s[20:27], s[0:1], 64
        s_load_dwordx2 s[28:29], s[0:1], 96
        """)
        if self.pf:
            a("""
            s_cmp_ge_u32 s2, 16
            s_cbranch_scc1 L_nopf
            s_getpc_b64 s[32:33]
            L_pc:
            v_lshlrev_b32 v1, 6, v0
            v_min_u32 v1, L_end-L_pc, v1
            global_load_dword v255, v1, s[32:33]
            L_nopf:
            """)
        a(f"""
        v_lshrrev_b32 v1, 6, v0
        v_lshlrev_b32 v8, 4, v0
        v_mov_b32 v12, {EMPTY}
        v_readfirstlane_b32 s3, v1
        v_mov_b32 v13, {EMPTY}
        v_mov_b32 v14, {EMPTY}
        v_mov_b32 v15, {EMPTY}
        ds_write_b128 v8, v[12:15] offset:{BST}
        ds_write_b128 v8, v[12:15] offset:{BST + 8192}
        v_subrev_u32 v9, {LCNT // 4}, v0
        v_cmp_gt_u32 vcc, 20, v9
        v_mul_u32_u24 v9, {LSTRIDE}, v9
        v_add_u32 v9, {LIST}, v9
        v_lshlrev_b32 v10, 2, v0
        v_cndmask_b32 v9, 0, v9, vcc
        v_min_u32 v11, 1020, v10
        ds_write_b32 v11, v9
        v_mov_b32 v16, {PAD2}
        v_mov_b32 v17, {PAD2}
        v_mov_b32 v18, {PAD2}
        v_mov_b32 v19, {PAD2}
        v_add_u32 v9, {LIST}, v8
        ds_write_b128 v9, v[16:19]
        v_and_b32 v2, 63, v0
        v_and_b32 v3, 15, v0
        v_bfe_u32 v4, v0, 4, 2
        v_mov_b32 v5, 0
        v_mov_b32 v6, 1
        s_mov_b32 s100, {self.spin}
        """)
        if self.prof:
            for i in range(1, 8):
                a(f"s_mov_b64 s[{80+2*i}:{81+2*i}], 0")
        if self.xmap:
            a("""
            s_and_b32 s64, s2, 7
            s_lshl_b32 s64, s64, 1
            s_bfe_u32 s65, s2, 0x10003
            s_or_b32 s64, s64, s65
            s_and_b32 s65, s2, 0xf0
            s_or_b32 s64, s64, s65
            s_cmp_lt_u32 s2, 240
            s_cselect_b32 s1, s64, s2
            """)
        else:
            a("s_mov_b32 s1, s2")
        if self.simd:
            lo = self.simd - 1
            a(f"""
            s_lshr_b32 s64, s3, {lo}
            s_lshr_b32 s65, s3, 2
            s_xor_b32 s64, s64, s65
            s_and_b32 s64, s64, 1
            s_mul_i32 s64, s64, {4 | (1 << lo)}
            s_xor_b32 s3, s3, s64
            s_lshl_b32 s64, s3, 6
            v_add_u32 v0, s64, v2
            v_lshlrev_b32 v8, 4, v0
            v_lshlrev_b32 v10, 2, v0
            """)
        a("""
        s_and_b32 s31, s3, 3
        s_cmp_lt_u32 s3, 4
        s_cbranch_scc1 L_gemm
        """)

    def gemm_waves(self):
        a = self.a
        W = lambda jb, ks: 128 + (ks * 4 + jb) * 4
        ACC = lambda b, jb: 80 + (b * 4 + jb) * 4
        MR = lambda n: 40 + (n % 10) * 4
        BF = lambda s, b: 16 + (s * 3 + b) * 4
        vN, vG, vZ, vOne = 3, 4, 5, 6
        vB = [7, 8, 9, 10]
        vTR = [11, 12]
        vD, vM, vT = 13, 14, 15
        X, WV, WL, WS, OUT = 32, 36, 40, 44, 48
        thr = self.gthr

        a("L_gemm:")
        a(f"""
        v_lshrrev_b32 v0, 5, v2
        s_lshl_b32 s64, s31, 1
        v_add_u32 v0, s64, v0
        v_and_b32 v1, 31, v2
        v_xor_b32 v1, v1, v0
        v_lshlrev_b32 v1, 4, v1
        v_lshl_add_u32 v0, v0, 9, v1
        v_xor_b32 v1, 0x80, v0
        v_lshrrev_b32 v{vD}, 3, v2
        v_lshrrev_b32 v{vT}, 2, v2
        v_and_b32 v{vT}, 4, v{vT}
        v_and_b32 v{vM}, 7, v2
        v_xor_b32 v{vT}, v{vT}, v{vM}
        v_lshlrev_b32 v{vT}, 4, v{vT}
        v_lshl_add_u32 v{vD}, v{vD}, 9, v{vT}
        s_lshr_b32 s67, s2, 3
        s_and_b32 s67, s67, {self.stag}
        s_lshl_b32 s64, s31, 7
        s_lshl_b32 s65, s67, 14
        s_or_b32 s64, s64, s65
        v_add_u32 v{vD}, s64, v{vD}
        s_mul_i32 s65, s1, 20480
        s_lshl_b32 s66, s31, 10
        s_lshl_b32 s70, s31, 14
        s_add_u32 s70, s70, {WST}
        s_mov_b32 s71, 3072
        s_mov_b32 s72, 6144
        s_mov_b32 s73, 9216
        s_waitcnt lgkmcnt(0)
        """)
        self.srd(X, 4, 5120000)
        self.srd(WV, 22, 131072)
        if self.touch:
            lt = self.lab("touched")
            a(f"""
            s_bitcmp1_b32 s2, 3
            s_cbranch_scc0 {lt}
            s_lshr_b32 s64, s2, 4
            s_lshl_b32 s64, s64, 3
            s_and_b32 s68, s2, 7
            s_or_b32 s64, s64, s68
            s_lshl_b32 s64, s64, 10
            v_lshl_add_u32 v16, v2, 4, s64
            s_cmp_eq_u32 s31, 1
            s_cselect_b64 s[68:69], s[22:23], s[16:17]
            s_cmp_eq_u32 s31, 2
            s_cselect_b64 s[68:69], s[18:19], s[68:69]
            s_cmp_eq_u32 s31, 3
            s_cselect_b64 s[68:69], s[20:21], s[68:69]
            global_load_dwordx4 v[20:23], v16, s[68:69]
            {lt}:
            """)
        a(f"s_cmp_ge_u32 s2, {NMAIN}\ns_cbranch_scc1 L_end")
        if self.tlb:
            a(f"""
            s_mul_i32 s64, s1, 20480
            s_mov_b32 s76, 0
            s_cmp_eq_u32 s31, 0
            s_cselect_b64 s[68:69], s[24:25], s[16:17]
            s_cselect_b32 s64, s64, 0
            s_cmp_eq_u32 s31, 2
            s_cselect_b64 s[68:69], s[28:29], s[68:69]
            s_cselect_b32 s64, 0x800, s64
            s_cselect_b32 s76, 0x2f8000, s76
            s_cmp_eq_u32 s31, 3
            s_cselect_b64 s[68:69], s[4:5], s[68:69]
            s_cselect_b32 s76, 0x200000, s76
            s_cselect_b32 s77, 2, 1
            v_min_u32 v17, s77, v2
            v_mul_lo_u32 v17, v17, s76
            v_add_u32 v17, s64, v17
            global_load_dword v24, v17, s[68:69]
            """)
        b0 = f"s_barrier\ns_setprio {self.gprio}"
        if self.gearly == 0:
            a(b0)
        self.stamp("Gb0")

        def throttle(th):
            return f"s_waitcnt vmcnt({th - 1})\n" if th < 16 else ""

        for i in range(5):
            a(f"s_add_u32 m0, s66, {XT + i*4096}")
            a("s_add_u32 s65, s65, 4096" if i else "s_nop 0")
            a(f"buffer_load_dwordx4 v{i & 1}, s[{X}:{X+3}], s65 offen lds")

        def dma_list(srd, ks, th=False, m0=None):
            so = ["0", "s71", "s72", "s73"]
            slot = ks & 3
            ops = []
            for i in range(4):
                pre = (f"s_mov_b32 m0, {m0}\n" if m0 else f"s_add_u32 m0, s70, {slot*4096}\n") if i == 0 else ""
                t = throttle(th) if th else ""
                if i == 0 and not t:
                    t = "s_nop 0\n"
                post = f"\nv_xor_b32 v{vD}, {(ks ^ ((ks + 1) & 7)) << 14}, v{vD}" if i == 3 else ""
                ops.append(pre + t + f"buffer_load_dwordx4 v{vD}, s[{srd}:{srd+3}], {so[i]} offen offset:{i*1024} lds" + post)
            return ops

        def dma(srd, slot, th=False, m0=None):
            for o in dma_list(srd, slot, th, m0):
                a(o)

        WL_ = lambda jb, ks: 48 + (ks * 4 + jb) * 4 if ks < 2 else W(jb, ks - 2)

        def tr_list(ks, slot, reg=W):
            return [f"ds_read_b64_tr_b16 {r2(reg(jb, ks) + 2*hh)}, v{vTR[jb >> 1]} offset:{slot*4096 + hh*512 + (jb & 1)*8}"
                    for jb in range(4) for hh in range(2)]

        def tr(ks, slot, reg=W):
            a("\n".join(tr_list(ks, slot, reg)))

        if self.gearly == 1:
            a(b0)
        dma(WV, 0)
        if self.gearly == 2:
            a(b0)
        self.srd(WL, 16, 131072)
        self.srd(WS, 28, 0x100000)
        self.srd(OUT, 24, 5120000)
        a(f"""
        v_xor_b32 v{vT}, v{vG}, v{vN}
        v_lshlrev_b32 v{vT}, 4, v{vT}
        v_lshl_add_u32 v{vB[0]}, v{vN}, 9, v{vT}
        s_lshl_b32 s64, s67, 6
        v_xor_b32 v{vB[0]}, s64, v{vB[0]}
        v_xor_b32 v{vB[1]}, 64, v{vB[0]}
        v_xor_b32 v{vB[2]}, 0x80, v{vB[0]}
        v_xor_b32 v{vB[3]}, 0xc0, v{vB[0]}
        v_lshrrev_b32 v{vT}, 2, v{vN}
        v_lshl_add_u32 v{vT}, v{vG}, 3, v{vT}
        v_lshlrev_b32 v{vT}, 7, v{vT}
        v_lshrrev_b32 v{vM}, 1, v{vN}
        v_and_b32 v{vM}, 4, v{vM}
        v_and_b32 v0, 3, v{vN}
        v_xor_b32 v{vM}, v{vM}, v0
        v_lshl_add_u32 v{vT}, v{vM}, 4, v{vT}
        v_add_u32 v{vTR[0]}, s70, v{vT}
        v_xor_b32 v{vTR[1]}, 64, v{vTR[0]}
        v_and_b32 v0, 31, v2
        v_lshlrev_b32 v0, 2, v0
        s_and_b32 s64, s2, {NREP-1}
        s_lshl_b32 s64, s64, 9
        s_lshl_b32 s65, s31, 7
        s_add_u32 s64, s64, s65
        s_add_u32 s74, s64, {WS_FLAG}
        v_lshlrev_b32 v{vM}, 4, v2
        s_lshl_b32 s75, s31, 15
        s_lshl_b32 s64, s67, 12
        s_or_b32 s75, s75, s64
        s_add_u32 s75, s75, {WS_M}
        """)
        flagload = f"buffer_load_dword v1, v0, s[{WS}:{WS+3}], s74 offen sc1"

        def mload(n):
            s = f"buffer_load_dwordx4 {r4(MR(n))}, v{vM}, s[{WS}:{WS+3}], s75 offen offset:{(n & 3)*1024} sc1"
            if n & 3 == 3:
                s += f"\ns_xor_b32 s75, s75, {((n >> 2) ^ (((n >> 2) + 1) & 7)) << 12}"
            return s

        ngrp = 12 if self.wlfirst else 8
        fafter = ngrp - 1 - self.fpos
        order = ["X"] * 5 + ["D0"] * 4
        def issue_group(g):
            dma(WV if g < 8 else WL, g & 7, self.gthr0 if g < self.gstart else (thr if g < self.gfree else 0))
            order.extend([f"D{g}"] * 4)
            if g == fafter:
                a(flagload)
                order.append("F")
        def wait_for(tag):
            last = max(i for i, o in enumerate(order) if o == tag)
            a(f"s_waitcnt vmcnt({len(order) - 1 - last})")
        def mstart():
            wait_for("F")
            self.stamp("Gf")
            l = self.lab("mchk")
            self.wait_cnt(C_HV, 1, vZ, 16, geth=True)
            rl = self.lab("mre")
            self.cold.append(f"""
            {rl}:
            s_sub_u32 s100, s100, 1
            s_cbranch_scc1 L_end
            s_sleep 2
            {flagload}
            s_waitcnt vmcnt(0)
            s_branch {l}
            """)
            a(f"{l}:\nv_cmp_ne_u32 vcc, s30, v1\ns_cbranch_vccnz {rl}")
            self.stamp("Gm")
            for n in range(10):
                a(mload(n))
            order.extend(["M"] * 10)
        for g in range(1, 4):
            issue_group(g)
        started = False
        for ks in range(8):
            wait_for(f"D{ks}")
            self.stamp(f"Gd{ks}")
            if ks == 0:
                self.signal(C_XT, vZ, vOne)
            tr(ks, ks & 3)
            if ks + 4 < ngrp:
                a("s_waitcnt lgkmcnt(0)")
                issue_group(ks + 4)
            if not started and ks + 4 >= ngrp - 1 and ks >= min(fafter, 7):
                mstart()
                started = True
        assert started

        def bread(tile, ks, b, r, last=2):
            if self.stag & 4:
                a(f"ds_read_b128 {r4(r)}, v{vB[ks & 3]} offset:{tile + b*8192}")
                if b == last:
                    a(f"v_xor_b32 v{vB[ks & 3]}, 0x100, v{vB[ks & 3]}")
            else:
                a(f"ds_read_b128 {r4(r)}, v{vB[ks & 3]} offset:{tile + b*8192 + (ks >> 2)*256}")

        self.wait_cnt(C_XT, 4, vZ, vT)
        follow = [mload(n) for n in range(10, 32)]
        if not self.wlfirst:
            follow += sum((dma_list(WL, s) for s in range(4)), [])
        for b in range(3):
            bread(XT, 0, b, BF(0, b))
        inflight = 10
        for ks in range(8):
            if ks < 7:
                for b in range(3):
                    bread(XT, ks + 1, b, BF((ks + 1) & 1, b))
            a(f"s_waitcnt lgkmcnt({3 if ks < 7 else 0})")
            self.stamp(f"Gt{ks}")
            for jb in range(4):
                n = 4 * ks + jb
                a(f"s_waitcnt vmcnt({inflight - 1})")
                for b in range(3):
                    c = r4(ACC(b, jb)) if ks else "0"
                    a(f"{MF} {r4(ACC(b, jb))}, {r4(MR(n))}, {r4(BF(ks & 1, b))}, {c}")
                if follow and n < 22 + self.wlin:
                    a(follow.pop(0))
                else:
                    inflight -= 1
        self.stamp("Gt8")
        a(f"""
        s_lshl_b32 s64, s31, 3
        v_add_u32 v0, s64, v{vG}
        v_xor_b32 v0, v0, v{vN}
        v_lshlrev_b32 v0, 4, v0
        v_lshl_add_u32 v0, v{vN}, 9, v0
        v_xor_b32 v1, 64, v0
        s_mov_b32 s76, 0x00ff00ff
        s_mov_b32 s77, 0x00ff00ff
        """)

        def pack(b, h, r):
            for k in range(2):
                s = ACC(b, 2 * h + k)
                a(f"v_cvt_pk_bf16_f32 v{r+2*k}, v{s}, v{s+1}\nv_cvt_pk_bf16_f32 v{r+2*k+1}, v{s+2}, v{s+3}")

        for b in range(3):
            if b == 2:
                a("s_mov_b64 exec, s[76:77]")
            for h in range(2):
                r = 16 + (b * 2 + h) * 4
                pack(b, h, r)
                a(f"ds_write_b128 v{h}, {r4(r)} offset:{TT + b*8192}")
        a("s_mov_b64 exec, -1\ns_waitcnt lgkmcnt(0)")
        self.stamp("Gtf")
        a("s_barrier")
        self.stamp("Gbt")
        for o in follow:
            a(o)
        a(f"""
        v_lshlrev_b32 v0, 4, v{vG}
        v_and_b32 v1, 7, v{vN}
        v_lshl_add_u32 v0, v1, 9, v0
        v_and_b32 v1, 8, v{vN}
        v_lshl_add_u32 v0, v1, 3, v0
        s_mul_i32 s74, s1, 20480
        s_lshl_b32 s64, s31, 7
        s_add_u32 s74, s74, s64
        s_waitcnt vmcnt(8)
        """)
        tr(0, 0, WL_)
        tr(1, 1, WL_)
        a("s_waitcnt lgkmcnt(8)")
        dma(WL, 4)
        a("s_waitcnt lgkmcnt(0)")
        dma(WL, 5)
        a(f"""
        s_lshl_b32 s64, s31, 12
        s_add_u32 s78, s64, {TT}
        s_add_u32 s79, s64, {LIST}
        s_cmp_eq_u32 s31, 3
        s_cselect_b32 s79, {TT + 16384}, s79
        s_sub_u32 s76, s78, s70
        s_sub_u32 s77, s79, s78
        """)
        vB8 = vB + [40, 41, 42, 43]
        for k in range(4):
            a(f"v_xor_b32 v{40+k}, 0x100, v{vB[k]}")
        a("s_barrier")
        self.stamp("Gbv")
        dma(WL, 6, m0="s78")
        dma(WL, 7, m0="s79")
        lo = "s_setprio 0" if self.glow else ""
        hi = f"s_setprio {self.gprio}" if self.glow else ""
        a(lo)

        def wait_prog(target, sleep):
            l = self.lab("prog")
            a(f"""
            {l}:
            ds_read_b128 v[16:19], v{vZ} offset:{C_AG}
            s_waitcnt lgkmcnt(0)
            v_min3_u32 v16, v16, v17, v18
            v_min_u32 v16, v16, v19
            v_cmp_gt_u32 vcc, {target}, v16
            s_cbranch_vccnz {self.retry(l, sleep)}
            """)

        if self.gwait:
            wait_prog(self.gwait, 1)
        self.stamp("Gv0")
        rd = lambda tile, ks, b, r: f"ds_read_b128 {r4(r)}, v{vB8[ks]} offset:{tile + b*8192}"

        def weave(mf, fill):
            fill = list(fill)
            for m in mf:
                a(m)
                if fill:
                    a(fill.pop(0))
            for f in fill:
                a(f)

        for b in range(3):
            a(rd(XT, 0, b, BF(0, b)))
        a("s_waitcnt vmcnt(8)")
        young = 0
        for ks in range(8):
            a(f"s_waitcnt lgkmcnt({young})")
            mf = [f"{MF} {r4(ACC(b, jb))}, {r4(W(jb, ks))}, {r4(BF(ks & 1, b))}, {r4(ACC(b, jb)) if ks else 0}"
                  for jb in range(4) for b in range(3) if not (self.nogemm and b)]
            fill = [rd(XT, ks + 1, b, BF((ks + 1) & 1, b)) for b in range(3)] if ks < 7 else []
            young = 0
            if 1 <= ks <= 4:
                fill += tr_list(ks + 1, (ks + 1) & 3, WL_)
                young = 8
            if ks >= 6:
                d = 76 if ks == 6 else 77
                t = tr_list(ks, 0, WL_)
                t[0] = f"s_waitcnt vmcnt({4 * (7 - ks)})\n" + t[0]
                fill = [f"v_add_u32 v{vTR[0]}, s{d}, v{vTR[0]}\nv_add_u32 v{vTR[1]}, s{d}, v{vTR[1]}"] + fill + t
                young = 8
            weave(mf, fill)
        self.stamp("Gwl")
        FB = lambda ks: 16 + ks * 4 if ks < 6 else (44 if ks == 6 else 252)
        sf = ["", " sc1", " nt", " sc0 sc1"][self.ost & 3]
        st = lambda r: f"buffer_store_dwordx4 {r4(r)}, v0, s[{OUT}:{OUT+3}], s74 offen{sf}"

        def packl(b, h, r):
            return [f"v_cvt_pk_bf16_f32 v{r+k}, v{ACC(b, 2*h) + 2*k}, v{ACC(b, 2*h) + 2*k + 1}" for k in range(4)]

        def epi(b, ra, rb):
            o = packl(b, 1, rb) + packl(b, 0, ra)
            if b < 2:
                o += packl(b, 0, 240)
            o += [f"v_mov_b32_dpp v{ra+k}, v{rb+k} row_ror:8 row_mask:0xf bank_mask:0xc" for k in range(4)]
            if b < 2:
                o += [f"v_mov_b32_dpp v{rb+k}, v{240+k} row_ror:8 row_mask:0xf bank_mask:0x3" for k in range(4)]
            return o

        for b in range(3):
            wait_prog((2, 4, 5)[b], self.gsleep if b < 2 else 0)
            self.stamp(f"Ga{b}")
            if b == 2:
                a(hi)
            for ks in range(8):
                a(rd(AG, ks, b, FB(ks)))
            mf = []
            for ks in range(8):
                for n, jb in enumerate((2, 3, 0, 1)):
                    w = f"s_waitcnt lgkmcnt({7-ks})\n" if n == 0 else ""
                    mf.append(w + f"{MF} {r4(ACC(b, jb))}, {r4(WL_(jb, ks))}, {r4(FB(ks))}, {r4(ACC(b, jb))}")
            weave(mf, epi(0, 224, 228) if b == 1 else [])
            if b == 1:
                a(f"{hi}\n{st(224)}\ns_add_u32 s74, s74, 4096\n{st(228)}\ns_add_u32 s74, s74, 4096\ns_nop 1")
                a("\n".join(epi(1, 232, 236)))
                a(f"{st(232)}\ns_add_u32 s74, s74, 4096\n{st(236)}\ns_add_u32 s74, s74, 4096\n{lo}")
            if b == 2:
                a("s_nop 4")
                a("\n".join(epi(2, 244, 248)))
                a(st(244))
        l = self.lab("noepoch")
        a(f"""
        s_or_b32 s64, s2, s3
        s_cbranch_scc1 {l}
        v_mov_b32 v1, s30
        s_mov_b64 exec, 1
        {"" if self.noepoch else f"buffer_store_dword v1, v{vZ}, s[{WS}:{WS+3}], 0 offen"}
        {l}:
        """)
        if self.prof:
            a("s_mov_b64 exec, -1\ns_waitcnt vmcnt(0)")
        self.stamp("Gend")
        self.dump()
        a("s_endpgm")
        self.flush_cold()

    def sparse_waves(self):
        a = self.a
        R = self.lag
        AT = lambda t, h: 176 + t * 8 + 4 * h
        RG = lambda t, h: 48 + (t % 16) * 8 + 4 * h
        vN, vG, vZ, vOne = 3, 4, 5, 6
        vLo, vEs, vFa = 7, 0, 2
        vL16 = 8
        MSK, vIx, ACC = 12, 14, 16
        A = [24, 26]
        vJ, vPa = 28, 29
        FS = lambda j: 176 + 2 * j
        EA = [32, 34, 36, 38]
        EW = [33, 35, 37, 39]
        vW, vAd = 10, 11
        X, DS, IB, TG, MK = 32, 36, 40, 44, 48
        sIdx = 27
        sP = [10, 11, 12, 13, 14]
        sK = [15, 16, 17, 18, 19]
        sQ = [20, 21, 22, 23, 24]
        sSlow, sJ, sT, sG = 25, 26, 49, 50
        sM, sRet, sTab, sF, sD, sMode, sDr, sAnc = 52, 54, 56, 58, 60, 62, 70, 72

        a(f"""
        s_setprio 3
        v_and_b32 v{vL16}, 0xfff, v8
        v_and_b32 v9, 0x3ff, v10
        s_lshr_b32 s66, s2, 4
        s_lshl_b32 s66, s66, 3
        s_and_b32 s67, s2, 7
        s_or_b32 s68, s66, s67
        s_mul_i32 s64, s68, 5120
        v_add_u32 v40, s64, v{vL16}
        s_add_u32 s64, s64, 4096
        v_add_u32 v41, s64, v9
        """)
        a(f"""
        v_lshrrev_b32 v42, 2, v{vN}
        v_and_b32 v43, 3, v{vN}
        v_lshl_add_u32 v46, v42, 3, v43
        v_lshl_add_u32 v42, v42, 4, v43
        s_lshl_b32 s64, s31, 1
        v_mov_b32 v43, s64
        v_lshlrev_b32 v44, 1, v43
        v_cmp_gt_u32 vcc, 8, v{vN}
        s_mul_i32 s65, s1, 640
        v_lshlrev_b32 v{vLo}, 4, v{vN}
        v_cndmask_b32 v43, v43, v44, vcc
        v_add_lshl_u32 v42, v42, v43, 4
        v_lshl_add_u32 v42, v{vG}, 2, v42
        v_add_u32 v42, s65, v42
        v_min_u32 v42, 159996, v42
        """)
        lm, lj = self.lab("mrole"), self.lab("roled")
        a(f"""
        s_bitcmp1_b32 s2, 3
        s_cbranch_scc0 {lm}
        s_waitcnt lgkmcnt(0)
        global_load_dwordx4 v[48:51], v40, s[8:9]
        global_load_dword v52, v41, s[8:9]
        global_load_dwordx4 v[56:59], v40, s[6:7]
        global_load_dword v60, v41, s[6:7]
        {lj}:
        global_load_dword v{vEs}, v42, s[10:11]
        s_mov_b32 s{sIdx}, s68
        s_mov_b32 s26, 0
        s_cmp_lg_u32 s31, 0
        s_cbranch_scc1 {lj}_b
        s_load_dword s30, s[28:29], 0
        {lj}_b:
        s_barrier
        """)
        mrole = Asm()
        mrole(f"""
        {lm}:
        v_lshlrev_b32 v43, 4, v{vG}
        v_lshl_add_u32 v46, v46, 9, v43
        s_bfe_u32 s64, s68, 0x30002
        s_lshl_b32 s64, s64, 14
        s_lshr_b32 s65, s68, 5
        s_lshl_b32 s65, s65, 15
        s_bfe_u32 s66, s68, 0x10001
        s_lshl_b32 s66, s66, 14
        s_add_u32 s65, s65, s66
        s_and_b32 s66, s68, 1
        s_lshl_b32 s66, s66, 11
        s_add_u32 s65, s65, s66
        s_lshr_b32 s66, s2, 2
        s_xor_b32 s66, s66, s2
        s_and_b32 s66, s66, 0x30
        s_lshl_b32 s66, s66, 3
        v_add_u32 v46, s66, v46
        v_add_u32 v44, s64, v46
        v_add_u32 v45, s65, v46
        s_cmp_lg_u32 s31, 0
        s_waitcnt lgkmcnt(0)
        s_cbranch_scc1 {lj}
        """)
        def mline(l):
            if l:
                d = (l ^ (l - 1)) << 7
                mrole(f"v_xor_b32 v44, {d}, v44\nv_xor_b32 v45, {d}, v45")
            for k in (2 * l, 2 * l + 1):
                mrole(f"global_load_dwordx4 {r4(48 + 12*k)}, v45, s[20:21] offset:{64*(k & 1)}")
                mrole(f"global_load_dwordx4 {r4(52 + 12*k)}, v44, s[18:19] offset:{64*(k & 1)}")
                mrole(f"global_load_dwordx4 {r4(56 + 12*k)}, v44, s[18:19] offset:{2048 + 64*(k & 1)}")
        for l in range(1 if self.m2 else 4):
            mline(l)
        mrole(f"s_branch {lj}")
        self.stamp("Sb0")
        self.srd(X, 4, 5120000)
        self.srd(DS, 14, 20000)
        self.srd(IB, 28, 125 * 16384, add=WS_INBOX)
        a(f"""
        v_and_b32 v40, 8, v{vN}
        v_lshlrev_b32 v40, 1, v40
        v_mov_b32 v41, 0xffff
        v_lshlrev_b32 v40, v40, v41
        s_mov_b32 s64, 0x0f0f0f0f
        s_mov_b32 s65, 0x0f0f0f0f
        v_cndmask_b32 v{MSK}, 0, v40, s[64:65]
        v_xor_b32 v{MSK+1}, v40, v{MSK}
        v_and_b32 v{vIx}, 3, v{vN}
        v_mul_u32_u24 v{vIx}, 0x55, v{vIx}
        """)
        lh = self.lab("tagged")
        a(f"""
        s_cmp_lg_u32 s31, 0
        s_cbranch_scc1 {lh}
        s_waitcnt lgkmcnt(0)
        s_mul_i32 s30, s30, 0x9E3779B1
        s_add_u32 s30, s30, 0x7F4A7C15
        v_mov_b32 v40, 1
        v_mov_b32 v41, s30
        ds_write_b64 v{vZ}, v[40:41] offset:{C_HV}
        {lh}:
        """)

        def tags(dst):
            dst(f"""
            s_and_b32 s{TG}, s30, 0xffc00000
            s_lshl_b32 s{TG+1}, s30, 10
            s_and_b32 s{TG+1}, s{TG+1}, 0xffc00000
            s_lshl_b32 s{TG+2}, s30, 20
            s_and_b32 s{TG+2}, s{TG+2}, 0xffc00000
            s_lshl_b32 s{TG+3}, s30, 22
            """)

        lm2, lj2 = self.lab("mwork"), self.lab("worked")
        a(f"s_bitcmp1_b32 s2, 3\ns_cbranch_scc0 {lm2}")
        a(f"""
        v_mov_b32 v43, 4
        v_mov_b32 v44, {OVF}
        s_mov_b32 s64, 0x3f0001
        v_lshrrev_b32 v40, 7, v{vL16}
        v_and_b32 v41, 0x70, v{vL16}
        v_lshl_add_u32 v40, v40, 14, v41
        s_lshl_b32 s65, s{sIdx}, 7
        s_waitcnt vmcnt(3)
        """)
        for k in range(5):
            a(f"""
            v_mul_u32_u24 v{64+k}, 52429, v{48+k}
            v_lshrrev_b32 v{72+k}, 22, v{64+k}
            v_lshlrev_b32 v{80+k}, 2, v{72+k}
            ds_add_rtn_u32 v{80+k}, v{80+k}, v43 offset:{BCNT}
            """)
        for k in range(5):
            a(f"""
            v_lshrrev_b32 v{64+k}, 21, v{64+k}
            v_mad_u32_u24 v{64+k}, v{64+k}, 24, v{48+k}
            v_mul_u32_u24 v{64+k}, 0x8001, v{64+k}
            v_and_b32 v{88+k}, 7, v{72+k}
            v_lshl_or_b32 v{72+k}, v{72+k}, 3, v{88+k}
            v_lshlrev_b32 v{72+k}, 4, v{72+k}
            """)
        a("s_waitcnt vmcnt(1)")
        for k in range(5):
            a(f"v_lshlrev_b32 v{56+k}, 1, v{56+k}\nv_and_or_b32 v{64+k}, v{64+k}, s64, v{56+k}")
        a("s_waitcnt lgkmcnt(0)")
        for k in range(5):
            a(f"""
            v_cmp_gt_u32 vcc, 124, v{80+k}
            v_min_u32 v{80+k}, 124, v{80+k}
            v_xor_b32 v{80+k}, v{80+k}, v{72+k}
            v_cndmask_b32 v{64+k}, v44, v{64+k}, vcc
            ds_write_b32 v{80+k}, v{64+k} offset:{BST}
            """)
        self.signal(C_BIN, vZ, vOne)
        self.wait_cnt(C_BIN, 4, vZ, 44, geth=True)
        for i in range(4):
            a(f"ds_read_b128 {r4(48 + 4*i)}, v{vL16} offset:{BST + i*4096}")
        tags(a)
        for i in range(4):
            a(f"s_waitcnt lgkmcnt({3-i})")
            for k in range(4):
                a(f"v_or_b32 v{48+4*i+k}, s{TG+k}, v{48+4*i+k}")
            a(f"buffer_store_dwordx4 {r4(48 + 4*i)}, v40, s[{IB}:{IB+3}], s65 offen sc1")
            if i < 3:
                a("s_add_u32 s65, s65, 0x80000")
        a(f"""
        s_cmp_ge_u32 s2, {NMAIN}
        s_cbranch_scc1 L_end
        s_waitcnt vmcnt(4)
        {lj2}:
        """)
        mrole(f"{lm2}:\ns_cmp_lg_u32 s31, 0\ns_cbranch_scc1 {lj2}_w")
        if self.m2:
            mrole("s_waitcnt vmcnt(1)")
            for l in range(1, 4):
                mline(l)
        for k in range(8):
            mrole(f"s_waitcnt vmcnt({21 - 3*k if self.m2 else 22 - 3*k})")
            for jj in range(2):
                c = r4(ACC + 4 * jj) if k else "0"
                mrole(f"{MF} {r4(ACC + 4*jj)}, {r4(52 + 12*k + 4*jj)}, {r4(48 + 12*k)}, {c}")
        mrole(f"""
        s_lshl_b32 s64, s{sIdx}, 10
        s_add_u32 s64, s64, {WS_M}
        v_lshl_add_u32 v40, v2, 4, s64
        s_lshl_b32 s64, s{sIdx}, 2
        s_add_u32 s64, s64, {WS_FLAG}
        v_lshl_add_u32 v41, v2, 9, s64
        v_mov_b32 v42, s30
        s_nop 1
        """)
        for k in range(4):
            mrole(f"v_cvt_pk_bf16_f32 v{44+k}, v{ACC+2*k}, v{ACC+2*k+1}")
        mrole("global_store_dwordx4 v40, v[44:47], s[28:29] sc1")
        if self.mearly:
            mrole("s_mov_b32 s26, 1\ns_waitcnt vmcnt(1)")
        else:
            mrole(f"""
            s_waitcnt vmcnt(0)
            s_mov_b64 exec, {(1 << NREP) - 1}
            global_store_dword v41, v42, s[28:29] sc1
            s_mov_b64 exec, -1
            """)
        mrole(f"""
        s_branch {lj2}
        {lj2}_w:
        s_waitcnt vmcnt(0)
        s_branch {lj2}
        """)
        self.stamp("Srole")
        a(f"""
        v_lshlrev_b32 v{vEs}, 9, v{vEs}
        s_setprio {self.sprio}
        s_lshl_b32 s64, s31, 10
        s_lshr_b32 s10, s1, 1
        s_lshl_b32 s10, s10, 14
        s_add_u32 s11, s10, 4096
        s_add_u32 s12, s10, 8192
        s_add_u32 s13, s10, 12288
        v_cmp_gt_u32 vcc, 0xe80, v{vL16}
        s_mov_b64 s[14:15], vcc
        """)

        def arow(t, th):
            a(f"v_add_u32_dpp v9, v{vEs}, v{vLo} row_newbcast:{t} {DPPF}")
            if th and self.sthr:
                a(f"s_waitcnt vmcnt({self.sthr - 2})")
            for h in range(2):
                a(f"buffer_load_dwordx4 {r4(AT(t, h))}, v9, s[{X}:{X+3}], 0 offen offset:{256*h}")

        nd = 0
        for t in range(self.ipos):
            arow(t, True)
            if t == 1 and self.mearly:
                lf = self.lab("flagged")
                a(f"""
                s_cmp_eq_u32 s26, 0
                s_cbranch_scc1 {lf}
                s_waitcnt vmcnt({4 + nd})
                s_mov_b64 exec, {(1 << NREP) - 1}
                global_store_dword v41, v42, s[28:29] sc1
                s_mov_b64 exec, -1
                {lf}:
                """)
            while nd < 5 and (nd + 1) * self.ipos <= 5 * (t + 1):
                a(f"s_add_u32 m0, s64, {DIS + nd*4096}\ns_mov_b32 s65, {nd*4096}")
                a(f"buffer_load_dwordx4 v{vL16}, s[{DS}:{DS+3}], s65 offen lds")
                nd += 1
        assert nd == 5
        late = list(range(self.ipos, 10))
        self.stamp("Sat")
        l = self.lab("ipoll")
        a(f"{l}:")
        for i in range(4):
            if i == 3:
                a("s_mov_b64 exec, s[14:15]")
            a(f"buffer_load_dwordx4 {r4(48 + 4*i)}, v{vL16}, s[{IB}:{IB+3}], s{10+i} offen sc1")
        a("s_mov_b64 exec, -1")
        self.wait_cnt(C_HV, 1, vZ, 44, geth=True)
        tags(a)
        a("s_and_b32 s64, s1, 1\ns_lshl_b32 s64, s64, 21")
        for k in range(4):
            a(f"s_or_b32 s{TG+k}, s{TG+k}, s64\nv_mov_b32 v{76+k}, {EMPTY}")
        a(f"s_mov_b32 s16, {20 << 16}\nv_mov_b32 v42, 2")
        for i in range(4):
            a(f"s_waitcnt vmcnt({3-i})")
            if i == 3:
                a("s_mov_b64 exec, s[14:15]")
            for k in range(4):
                a(f"v_xor_b32 v{64+4*i+k}, s{TG+k}, v{48+4*i+k}")
            if i == 3:
                a("s_mov_b64 exec, -1")
            if i == 0:
                a("v_or3_b32 v40, v64, v65, v66\nv_or_b32 v40, v40, v67")
            else:
                a(f"v_or3_b32 v40, v40, v{64+4*i}, v{65+4*i}\nv_or3_b32 v40, v40, v{66+4*i}, v{67+4*i}")
            for k in range(4):
                n = 4 * i + k
                a(f"v_cmp_gt_u32 s[{MK+2*n}:{MK+2*n+1}], s16, v{64+n}")
                a(f"v_lshlrev_b32_sdwa v{80+n}, 2, v{64+n} dst_sel:DWORD dst_unused:UNUSED_PAD src0_sel:DWORD src1_sel:WORD_1")
        a(f"v_cmp_le_u32 vcc, 0x400000, v40\ns_cbranch_vccnz {self.retry(l, 4)}")
        self.stamp("Sin")
        for n in range(16):
            a(f"s_mov_b64 exec, s[{MK+2*n}:{MK+2*n+1}]\nds_add_rtn_u32 v{80+n}, v{80+n}, v42 offset:{LCNT}")
        a("s_mov_b64 exec, -1")
        for t in late[:(len(late) + 1) // 2]:
            arow(t, False)
        for i in range(4):
            a(f"v_and_b32 v{48+i}, {OVF}, v{67+4*i}")
        a(f"""
        v_max3_u32 v48, v48, v49, v50
        v_max_u32 v48, v48, v51
        v_cmp_eq_u32 vcc, {OVF}, v48
        s_mov_b64 s[16:17], vcc
        """)
        for n in range(16):
            if n % 4 == 0:
                a("s_waitcnt lgkmcnt(12)")
            a(f"s_mov_b64 exec, s[{MK+2*n}:{MK+2*n+1}]\nds_write_b16 v{80+n}, v{64+n}")
        a(f"s_mov_b64 exec, s[16:17]\nds_write_b32 v{vZ}, v{vOne} offset:{C_OVF}")
        self.signal(C_LIST, vZ, vOne)
        self.stamp("Slw")
        for t in late[(len(late) + 1) // 2:]:
            arow(t, False)
        a(f"""
        s_lshl_b32 s{sQ[0]}, s31, 1
        s_add_u32 s{sQ[1]}, s{sQ[0]}, 1
        s_add_u32 s{sQ[2]}, s{sQ[0]}, 8
        s_add_u32 s{sQ[3]}, s{sQ[0]}, 9
        s_add_u32 s{sQ[4]}, s31, 16
        v_lshrrev_b32 v40, 1, v{vN}
        v_and_b32 v41, 1, v{vN}
        v_lshl_add_u32 v40, v40, 3, v41
        v_add_u32 v40, s{sQ[0]}, v40
        v_mov_b32 v41, s{sQ[4]}
        v_cmp_gt_u32 vcc, 4, v{vN}
        v_min_u32 v47, 19, v2
        v_mul_u32_u24 v46, {LSTRIDE}, v47
        v_cndmask_b32 v40, v41, v40, vcc
        v_mul_u32_u24 v41, {LSTRIDE}, v40
        v_add_u32 v41, {LIST}, v41
        v_lshlrev_b32 v40, 2, v40
        v_add_u32 v46, {LIST + 2*LCAP}, v46
        v_lshlrev_b32 v47, 2, v47
        v_lshlrev_b32 v43, 3, v{vN}
        v_lshl_add_u32 v43, v{vG}, 1, v43
        """)
        self.wait_cnt(C_LIST, 4, vZ, 44)
        self.stamp("Sls")
        a(f"""
        ds_read_b32 v44, v40 offset:{LCNT}
        ds_read_b32 v47, v47 offset:{LCNT}
        ds_read_b32 v45, v{vZ} offset:{C_OVF}
        s_waitcnt lgkmcnt(2)
        v_sub_u32 v44, v44, v41
        v_add_u32 v44, 6, v44
        v_lshrrev_b32 v44, 3, v44
        v_max_u32 v44, 1, v44
        s_waitcnt lgkmcnt(0)
        v_cmp_gt_u32 vcc, v47, v46
        v_add_u32_dpp v48, v44, v44 row_shr:1 {DPPF} bound_ctrl:1
        v_readfirstlane_b32 s{sSlow}, v45
        s_or_b32 s64, vcc_lo, vcc_hi
        v_add_u32_dpp v48, v48, v48 row_shr:2 {DPPF} bound_ctrl:1
        s_or_b32 s{sSlow}, s{sSlow}, s64
        s_mov_b64 s[{sF}:{sF+1}], 0
        v_add_u32_dpp v48, v48, v48 row_shr:4 {DPPF} bound_ctrl:1
        v_sub_u32 v44, v48, v44
        v_lshlrev_b32 v44, 3, v44
        v_sub_u32 v44, v41, v44
        """)
        BT, BU = 160, 40
        for j in range(5):
            a(f"v_readlane_b32 s{sP[j]}, v48, {j}")
        for j in range(5):
            a(f"v_add_u32_dpp v{BT+j}, v44, v43 row_newbcast:{j} {DPPF}")
        a(f"""
        s_mov_b32 s{sG}, s{sP[4]}
        s_cmp_gt_u32 s{sG}, 64
        s_cselect_b32 s{sSlow}, 1, s{sSlow}
        s_max_u32 s{sG}, s{sG}, {16 + R if self.fp else R + 1}
        """)

        def build(chunks):
            for c in chunks:
                a(f"v_add_u32 v{BU+c}, {16*c}, v{vN}")
                for j in range(4):
                    a(f"v_cmp_le_u32 s[{64+2*j}:{65+2*j}], s{sP[j]}, v{BU+c}")
                for j in range(4):
                    a(f"v_cndmask_b32 v{BU+c}, v{BT if j == 0 else BU+c}, v{BT+1+j}, s[{64+2*j}:{65+2*j}]")
                a(f"ds_read_u16 v{BU+c}, v{BU+c} offset:{128*c}")
            for n, c in enumerate(chunks):
                a(f"""
                s_waitcnt lgkmcnt({len(chunks) - 1})
                v_and_b32 v{EA[c]}, 0x7ffe, v{BU+c}
                ds_read_u16 v{EW[c]}, v{EA[c]} offset:{DIS}
                {f"v_and_b32 v{EA[c]}, {self.hot}, v{EA[c]}" if self.hot else ""}
                v_lshlrev_b32 v{EA[c]}, 8, v{EA[c]}
                v_lshlrev_b32 v{BU+c}, 4, v{BU+c}
                """)

        def finish(chunks):
            for c in chunks:
                a(f"v_lshlrev_b32 v{EW[c]}, v{BU+c}, v{EW[c]}")

        def issue(u, halves=(0, 1)):
            a(f"v_add_u32_dpp v{vAd}, v{EA[u // 16]}, v{vLo} row_newbcast:{u % 16} {DPPF}")
            for h in halves:
                a(f"buffer_load_dwordx4 {r4(RG(u, h))}, v{vAd}, s[{X}:{X+3}], 0 offen offset:{256*h}")

        build([0, 1, 2, 3])
        self.stamp("Sent")
        for u in range(self.npre):
            issue(u)
        npro = 8 + R if self.fp else R
        nsc = 12 if self.fp else (self.npre + npro + 1) // 2
        pend = list(range(self.npre, nsc))
        pend2 = list(range(nsc, npro))
        for j in range(5):
            a(f"""
            s_sub_u32 s64, s{sP[j]}, 1
            s_bitset1_b64 s[{sF}:{sF+1}], s64
            s_and_b32 s65, s{sQ[j]}, 7
            s_lshl_b32 s65, s65, 5
            s_lshl_b32 s{sK[j]}, s{sQ[j]}, 10
            s_or_b32 s{sK[j]}, s{sK[j]}, s65
            """)
        TA = [144, 145, 146, 147, 148, 149]
        P = lambda t: 150 + t
        TF = lambda s, h: 160 + s * 8 + 4 * h
        a(f"""
        s_sub_u32 s64, s{sG}, {R + 1}
        s_lshl_b64 s[{sD}:{sD+1}], 1, s64
        s_or_b64 s[{sM}:{sM+1}], s[{sD}:{sD+1}], s[{sF}:{sF+1}]
        v_lshrrev_b32 v44, 1, v{vG}
        v_mul_u32_u24 v44, 528, v44
        v_xor_b32 v44, v44, v{vLo}
        v_and_b32 v45, 1, v{vG}
        v_lshl_or_b32 v{vFa}, v45, 3, v44
        v_xor_b32 v{TA[0]}, s{sK[0]}, v{vLo}
        v_xor_b32 v{TA[2]}, s{sK[1]}, v{vLo}
        v_xor_b32 v{TA[4]}, s{sK[4]}, v{vLo}
        v_xor_b32 v{TA[1]}, 528, v{TA[0]}
        v_xor_b32 v{TA[3]}, 528, v{TA[2]}
        v_xor_b32 v{TA[5]}, 528, v{TA[4]}
        s_mul_i32 s64, s1, 80
        s_add_u32 s64, s64, {DIS}
        v_and_b32 v45, 2, v{vG}
        v_add_u32 v{vEs}, s64, v45
        s_getpc_b64 s[{sAnc}:{sAnc+1}]
        L_anc:
        s_add_u32 s{sTab}, s{sAnc}, L_wtab-L_anc
        s_addc_u32 s{sTab+1}, s{sAnc+1}, 0
        s_mov_b32 s{sMode}, L_{"fp" if self.fp else "st"}1-L_anc
        s_mov_b32 s{sMode+1}, L_{"fp" if self.fp else "st"}1-L_{"fp" if self.fp else "st"}0
        s_mov_b32 s{sDr}, L_dr1-L_anc
        s_mov_b32 s{sDr+1}, L_dr1-L_dr0
        s_mov_b32 s{sJ}, 0
        v_mov_b32 v{vJ}, 0
        s_lshl_b32 s64, s31, 2
        v_mov_b32 v{vPa}, s64
        v_and_b32 v9, 8, v{vN}
        v_lshlrev_b32 v9, 1, v9
        s_mov_b32 s66, 0x22222222
        s_mov_b32 s67, 0x22222222
        s_mov_b32 s68, 0x44444444
        s_mov_b32 s69, 0x44444444
        """)
        for t in range(0, 10, 2):
            a(f"v_mov_b64 {r2(P(t))}, 0")
        for k in range(4):
            a(f"v_mov_b64 {r2(ACC + 2*k)}, 0")
        a("s_waitcnt lgkmcnt(0)")
        finish([0, 1, 2, 3])
        a(f"s_waitcnt vmcnt({2 * self.npre})")
        self.stamp("Srdy")
        a("s_barrier")
        self.stamp("Sbt")

        def tread(t):
            ad, off = (TA[t & 3], 8192 * (t >> 2)) if t < 8 else (TA[t - 4], 0)
            for h in range(2):
                a(f"ds_read_b128 {r4(TF(t & 1, h))}, v{ad} offset:{TT + off + 256*h}")

        def level1(t):
            a(f"v_add_f32_dpp v{P(t)}, v{P(t)}, v{P(t)} row_ror:8 row_mask:0xf bank_mask:0x3")
            a(f"v_add_f32_dpp v{P(t)}, v{P(t+1)}, v{P(t+1)} row_ror:8 row_mask:0xf bank_mask:0xc")

        def level2(t):
            a(f"v_add_f32_dpp v{P(t)}, v{P(t)}, v{P(t)} row_half_mirror row_mask:0xf bank_mask:0x5")
            if t < 8:
                a(f"v_add_f32_dpp v{P(t)}, v{P(t+2)}, v{P(t+2)} row_half_mirror row_mask:0xf bank_mask:0xa")

        tread(0)
        for t in range(10):
            if t < 9:
                tread(t + 1)
            a(f"s_waitcnt lgkmcnt({2 if t < 9 else 0})")
            for h in range(2):
                for k in range(0 if self.nodot else 4):
                    a(f"v_dot2c_f32_bf16 v{P(t)}, v{AT(t, h)+k}, v{TF(t & 1, h)+k}")
            if t >= 2 and t % 2 == 0:
                level1(t - 2)
            if t in (5, 9):
                level2(t - 5)
            for _ in range(-(-len(pend) // (10 - t))):
                issue(pend.pop(0))
        self.stamp("Sdot")
        vE = P(0)
        a(f"""
        v_add_f32_dpp v{P(0)}, v{P(0)}, v{P(0)} quad_perm:[1,0,3,2] {DPPF}
        s_nop 0
        """)
        level1(8)
        a(f"""
        v_add_f32_dpp v{P(4)}, v{P(4)}, v{P(4)} quad_perm:[1,0,3,2] {DPPF}
        v_add_f32_dpp v{P(0)}, v{P(0)}, v{P(0)} quad_perm:[2,3,0,1] {DPPF}
        """)
        level2(8)
        a(f"""
        v_add_f32_dpp v{P(4)}, v{P(4)}, v{P(4)} quad_perm:[2,3,0,1] {DPPF}
        s_nop 0
        v_add_f32_dpp v{P(8)}, v{P(8)}, v{P(8)} quad_perm:[1,0,3,2] {DPPF}
        v_cndmask_b32 v{vE}, v{vE}, v{P(4)}, s[66:67]
        s_nop 0
        v_add_f32_dpp v{P(8)}, v{P(8)}, v{P(8)} quad_perm:[2,3,0,1] {DPPF}
        v_cndmask_b32 v{vE}, v{vE}, v{P(8)}, s[68:69]
        v_mul_f32 v{vE}, 0x3db8aa3b, v{vE}
        v_exp_f32 v{vE}, v{vE}
        s_nop 0
        v_mov_b32 v44, v{vE}
        v_mov_b32 v45, v{vE}
        s_nop 1
        v_permlane32_swap_b32 v44, v45
        v_add_f32 v44, v44, v45
        v_mov_b32 v45, v44
        s_nop 1
        v_permlane16_swap_b32 v44, v45
        v_add_f32 v44, v44, v45
        v_add_f32 v44, 0x3089705f, v44
        v_rcp_f32 v44, v44
        s_nop 0
        v_mul_f32 v{vE}, v{vE}, v44
        v_cvt_pk_bf16_f32 v{vE}, v{vE}, 0
        v_lshlrev_b32 v8, v9, v{vE}
        s_nop 1
        """)
        vE = 8
        self.stamp("Ssm")
        elane = lambda t: 4 * [0, 2, 1, 3][t & 3] + (t >> 2)

        def wops(src, lane, p):
            return [f"v_and_b32_dpp v{A[p]+r}, v{src}, v{MSK+r} row_newbcast:{lane} {DPPF}" for r in range(2)]

        AV = lambda j: 40 if j % 2 == 0 else ACC

        def zero(c):
            for k in range(4):
                self.mov2(c + 2 * k, None)

        def aflush(j):
            c = AV(j)
            a(f"v_xor_b32 v{FS(j)}, s{sK[j]}, v{vFa}\ns_lshl_b32 s64, s{sQ[j]}, 2\nv_add_u32 v9, s64, v{vEs}\nv_mov_b32 v{FS(j)+1}, 0")
            for h in range(2):
                a(f"""
                v_cvt_pk_bf16_f32 v{30}, v{c+4*h}, v{c+4*h+1}
                v_cvt_pk_bf16_f32 v{31}, v{c+4*h+2}, v{c+4*h+3}
                ds_write_b64 v{FS(j)}, v[30:31] offset:{XT + 256*h}
                """)
            a(f"ds_read_u16_d16_hi v{FS(j)+1}, v9")
            if j < 4:
                zero(c)

        for o in wops(vE, elane(0), 0):
            a(o)
        zero(40)
        for t in range(10):
            nxt = wops(vE, elane(t + 1), (t + 1) & 1) if t < 9 else wops(EW[0], 0, 0)
            c0 = AV(t // 2)
            a(f"{SM} {r4(c0)}, {r2(A[t & 1])}, {r4(AT(t, 0))}, v{vIx}")
            a(nxt[0] + "\n" + nxt[1])
            a(f"{SM} {r4(c0 + 4)}, {r2(A[t & 1])}, {r4(AT(t, 1))}, v{vIx}")
            if pend2 and t % 2 == 0:
                issue(pend2.pop(0))
            elif t & 1 and t >= 3:
                aflush(t // 2 - 1)
                a("s_nop 0")
            else:
                a("s_nop 0")
        aflush(4)
        assert not pend and not pend2
        a("s_waitcnt lgkmcnt(0)\ns_barrier")
        self.stamp("Sbv")
        a(f"s_cmp_lg_u32 s{sSlow}, 0\ns_cbranch_scc1 L_slow")

        def rotate():
            for c in range(3):
                self.mov2(EA[c], EA[c + 1])
            for m in (sM, sF, sD):
                a(f"s_lshr_b64 s[{m}:{m+1}], s[{m}:{m+1}], 16")

        assert 4 <= R <= (8 if self.fp else 12)
        for mode in (("fp", "st", "dr") if self.fp else ("st", "dr")):
            if self.al:
                a(".p2align 3")
            for t in range(16):
                nxt = wops(EW[(t + 1) // 16], (t + 1) % 16, (t + 1) & 1)
                a(f"L_{mode}{t}:")
                if mode == "dr" and not self.dummy:
                    a(f"s_swappc_b64 s[{sRet}:{sRet+1}], s[{sTab}:{sTab+1}]")
                a(f"s_bitcmp1_b32 s{sM}, {t}")
                if mode != "dr" or self.dummy:
                    a(f"s_waitcnt vmcnt({2 * (7 + R - t) + t if mode == 'fp' else 2*R - 2})")
                if not self.diag & 1:
                    a(f"{SM} {r4(ACC)}, {r2(A[t & 1])}, {r4(RG(t, 0))}, v{vIx}")
                    a(nxt[0] + "\n" + nxt[1])
                    a(f"{SM} {r4(ACC+4)}, {r2(A[t & 1])}, {r4(RG(t, 1))}, v{vIx}")
                if mode == "st":
                    issue(t + R, () if self.diag & 2 else (0, 1))
                if mode == "fp":
                    issue(8 + R + t // 2, () if self.diag & 2 else (t & 1,))
                if mode == "dr" and self.dummy:
                    a(f"buffer_load_ubyte v15, off, s[{X}:{X+3}], 0\n" * 2)
                if self.al:
                    a("s_nop 0")
                a("s_cbranch_scc1 L_event")
            a(f"L_{mode}16:")
            rotate()
            if mode == "fp":
                a(f"s_mov_b32 s{sMode}, L_st1-L_anc\ns_mov_b32 s{sMode+1}, L_st1-L_st0")
            else:
                a(f"s_branch L_{mode}0")
        a(".p2align 8\nL_wtab:")
        for k in range(R):
            a(f"s_add_u32 s{sTab}, s{sTab}, 12\ns_waitcnt vmcnt({2*(R-1-k)})\ns_setpc_b64 s[{sRet}:{sRet+1}]")
        a(f"""
        L_event:
        s_ff1_i32_b32 s{sT}, s{sM}
        s_bitset0_b32 s{sM}, s{sT}
        s_bitcmp1_b32 s{sD}, s{sT}
        s_cselect_b64 s[{sMode}:{sMode+1}], s[{sDr}:{sDr+1}], s[{sMode}:{sMode+1}]
        s_mul_i32 s64, s{sT}, s{sMode+1}
        s_add_u32 s64, s64, s{sMode}
        s_add_u32 s{sRet}, s{sAnc}, s64
        s_addc_u32 s{sRet+1}, s{sAnc+1}, 0
        s_bitcmp1_b32 s{sF}, s{sT}
        s_cbranch_scc0 L_evret
        L_flush:
        s_cmp_eq_u32 s{sJ}, 4
        v_add_u32 v{vJ}, 1, v{vJ}
        """)
        for h in range(2):
            for k in range(4):
                a(f"v_mul_f32 v{40+4*h+k}, v{FS(0)+1}, v{ACC+4*h+k}")
            a(f"""
            v_cvt_pk_bf16_f32 v{40+4*h}, v{40+4*h}, v{41+4*h}
            v_cvt_pk_bf16_f32 v{41+4*h}, v{42+4*h}, v{43+4*h}
            ds_write_b64 v{FS(0)}, v[{40+4*h}:{41+4*h}] offset:{AG + 256*h}
            """)
        a(f"ds_write_b32 v{vPa}, v{vJ} offset:{C_AG}\ns_cbranch_scc1 L_sdone")
        if self.prof and "Sfl" in self.st:
            a("s_waitcnt lgkmcnt(0)\ns_mov_b64 s[86:87], s[88:89]\ns_mov_b64 s[88:89], s[90:91]\ns_mov_b64 s[90:91], s[92:93]\ns_memrealtime s[92:93]")
        zero(ACC)
        a(f"s_add_u32 s{sJ}, s{sJ}, 1")
        for j in range(4):
            self.mov2(FS(j), FS(j + 1))
        a(f"L_evret:\ns_setpc_b64 s[{sRet}:{sRet+1}]")
        a(f"""
        L_slow:
        v_mbcnt_lo_u32_b32 v200, -1, 0
        v_mbcnt_hi_u32_b32 v200, -1, v200
        L_slow_pair:
        v_lshlrev_b32 v201, 2, v200
        s_mul_i32 s70, s1, 40
        s_lshl1_add_u32 s70, s{sQ[0]}, s70
        s_mov_b32 s71, 0
        s_mov_b32 s{sQ[0]}, s{sQ[1]}
        s_mov_b32 s{sQ[1]}, s{sQ[2]}
        s_mov_b32 s{sQ[2]}, s{sQ[3]}
        s_mov_b32 s{sQ[3]}, s{sQ[4]}
        L_slow_chunk:
        global_load_dword v202, v201, s[8:9]
        global_load_dword v203, v201, s[6:7]
        v_add_u32 v201, 0x100, v201
        s_waitcnt vmcnt(0)
        v_subrev_u32 v202, s70, v202
        v_cmp_gt_u32 vcc, 2, v202
        v_lshlrev_b32 v204, 1, v203
        ds_read_u16 v204, v204 offset:{DIS}
        s_mov_b64 s[72:73], vcc
        v_lshlrev_b32 v202, 4, v202
        v_lshlrev_b32 v203, 9, v203
        s_waitcnt lgkmcnt(0)
        v_lshlrev_b32 v204, v202, v204
        L_slow_edge:
        s_cmp_eq_u64 s[72:73], 0
        s_cbranch_scc1 L_slow_next
        s_ff1_i32_b64 s74, s[72:73]
        s_bitset0_b64 s[72:73], s74
        v_readlane_b32 s64, v203, s74
        v_readlane_b32 s65, v204, s74
        v_mov_b32 v{vW}, 0
        v_mov_b32 v{vAd}, {OOB}
        s_mov_b64 exec, 0xffff
        v_mov_b32 v{vW}, s65
        v_add_u32 v{vAd}, s64, v{vLo}
        s_mov_b64 exec, -1
        buffer_load_dwordx4 v[208:211], v{vAd}, s[{X}:{X+3}], 0 offen
        buffer_load_dwordx4 v[212:215], v{vAd}, s[{X}:{X+3}], 0 offen offset:256
        """)
        for r in range(2):
            a(f"v_and_b32 v{A[0]+r}, v{vW}, v{MSK+r}")
        a(f"""
        s_nop 0
        s_waitcnt vmcnt(0)
        {SM} {r4(ACC)}, {r2(A[0])}, v[208:211], v{vIx}
        {SM} {r4(ACC+4)}, {r2(A[0])}, v[212:215], v{vIx}
        s_branch L_slow_edge
        L_slow_next:
        s_add_u32 s71, s71, 1
        s_cmp_lt_u32 s71, 2500
        s_cbranch_scc1 L_slow_chunk
        s_nop 3
        s_call_b64 s[{sRet}:{sRet+1}], L_flush
        s_branch L_slow_pair
        L_sdone:
        """)
        self.stamp("Send")
        self.dump()
        a("s_endpgm")
        self.flush_cold()
        self.mrole = mrole

    def kernel(self, label):
        self.entry()
        self.sparse_waves()
        self.a.lines += self.mrole.lines
        self.gemm_waves()
        self.a("L_end:\ns_endpgm")
        return dict(label=label, body=self.a.text(), grid=NWG, block=512, lds=LDS_BYTES, vgpr=256)

    def build(self):
        return wrap([self.kernel(NAME + "_kernel")])


if __name__ == "__main__":
    opts = {k: (v if k == "st" else int(v)) for k, v in (kv.split("=") for kv in sys.argv[2:])}
    open(sys.argv[1], "w").write(Gen(**opts).build())
```

```python
import sys
from asmlib import *
import gen

def starter(grid, block, lds, vgpr):
    a = Asm()
    a("""
    s_memrealtime s[4:5]
    s_load_dwordx2 s[28:29], s[0:1], 96
    s_cmp_ge_u32 s2, 8
    s_cbranch_scc1 L_st_end
    s_lshl_b32 s3, s2, 2
    s_add_u32 s3, s3, 0x9000000
    s_waitcnt lgkmcnt(0)
    v_mov_b32 v1, s3
    v_mov_b32 v2, s4
    v_cmp_eq_u32 vcc, 0, v0
    s_and_saveexec_b64 s[6:7], vcc
    s_cbranch_execz L_st_end
    global_store_dword v1, v2, s[28:29]
    L_st_end:
    s_endpgm
    """)
    return dict(label="starter_kernel", body=a.text(), grid=grid, block=block, lds=lds, vgpr=vgpr)

def waiter(n):
    a = Asm()
    a("""
    s_cmp_ge_u32 s2, 1
    s_cbranch_scc1 L_w_end
    s_load_dwordx2 s[28:29], s[0:1], 96
    s_waitcnt lgkmcnt(0)
    s_add_u32 s28, s28, 0x9000000
    s_addc_u32 s29, s29, 0
    s_load_dwordx8 s[8:15], s[28:29], 0
    s_waitcnt lgkmcnt(0)
    """)
    for i in range(1, n):
        a(f"s_sub_u32 s16, s{8+i}, s8\ns_min_i32 s16, s16, 0\ns_add_u32 s8, s8, s16")
    a("""
    L_w_spin:
    s_memrealtime s[18:19]
    s_waitcnt lgkmcnt(0)
    s_sub_u32 s18, s18, s8
    s_cmp_lt_u32 s18, 6000
    s_cbranch_scc1 L_w_spin
    L_w_end:
    s_endpgm
    """)
    return dict(label="waiter_kernel", body=a.text(), grid=1, block=64, lds=0, vgpr=8)

for k in sys.argv[1:]:
    g, b, l, v = [int(x) for x in k.split("_")]
    open(f"p3_{k}.s", "w").write(wrap([starter(g, b, l, v), gen.Gen().kernel("main_kernel"), waiter(min(g, 8))]))
```

```python
import sys
from asmlib import *

NMAIN, NWG = 250, 253
WS_FLAG, WS_M, WS_INBOX, WS_STAMP = 0x1000, 0x10000, 0x100000, 0x8000000
NREP = 16
C_BIN, C_XT, C_HV, C_H, C_LIST, C_OVF, C_AG, C_DR = 0, 4, 8, 12, 16, 20, 32, 48
LCNT, BCNT = 128, 512
XT, TT, AG, DIS, WST = 1024, 21504, 41984, 62464, 82944
LIST, LSTRIDE, LCAP = 148480, 264, 124
LDS_BYTES = 161792
BST = AG
EMPTY, OVF = 30 << 16, 31 << 16
PAD2 = 0x4E204E20
OOB = 0x80000000
DPPF = "row_mask:0xf bank_mask:0xf"
r4 = lambda r: f"v[{r}:{r+3}]"
MF = "v_mfma_f32_16x16x32_bf16"
SM = "v_smfmac_f32_16x16x32_bf16"
SX = "v_smfmac_f32_16x16x64_bf16"
r8 = lambda r: f"v[{r}:{r+7}]"
r2 = lambda r: f"v[{r}:{r+1}]"


class Gen:
    def __init__(self, prof=0, spin=1 << 26, npre=6, gthr=5, wlfirst=0, ost=5, pf=1, gprio=2, sprio=1, fpos=1, noepoch=0, glow=1, st=None, gfree=7, sthr=4, mring=10, ipos=7, mearly=1, defer=1, xmap=1, stag=7, lag=8, nogemm=0, gsleep=1, gearly=1, m2=0, nodot=0, hot=0, gwait=1, diag=0, fp=1, wlin=10, dummy=1, gstart=3, gthr0=10, touch=1, tlb=1, simd=0, m32=0, al=0, stw=6, nin=99, fuse=0, gfl=0, wfl=0, lsleep=0, lpos=0, sfree=2, efirst=1):
        self.a = Asm()
        self.prof, self.spin, self.npre, self.gthr, self.wlfirst = prof, spin, npre, gthr, wlfirst
        self.ost, self.pf, self.gprio, self.sprio, self.fpos = ost, pf, gprio, sprio, fpos
        self.noepoch, self.glow, self.gfree, self.sthr, self.mring = noepoch, glow, gfree, sthr, mring
        self.st = (st or 'Gb0,Gf,Gm,Gbt,Gbv,Gwl,Sb0,Srole,Sin,Sent,Sbt,Sbv').split(',') + ['Gend', 'Send']
        self.ipos, self.mearly, self.defer, self.xmap = ipos, mearly, defer, xmap
        self.stag, self.lag, self.nogemm = stag, lag, nogemm
        self.gsleep, self.gearly, self.m2 = gsleep, gearly, m2
        self.nodot, self.hot, self.gwait = nodot, hot, gwait
        self.diag = diag
        self.fp, self.wlin, self.dummy = fp, wlin, dummy
        self.gstart, self.gthr0 = gstart, gthr0
        self.touch = touch
        self.tlb = tlb
        self.simd = simd
        self.m32, self.al = m32, al
        self.stw = stw
        self.nin = nin
        self.fuse = fuse
        self.gfl, self.wfl, self.lsleep = ['', ' sc1', ' sc0', ' sc0 sc1'][gfl], ['', ' sc1', ' sc0', ' sc0 sc1'][wfl], lsleep
        self.lpos = lpos
        self.sfree, self.efirst = sfree, efirst
        self.uid = 0

    def lab(self, p):
        self.uid += 1
        return f"L_{p}_{self.uid}"

    def stamp(self, name):
        if self.prof:
            sel = [n for n in self.st if n[0] == name[0]]
            if name in sel:
                i = 7 if name[1:] == "end" else 1 + sel.index(name)
                self.a(f"s_memrealtime s[{80+2*i}:{81+2*i}]")

    def srd(self, r, p, size, add=0):
        a = self.a
        if add:
            a(f"s_add_u32 s{r}, s{p}, {add}\ns_addc_u32 s{r+1}, s{p+1}, 0\ns_and_b32 s{r+1}, s{r+1}, 0xffff")
        else:
            a(f"s_mov_b32 s{r}, s{p}\ns_and_b32 s{r+1}, s{p+1}, 0xffff")
        a(f"s_mov_b32 s{r+2}, {size}\ns_mov_b32 s{r+3}, 0x20000")

    def signal(self, off, vz, vone):
        self.a(f"""
        s_waitcnt lgkmcnt(0)
        s_mov_b64 exec, 1
        ds_add_u32 v{vz}, v{vone} offset:{off}
        s_mov_b64 exec, -1
        """)

    def retry(self, l, sleep):
        r = self.lab("retry")
        self.cold.append(f"""
        {r}:
        s_sub_u32 s100, s100, 1
        s_cbranch_scc1 L_end
        {f"s_sleep {sleep}" if sleep else ""}
        s_branch {l}
        """)
        return r

    def wait_cnt(self, off, target, vz, vt, geth=False, sleep=1):
        l = self.lab("spin")
        if geth:
            rd, v = f"ds_read_b128 {r4(vt)}, v{vz}", vt + off // 4
        else:
            rd, v = f"ds_read_b32 v{vt}, v{vz} offset:{off}", vt
        self.a(f"""
        {l}:
        {rd}
        s_waitcnt lgkmcnt(0)
        v_readfirstlane_b32 s101, v{v}
        """)
        if geth:
            self.a(f"v_readfirstlane_b32 s30, v{vt + C_H // 4}")
        self.a(f"s_cmp_ge_u32 s101, {target}\ns_cbranch_scc0 {self.retry(l, sleep)}")

    def mov2(self, d, src):
        if self.m32:
            for k in range(2):
                self.a(f"v_mov_b32 v{d+k}, {0 if src is None else f'v{src+k}'}")
        else:
            self.a(f"v_mov_b64 {r2(d)}, {0 if src is None else r2(src)}")

    def flush_cold(self):
        for c in self.cold:
            self.a(c)
        self.cold = []

    def dump(self):
        if not self.prof:
            return
        a = self.a
        a("s_memtime s[98:99]\ns_waitcnt lgkmcnt(0)\nv_mov_b32 v10, 0")
        for i in range(20):
            a(f"v_writelane_b32 v10, s{80+i}, {i}")
        a(f"""
        s_getreg_b32 s64, hwreg(HW_REG_XCC_ID)
        v_writelane_b32 v10, s64, 20
        s_lshl_b32 s64, s2, 3
        s_add_u32 s64, s64, s3
        s_lshl_b32 s64, s64, 7
        s_add_u32 s64, s64, {WS_STAMP}
        v_mbcnt_lo_u32_b32 v11, -1, 0
        v_mbcnt_hi_u32_b32 v11, -1, v11
        v_cmp_gt_u32 vcc, 32, v11
        v_lshl_add_u32 v11, v11, 2, s64
        s_and_saveexec_b64 s[66:67], vcc
        global_store_dword v11, v10, s[28:29]
        """)

    def entry(self):
        a = self.a
        self.cold = []
        a("L_begin:")
        if self.prof:
            a("s_memrealtime s[80:81]\ns_memtime s[96:97]")
        a(f"""
        s_cmp_ge_u32 s2, {NWG}
        s_cbranch_scc1 L_end
        s_load_dwordx16 s[4:19], s[0:1], 0
        s_load_dwordx8 s[20:27], s[0:1], 64
        s_load_dwordx2 s[28:29], s[0:1], 96
        """)
        if self.pf:
            a("""
            s_cmp_ge_u32 s2, 16
            s_cbranch_scc1 L_nopf
            s_getpc_b64 s[32:33]
            L_pc:
            v_lshlrev_b32 v1, 6, v0
            v_min_u32 v1, L_end-L_pc, v1
            global_load_dword v255, v1, s[32:33]
            L_nopf:
            """)
        a(f"""
        v_lshrrev_b32 v1, 6, v0
        v_lshlrev_b32 v8, 4, v0
        v_mov_b32 v12, {EMPTY}
        v_readfirstlane_b32 s3, v1
        v_mov_b32 v13, {EMPTY}
        v_mov_b32 v14, {EMPTY}
        v_mov_b32 v15, {EMPTY}
        ds_write_b128 v8, v[12:15] offset:{BST}
        ds_write_b128 v8, v[12:15] offset:{BST + 8192}
        v_subrev_u32 v9, {LCNT // 4}, v0
        v_cmp_gt_u32 vcc, 20, v9
        v_mul_u32_u24 v9, {LSTRIDE}, v9
        v_add_u32 v9, {LIST}, v9
        v_lshlrev_b32 v10, 2, v0
        v_cndmask_b32 v9, 0, v9, vcc
        v_min_u32 v11, 1020, v10
        ds_write_b32 v11, v9
        v_mov_b32 v16, {PAD2}
        v_mov_b32 v17, {PAD2}
        v_mov_b32 v18, {PAD2}
        v_mov_b32 v19, {PAD2}
        v_add_u32 v9, {LIST}, v8
        ds_write_b128 v9, v[16:19]
        v_and_b32 v2, 63, v0
        v_and_b32 v3, 15, v0
        v_bfe_u32 v4, v0, 4, 2
        v_mov_b32 v5, 0
        v_mov_b32 v6, 1
        s_mov_b32 s100, {self.spin}
        """)
        if self.prof:
            for i in range(1, 8):
                a(f"s_mov_b64 s[{80+2*i}:{81+2*i}], 0")
        if self.xmap:
            a("""
            s_and_b32 s64, s2, 7
            s_lshl_b32 s64, s64, 1
            s_bfe_u32 s65, s2, 0x10003
            s_or_b32 s64, s64, s65
            s_and_b32 s65, s2, 0xf0
            s_or_b32 s64, s64, s65
            s_cmp_lt_u32 s2, 240
            s_cselect_b32 s1, s64, s2
            """)
        else:
            a("s_mov_b32 s1, s2")
        if self.simd:
            lo = self.simd - 1
            a(f"""
            s_lshr_b32 s64, s3, {lo}
            s_lshr_b32 s65, s3, 2
            s_xor_b32 s64, s64, s65
            s_and_b32 s64, s64, 1
            s_mul_i32 s64, s64, {4 | (1 << lo)}
            s_xor_b32 s3, s3, s64
            s_lshl_b32 s64, s3, 6
            v_add_u32 v0, s64, v2
            v_lshlrev_b32 v8, 4, v0
            v_lshlrev_b32 v10, 2, v0
            """)
        a("""
        s_and_b32 s31, s3, 3
        s_cmp_lt_u32 s3, 4
        s_cbranch_scc1 L_gemm
        """)

    def gemm_waves(self):
        a = self.a
        W = lambda jb, ks: 128 + (ks * 4 + jb) * 4
        ACC = lambda b, jb: 80 + (b * 4 + jb) * 4
        MR = lambda n: 40 + (n % 10) * 4
        BF = lambda s, b: 16 + (s * 3 + b) * 4
        vN, vG, vZ, vOne = 3, 4, 5, 6
        vB = [7, 8, 9, 10]
        vTR = [11, 12]
        vD, vM, vT = 13, 14, 15
        X, WV, WL, WS, OUT = 32, 36, 40, 44, 48
        thr = self.gthr

        a("L_gemm:")
        a(f"""
        v_lshrrev_b32 v0, 5, v2
        s_lshl_b32 s64, s31, 1
        v_add_u32 v0, s64, v0
        v_and_b32 v1, 31, v2
        v_xor_b32 v1, v1, v0
        v_lshlrev_b32 v1, 4, v1
        v_lshl_add_u32 v0, v0, 9, v1
        v_xor_b32 v1, 0x80, v0
        v_lshrrev_b32 v{vD}, 3, v2
        v_lshrrev_b32 v{vT}, 2, v2
        v_and_b32 v{vT}, 4, v{vT}
        v_and_b32 v{vM}, 7, v2
        v_xor_b32 v{vT}, v{vT}, v{vM}
        v_lshlrev_b32 v{vT}, 4, v{vT}
        v_lshl_add_u32 v{vD}, v{vD}, 9, v{vT}
        s_lshr_b32 s67, s2, 3
        s_and_b32 s67, s67, {self.stag}
        s_lshl_b32 s64, s31, 7
        s_lshl_b32 s65, s67, 14
        s_or_b32 s64, s64, s65
        v_add_u32 v{vD}, s64, v{vD}
        s_mul_i32 s65, s1, 20480
        s_lshl_b32 s66, s31, 10
        s_lshl_b32 s70, s31, 14
        s_add_u32 s70, s70, {WST}
        s_mov_b32 s71, 3072
        s_mov_b32 s72, 6144
        s_mov_b32 s73, 9216
        s_waitcnt lgkmcnt(0)
        """)
        self.srd(X, 4, 5120000)
        self.srd(WV, 22, 131072)
        if self.touch:
            lt = self.lab("touched")
            a(f"""
            s_bitcmp1_b32 s2, 3
            s_cbranch_scc0 {lt}
            s_lshr_b32 s64, s2, 4
            s_lshl_b32 s64, s64, 3
            s_and_b32 s68, s2, 7
            s_or_b32 s64, s64, s68
            s_lshl_b32 s64, s64, 10
            v_lshl_add_u32 v16, v2, 4, s64
            s_cmp_eq_u32 s31, 1
            s_cselect_b64 s[68:69], s[22:23], s[16:17]
            s_cmp_eq_u32 s31, 2
            s_cselect_b64 s[68:69], s[18:19], s[68:69]
            s_cmp_eq_u32 s31, 3
            s_cselect_b64 s[68:69], s[20:21], s[68:69]
            global_load_dwordx4 v[20:23], v16, s[68:69]
            {lt}:
            """)
        a(f"s_cmp_ge_u32 s2, {NMAIN}\ns_cbranch_scc1 L_end")
        if self.tlb:
            a(f"""
            s_mul_i32 s64, s1, 20480
            s_mov_b32 s76, 0
            s_cmp_eq_u32 s31, 0
            s_cselect_b64 s[68:69], s[24:25], s[16:17]
            s_cselect_b32 s64, s64, 0
            s_cmp_eq_u32 s31, 2
            s_cselect_b64 s[68:69], s[28:29], s[68:69]
            s_cselect_b32 s64, 0x800, s64
            s_cselect_b32 s76, 0x2f8000, s76
            s_cmp_eq_u32 s31, 3
            s_cselect_b64 s[68:69], s[4:5], s[68:69]
            s_cselect_b32 s76, 0x200000, s76
            s_cselect_b32 s77, 2, 1
            v_min_u32 v17, s77, v2
            v_mul_lo_u32 v17, v17, s76
            v_add_u32 v17, s64, v17
            global_load_dword v24, v17, s[68:69]
            """)
        b0 = f"s_barrier\ns_setprio {self.gprio}"
        if self.gearly == 0:
            a(b0)
        self.stamp("Gb0")

        def throttle(th):
            return f"s_waitcnt vmcnt({th - 1})\n" if th < 16 else ""

        for i in range(5):
            a(f"s_add_u32 m0, s66, {XT + i*4096}")
            a("s_add_u32 s65, s65, 4096" if i else "s_nop 0")
            a(f"buffer_load_dwordx4 v{i & 1}, s[{X}:{X+3}], s65 offen lds")

        def dma_list(srd, ks, th=False, m0=None):
            so = ["0", "s71", "s72", "s73"]
            slot = ks & 3
            ops = []
            for i in range(4):
                pre = (f"s_mov_b32 m0, {m0}\n" if m0 else f"s_add_u32 m0, s70, {slot*4096}\n") if i == 0 else ""
                t = throttle(th) if th else ""
                if i == 0 and not t:
                    t = "s_nop 0\n"
                post = f"\nv_xor_b32 v{vD}, {(ks ^ ((ks + 1) & 7)) << 14}, v{vD}" if i == 3 else ""
                ops.append(pre + t + f"buffer_load_dwordx4 v{vD}, s[{srd}:{srd+3}], {so[i]} offen offset:{i*1024}{self.wfl} lds" + post)
            return ops

        def dma(srd, slot, th=False, m0=None):
            for o in dma_list(srd, slot, th, m0):
                a(o)

        WL_ = lambda jb, ks: 48 + (ks * 4 + jb) * 4 if ks < 2 else W(jb, ks - 2)

        def tr_list(ks, slot, reg=W):
            return [f"ds_read_b64_tr_b16 {r2(reg(jb, ks) + 2*hh)}, v{vTR[jb >> 1]} offset:{slot*4096 + hh*512 + (jb & 1)*8}"
                    for jb in range(4) for hh in range(2)]

        def tr(ks, slot, reg=W):
            a("\n".join(tr_list(ks, slot, reg)))

        if self.gearly == 1:
            a(b0)
        dma(WV, 0)
        if self.gearly == 2:
            a(b0)
        self.srd(WL, 16, 131072)
        self.srd(WS, 28, 0x100000)
        self.srd(OUT, 24, 5120000)
        a(f"""
        v_xor_b32 v{vT}, v{vG}, v{vN}
        v_lshlrev_b32 v{vT}, 4, v{vT}
        v_lshl_add_u32 v{vB[0]}, v{vN}, 9, v{vT}
        s_lshl_b32 s64, s67, 6
        v_xor_b32 v{vB[0]}, s64, v{vB[0]}
        v_xor_b32 v{vB[1]}, 64, v{vB[0]}
        v_xor_b32 v{vB[2]}, 0x80, v{vB[0]}
        v_xor_b32 v{vB[3]}, 0xc0, v{vB[0]}
        v_lshrrev_b32 v{vT}, 2, v{vN}
        v_lshl_add_u32 v{vT}, v{vG}, 3, v{vT}
        v_lshlrev_b32 v{vT}, 7, v{vT}
        v_lshrrev_b32 v{vM}, 1, v{vN}
        v_and_b32 v{vM}, 4, v{vM}
        v_and_b32 v0, 3, v{vN}
        v_xor_b32 v{vM}, v{vM}, v0
        v_lshl_add_u32 v{vT}, v{vM}, 4, v{vT}
        v_add_u32 v{vTR[0]}, s70, v{vT}
        v_xor_b32 v{vTR[1]}, 64, v{vTR[0]}
        v_and_b32 v0, 31, v2
        v_lshlrev_b32 v0, 2, v0
        s_and_b32 s64, s2, {NREP-1}
        s_lshl_b32 s64, s64, 9
        s_lshl_b32 s65, s31, 7
        s_add_u32 s64, s64, s65
        s_add_u32 s74, s64, {WS_FLAG}
        v_lshlrev_b32 v{vM}, 4, v2
        s_lshl_b32 s75, s31, 15
        s_lshl_b32 s64, s67, 12
        s_or_b32 s75, s75, s64
        s_add_u32 s75, s75, {WS_M}
        """)
        flagload = f"buffer_load_dword v1, v0, s[{WS}:{WS+3}], s74 offen sc1"

        def mload(n):
            s = f"buffer_load_dwordx4 {r4(MR(n))}, v{vM}, s[{WS}:{WS+3}], s75 offen offset:{(n & 3)*1024} sc1"
            if n & 3 == 3:
                s += f"\ns_xor_b32 s75, s75, {((n >> 2) ^ (((n >> 2) + 1) & 7)) << 12}"
            return s

        ngrp = 12 if self.wlfirst else 8
        fafter = ngrp - 1 - self.fpos
        order = ["X"] * 5 + ["D0"] * 4
        def issue_group(g):
            dma(WV if g < 8 else WL, g & 7, self.gthr0 if g < self.gstart else (thr if g < self.gfree else 0))
            order.extend([f"D{g}"] * 4)
            if g == fafter:
                a(flagload)
                order.append("F")
        def wait_for(tag):
            last = max(i for i, o in enumerate(order) if o == tag)
            a(f"s_waitcnt vmcnt({len(order) - 1 - last})")
        def mstart():
            wait_for("F")
            self.stamp("Gf")
            l = self.lab("mchk")
            self.wait_cnt(C_HV, 1, vZ, 16, geth=True)
            rl = self.lab("mre")
            self.cold.append(f"""
            {rl}:
            s_sub_u32 s100, s100, 1
            s_cbranch_scc1 L_end
            s_sleep 2
            {flagload}
            s_waitcnt vmcnt(0)
            s_branch {l}
            """)
            a(f"{l}:\nv_cmp_ne_u32 vcc, s30, v1\ns_cbranch_vccnz {rl}")
            self.stamp("Gm")
            for n in range(self.mring):
                a(mload(n))
            order.extend(["M"] * self.mring)
        for g in range(1, 4):
            issue_group(g)
        started = False
        for ks in range(8):
            wait_for(f"D{ks}")
            self.stamp(f"Gd{ks}")
            if ks == 0:
                self.signal(C_XT, vZ, vOne)
            tr(ks, ks & 3)
            if ks + 4 < ngrp:
                a("s_waitcnt lgkmcnt(0)")
                issue_group(ks + 4)
            if not started and ks + 4 >= ngrp - 1 and ks >= min(fafter, 7):
                mstart()
                started = True
        assert started

        def bread(tile, ks, b, r, last=2):
            if self.stag & 4:
                a(f"ds_read_b128 {r4(r)}, v{vB[ks & 3]} offset:{tile + b*8192}")
                if b == last:
                    a(f"v_xor_b32 v{vB[ks & 3]}, 0x100, v{vB[ks & 3]}")
            else:
                a(f"ds_read_b128 {r4(r)}, v{vB[ks & 3]} offset:{tile + b*8192 + (ks >> 2)*256}")

        self.wait_cnt(C_XT, 4, vZ, vT)
        follow = [mload(n) for n in range(self.mring, 32)]
        if not self.wlfirst:
            follow += sum((dma_list(WL, s) for s in range(4)), [])
        for b in range(3):
            bread(XT, 0, b, BF(0, b))
        inflight = self.mring
        for ks in range(8):
            if ks < 7:
                for b in range(3):
                    bread(XT, ks + 1, b, BF((ks + 1) & 1, b))
            a(f"s_waitcnt lgkmcnt({3 if ks < 7 else 0})")
            self.stamp(f"Gt{ks}")
            for jb in range(4):
                n = 4 * ks + jb
                a(f"s_waitcnt vmcnt({inflight - 1})")
                for b in range(3):
                    c = r4(ACC(b, jb)) if ks else "0"
                    a(f"{MF} {r4(ACC(b, jb))}, {r4(MR(n))}, {r4(BF(ks & 1, b))}, {c}")
                if follow and n < 32 - self.mring + self.wlin:
                    a(follow.pop(0))
                else:
                    inflight -= 1
        self.stamp("Gt8")
        a(f"""
        s_lshl_b32 s64, s31, 3
        v_add_u32 v0, s64, v{vG}
        v_xor_b32 v0, v0, v{vN}
        v_lshlrev_b32 v0, 4, v0
        v_lshl_add_u32 v0, v{vN}, 9, v0
        v_xor_b32 v1, 64, v0
        s_mov_b32 s76, 0x00ff00ff
        s_mov_b32 s77, 0x00ff00ff
        """)

        def pack(b, h, r):
            for k in range(2):
                s = ACC(b, 2 * h + k)
                a(f"v_cvt_pk_bf16_f32 v{r+2*k}, v{s}, v{s+1}\nv_cvt_pk_bf16_f32 v{r+2*k+1}, v{s+2}, v{s+3}")

        for b in range(3):
            if b == 2:
                a("s_mov_b64 exec, s[76:77]")
            for h in range(2):
                r = 16 + (b * 2 + h) * 4
                pack(b, h, r)
                a(f"ds_write_b128 v{h}, {r4(r)} offset:{TT + b*8192}")
        a("s_mov_b64 exec, -1\ns_waitcnt lgkmcnt(0)")
        self.stamp("Gtf")
        a("s_barrier")
        self.stamp("Gbt")
        for o in follow:
            a(o)
        a(f"""
        v_lshlrev_b32 v0, 4, v{vG}
        v_and_b32 v1, 7, v{vN}
        v_lshl_add_u32 v0, v1, 9, v0
        v_and_b32 v1, 8, v{vN}
        v_lshl_add_u32 v0, v1, 3, v0
        s_mul_i32 s74, s1, 20480
        s_lshl_b32 s64, s31, 7
        s_add_u32 s74, s74, s64
        s_waitcnt vmcnt(8)
        """)
        tr(0, 0, WL_)
        tr(1, 1, WL_)
        a("s_waitcnt lgkmcnt(8)")
        dma(WL, 4)
        a("s_waitcnt lgkmcnt(0)")
        dma(WL, 5)
        a(f"""
        s_lshl_b32 s64, s31, 12
        s_add_u32 s78, s64, {TT}
        s_add_u32 s79, s64, {LIST}
        s_cmp_eq_u32 s31, 3
        s_cselect_b32 s79, {TT + 16384}, s79
        s_sub_u32 s76, s78, s70
        s_sub_u32 s77, s79, s78
        """)
        vB8 = vB + [40, 41, 42, 43]
        for k in range(4):
            a(f"v_xor_b32 v{40+k}, 0x100, v{vB[k]}")
        a("s_barrier")
        self.stamp("Gbv")
        dma(WL, 6, m0="s78")
        dma(WL, 7, m0="s79")
        lo = "s_setprio 0" if self.glow else ""
        hi = f"s_setprio {self.gprio}" if self.glow else ""
        a(lo)

        def wait_prog(target, sleep, off=C_AG):
            l = self.lab("prog")
            a(f"""
            {l}:
            ds_read_b128 v[16:19], v{vZ} offset:{off}
            s_waitcnt lgkmcnt(0)
            v_min3_u32 v16, v16, v17, v18
            v_min_u32 v16, v16, v19
            v_cmp_gt_u32 vcc, {target}, v16
            s_cbranch_vccnz {self.retry(l, sleep)}
            """)

        if self.gwait:
            wait_prog(self.gwait, 1)
        self.stamp("Gv0")
        rd = lambda tile, ks, b, r: f"ds_read_b128 {r4(r)}, v{vB8[ks]} offset:{tile + b*8192}"

        def weave(mf, fill):
            fill = list(fill)
            for m in mf:
                a(m)
                if fill:
                    a(fill.pop(0))
            for f in fill:
                a(f)

        for b in range(3):
            a(rd(XT, 0, b, BF(0, b)))
        a("s_waitcnt vmcnt(8)")
        young = 0
        for ks in range(8):
            a(f"s_waitcnt lgkmcnt({young})")
            mf = [f"{MF} {r4(ACC(b, jb))}, {r4(W(jb, ks))}, {r4(BF(ks & 1, b))}, {r4(ACC(b, jb)) if ks else 0}"
                  for jb in range(4) for b in range(3) if not (self.nogemm and b)]
            fill = [rd(XT, ks + 1, b, BF((ks + 1) & 1, b)) for b in range(3)] if ks < 7 else []
            young = 0
            if 1 <= ks <= 4:
                fill += tr_list(ks + 1, (ks + 1) & 3, WL_)
                young = 8
            if ks >= 6:
                d = 76 if ks == 6 else 77
                t = tr_list(ks, 0, WL_)
                t[0] = f"s_waitcnt vmcnt({4 * (7 - ks)})\n" + t[0]
                fill = [f"v_add_u32 v{vTR[0]}, s{d}, v{vTR[0]}\nv_add_u32 v{vTR[1]}, s{d}, v{vTR[1]}"] + fill + t
                young = 8
            weave(mf, fill)
        self.stamp("Gwl")
        FB = lambda ks: 16 + ks * 4 if ks < 6 else (44 if ks == 6 else 252)
        sf = ["", " sc1", " nt", " sc0 sc1"][self.ost & 3]
        st = lambda r: f"buffer_store_dwordx4 {r4(r)}, v0, s[{OUT}:{OUT+3}], s74 offen{sf}"

        def packl(b, h, r):
            return [f"v_cvt_pk_bf16_f32 v{r+k}, v{ACC(b, 2*h) + 2*k}, v{ACC(b, 2*h) + 2*k + 1}" for k in range(4)]

        def epi(b, ra, rb):
            o = packl(b, 1, rb) + packl(b, 0, ra)
            if b < 2:
                o += packl(b, 0, 240)
            o += [f"v_mov_b32_dpp v{ra+k}, v{rb+k} row_ror:8 row_mask:0xf bank_mask:0xc" for k in range(4)]
            if b < 2:
                o += [f"v_mov_b32_dpp v{rb+k}, v{240+k} row_ror:8 row_mask:0xf bank_mask:0x3" for k in range(4)]
            return o

        a("s_add_u32 s75, s74, 4096\ns_add_u32 s76, s74, 8192\ns_add_u32 s77, s74, 12288\ns_add_u32 s78, s74, 16384")
        st = lambda r, i: f"buffer_store_dwordx4 {r4(r)}, v0, s[{OUT}:{OUT+3}], s{74+i} offen{sf}"
        if self.fuse:
            wait_prog(3, self.gsleep)
            self.stamp("Ga0")
            for ks in range(8):
                a(rd(AG, ks, 2, FB(ks)))
            e2 = epi(2, 244, 248)
            for b in (2, 0):
                for ks in range(8):
                    if b == 2:
                        a(f"s_waitcnt lgkmcnt({7 if ks == 0 else 6})")
                    else:
                        a(f"s_waitcnt lgkmcnt({6 if ks == 0 else 7 - ks})")
                    mf = [f"{MF} {r4(ACC(b, jb))}, {r4(WL_(jb, ks))}, {r4(FB(ks))}, {r4(ACC(b, jb))}" for jb in (2, 3, 0, 1)]
                    fill = []
                    if b == 2 and ks > 0:
                        fill = [rd(AG, ks - 1, 0, FB(ks - 1))]
                    if b == 0 and ks == 0:
                        fill = [rd(AG, 7, 0, FB(7))]
                    if b == 0 and ks >= 3:
                        fill, e2 = e2[:4], e2[4:]
                    weave(mf, fill)
            a("s_nop 4")
            a("\n".join(epi(0, 224, 228)))
            if self.stw == 4:
                wait_prog(4, self.gsleep)
            self.stamp("Gst")
            if self.stw < 5:
                a(f"{hi}\n{st(244, 4)}\n{st(224, 0)}\n{st(228, 1)}\n{lo}")
        for n, b in enumerate((2, 0, 1)):
            if self.fuse and n < 2:
                continue
            wait_prog((1, 3, 5)[n], self.gsleep if n < 2 else self.lsleep)
            self.stamp(f"Ga{n}")
            if n == 2:
                a(hi)
            for ks in range(8):
                a(rd(AG, ks, b, FB(ks)))
            mf = []
            for ks in range(8):
                for i, jb in enumerate((2, 3, 0, 1)):
                    w = f"s_waitcnt lgkmcnt({7-ks})\n" if i == 0 else ""
                    mf.append(w + f"{MF} {r4(ACC(b, jb))}, {r4(WL_(jb, ks))}, {r4(FB(ks))}, {r4(ACC(b, jb))}")
            late = [st(244, 4), st(224, 0), st(228, 1)] if self.stw == 5 else []
            weave(mf, epi(2, 244, 248) if n == 1 else (late if n == 2 else []))
            if n == 1:
                a("s_nop 4")
                a("\n".join(epi(0, 224, 228)))
                if self.stw == 4:
                    wait_prog(self.stw, self.gsleep)
                if self.stw == 6:
                    wait_prog(1, self.gsleep, C_DR)
                self.stamp("Gst")
                if self.stw != 5:
                    a(f"{hi}\n{st(244, 4)}\n{st(224, 0)}\n{st(228, 1)}\n{lo}")
            if n == 2:
                a("s_nop 4")
                e = epi(1, 232, 236)
                a("\n".join(e[:16]) + f"\n{st(232, 2)}\n" + "\n".join(e[16:]) + f"\n{st(236, 3)}")
        l = self.lab("noepoch")
        a(f"""
        s_or_b32 s64, s2, s3
        s_cbranch_scc1 {l}
        v_mov_b32 v1, s30
        s_mov_b64 exec, 1
        {"" if self.noepoch else f"buffer_store_dword v1, v{vZ}, s[{WS}:{WS+3}], 0 offen"}
        {l}:
        """)
        if self.prof:
            a("s_mov_b64 exec, -1\ns_waitcnt vmcnt(0)")
        self.stamp("Gend")
        self.dump()
        a("s_endpgm")
        self.flush_cold()

    def sparse_waves(self):
        a = self.a
        R = self.lag
        AT = lambda t, h: 176 + t * 8 + 4 * h
        RG = lambda u, h: 48 + ((u >> 1) & 7) * 16 + 8 * h + 4 * (u & 1)
        vN, vG, vZ, vOne = 3, 4, 5, 6
        vLo, vEs, vFa = 7, 0, 2
        vL16 = 8
        MSK, vIx, ACC = 12, 14, 16
        A = [24, 28]
        vJ, vPa = 1, 10
        FS = lambda j: 176 + 2 * j
        EA = [32, 34, 36, 38]
        EW = [33, 35, 37, 39]
        vW, vAd = 205, 11
        X, DS, IB, TG, MK = 32, 36, 40, 44, 48
        sIdx = 27
        sP = [10, 11, 12, 13, 14]
        sK = [15, 16, 17, 18, 19]
        sQ = [20, 21, 22, 23, 24]
        sSlow, sJ, sT, sG = 25, 26, 49, 50
        sM, sF, sD, sGam, sRet, sMode, sDr, sAnc = 52, 53, 56, 57, 54, 62, 70, 72

        a(f"""
        s_setprio 3
        v_and_b32 v{vL16}, 0xfff, v8
        v_and_b32 v9, 0x3ff, v10
        s_lshr_b32 s66, s2, 4
        s_lshl_b32 s66, s66, 3
        s_and_b32 s67, s2, 7
        s_or_b32 s68, s66, s67
        s_mul_i32 s64, s68, 5120
        v_add_u32 v40, s64, v{vL16}
        s_add_u32 s64, s64, 4096
        v_add_u32 v41, s64, v9
        """)
        a(f"""
        v_lshrrev_b32 v42, 2, v{vN}
        v_and_b32 v43, 3, v{vN}
        v_lshl_add_u32 v46, v42, 3, v43
        v_lshl_add_u32 v42, v42, 4, v43
        s_lshl_b32 s64, s31, 1
        v_mov_b32 v43, s64
        v_lshlrev_b32 v44, 1, v43
        v_cmp_gt_u32 vcc, 8, v{vN}
        s_mul_i32 s65, s1, 640
        v_lshlrev_b32 v{vLo}, 4, v{vN}
        v_cndmask_b32 v43, v43, v44, vcc
        v_add_lshl_u32 v42, v42, v43, 4
        v_lshl_add_u32 v42, v{vG}, 2, v42
        v_add_u32 v42, s65, v42
        v_min_u32 v42, 159996, v42
        """)
        lm, lj = self.lab("mrole"), self.lab("roled")
        eload = f"global_load_dword v{vEs}, v42, s[10:11]"
        eo = 0 if self.efirst else 1
        a(f"""
        s_bitcmp1_b32 s2, 3
        s_cbranch_scc0 {lm}
        s_waitcnt lgkmcnt(0)
        {eload if self.efirst else ""}
        global_load_dwordx4 v[48:51], v40, s[8:9]
        global_load_dword v52, v41, s[8:9]
        global_load_dwordx4 v[56:59], v40, s[6:7]
        global_load_dword v60, v41, s[6:7]
        {lj}:
        {"" if self.efirst else eload}
        s_mov_b32 s{sIdx}, s68
        s_mov_b32 s26, 0
        s_cmp_lg_u32 s31, 0
        s_cbranch_scc1 {lj}_b
        s_load_dword s30, s[28:29], 0
        {lj}_b:
        s_barrier
        """)
        mrole = Asm()
        mrole(f"""
        {lm}:
        v_lshlrev_b32 v43, 4, v{vG}
        v_lshl_add_u32 v46, v46, 9, v43
        s_bfe_u32 s64, s68, 0x30002
        s_lshl_b32 s64, s64, 14
        s_lshr_b32 s65, s68, 5
        s_lshl_b32 s65, s65, 15
        s_bfe_u32 s66, s68, 0x10001
        s_lshl_b32 s66, s66, 14
        s_add_u32 s65, s65, s66
        s_and_b32 s66, s68, 1
        s_lshl_b32 s66, s66, 11
        s_add_u32 s65, s65, s66
        s_lshr_b32 s66, s2, 2
        s_xor_b32 s66, s66, s2
        s_and_b32 s66, s66, 0x30
        s_lshl_b32 s66, s66, 3
        v_add_u32 v46, s66, v46
        v_add_u32 v44, s64, v46
        v_add_u32 v45, s65, v46
        s_cmp_lg_u32 s31, 0
        s_waitcnt lgkmcnt(0)
        {eload if self.efirst else ""}
        s_cbranch_scc1 {lj}
        """)
        def mline(l):
            if l:
                d = (l ^ (l - 1)) << 7
                mrole(f"v_xor_b32 v44, {d}, v44\nv_xor_b32 v45, {d}, v45")
            for k in (2 * l, 2 * l + 1):
                mrole(f"global_load_dwordx4 {r4(48 + 12*k)}, v45, s[20:21] offset:{64*(k & 1)}")
                mrole(f"global_load_dwordx4 {r4(52 + 12*k)}, v44, s[18:19] offset:{64*(k & 1)}")
                mrole(f"global_load_dwordx4 {r4(56 + 12*k)}, v44, s[18:19] offset:{2048 + 64*(k & 1)}")
        for l in range(1 if self.m2 else 4):
            mline(l)
        mrole(f"s_branch {lj}")
        self.stamp("Sb0")
        self.srd(X, 4, 5120000)
        self.srd(DS, 14, 20000)
        self.srd(IB, 28, 125 * 16384, add=WS_INBOX)
        a(f"""
        v_and_b32 v40, 8, v{vN}
        v_lshlrev_b32 v40, 1, v40
        v_mov_b32 v41, 0xffff
        v_lshlrev_b32 v40, v40, v41
        s_mov_b32 s64, 0x0f0f0f0f
        s_mov_b32 s65, 0x0f0f0f0f
        v_cndmask_b32 v{MSK}, 0, v40, s[64:65]
        v_xor_b32 v{MSK+1}, v40, v{MSK}
        v_and_b32 v{vIx}, 3, v{vN}
        v_mul_u32_u24 v{vIx}, 0x5555, v{vIx}
        """)
        lh = self.lab("tagged")
        a(f"""
        s_cmp_lg_u32 s31, 0
        s_cbranch_scc1 {lh}
        s_waitcnt lgkmcnt(0)
        s_mul_i32 s30, s30, 0x9E3779B1
        s_add_u32 s30, s30, 0x7F4A7C15
        v_mov_b32 v40, 1
        v_mov_b32 v41, s30
        ds_write_b64 v{vZ}, v[40:41] offset:{C_HV}
        {lh}:
        """)

        def tags(dst):
            dst(f"""
            s_and_b32 s{TG}, s30, 0xffc00000
            s_lshl_b32 s{TG+1}, s30, 10
            s_and_b32 s{TG+1}, s{TG+1}, 0xffc00000
            s_lshl_b32 s{TG+2}, s30, 20
            s_and_b32 s{TG+2}, s{TG+2}, 0xffc00000
            s_lshl_b32 s{TG+3}, s30, 22
            """)

        lm2, lj2 = self.lab("mwork"), self.lab("worked")
        a(f"s_bitcmp1_b32 s2, 3\ns_cbranch_scc0 {lm2}")
        a(f"""
        v_mov_b32 v43, 4
        v_mov_b32 v44, {OVF}
        s_mov_b32 s64, 0x3f0001
        v_lshrrev_b32 v40, 7, v{vL16}
        v_and_b32 v41, 0x70, v{vL16}
        v_lshl_add_u32 v40, v40, 14, v41
        s_lshl_b32 s65, s{sIdx}, 7
        s_waitcnt vmcnt({2 + eo})
        """)
        for k in range(5):
            a(f"""
            v_mul_u32_u24 v{64+k}, 52429, v{48+k}
            v_lshrrev_b32 v{72+k}, 22, v{64+k}
            v_lshlrev_b32 v{80+k}, 2, v{72+k}
            ds_add_rtn_u32 v{80+k}, v{80+k}, v43 offset:{BCNT}
            """)
        for k in range(5):
            a(f"""
            v_lshrrev_b32 v{64+k}, 21, v{64+k}
            v_mad_u32_u24 v{64+k}, v{64+k}, 24, v{48+k}
            v_mul_u32_u24 v{64+k}, 0x8001, v{64+k}
            v_and_b32 v{88+k}, 7, v{72+k}
            v_lshl_or_b32 v{72+k}, v{72+k}, 3, v{88+k}
            v_lshlrev_b32 v{72+k}, 4, v{72+k}
            """)
        a(f"s_waitcnt vmcnt({eo})")
        for k in range(5):
            a(f"v_lshlrev_b32 v{56+k}, 1, v{56+k}\nv_and_or_b32 v{64+k}, v{64+k}, s64, v{56+k}")
        a("s_waitcnt lgkmcnt(0)")
        for k in range(5):
            a(f"""
            v_cmp_gt_u32 vcc, 124, v{80+k}
            v_min_u32 v{80+k}, 124, v{80+k}
            v_xor_b32 v{80+k}, v{80+k}, v{72+k}
            v_cndmask_b32 v{64+k}, v44, v{64+k}, vcc
            ds_write_b32 v{80+k}, v{64+k} offset:{BST}
            """)
        self.signal(C_BIN, vZ, vOne)
        self.wait_cnt(C_BIN, 4, vZ, 44, geth=True)
        for i in range(4):
            a(f"ds_read_b128 {r4(48 + 4*i)}, v{vL16} offset:{BST + i*4096}")
        tags(a)
        for i in range(4):
            a(f"s_waitcnt lgkmcnt({3-i})")
            for k in range(4):
                a(f"v_or_b32 v{48+4*i+k}, s{TG+k}, v{48+4*i+k}")
            a(f"buffer_store_dwordx4 {r4(48 + 4*i)}, v40, s[{IB}:{IB+3}], s65 offen sc1")
            if i < 3:
                a("s_add_u32 s65, s65, 0x80000")
        a(f"""
        s_cmp_ge_u32 s2, {NMAIN}
        s_cbranch_scc1 L_end
        s_waitcnt vmcnt(4)
        {lj2}:
        """)
        mrole(f"{lm2}:\ns_cmp_lg_u32 s31, 0\ns_cbranch_scc1 {lj2}_w")
        if self.m2:
            mrole("s_waitcnt vmcnt(1)")
            for l in range(1, 4):
                mline(l)
        for k in range(8):
            mrole(f"s_waitcnt vmcnt({21 - 3*k if self.m2 else 21 + eo - 3*k})")
            for jj in range(2):
                c = r4(ACC + 4 * jj) if k else "0"
                mrole(f"{MF} {r4(ACC + 4*jj)}, {r4(52 + 12*k + 4*jj)}, {r4(48 + 12*k)}, {c}")
        mrole(f"""
        s_lshl_b32 s64, s{sIdx}, 10
        s_add_u32 s64, s64, {WS_M}
        v_lshl_add_u32 v40, v2, 4, s64
        s_lshl_b32 s64, s{sIdx}, 2
        s_add_u32 s64, s64, {WS_FLAG}
        v_lshl_add_u32 v41, v2, 9, s64
        v_mov_b32 v42, s30
        s_nop 1
        """)
        for k in range(4):
            mrole(f"v_cvt_pk_bf16_f32 v{44+k}, v{ACC+2*k}, v{ACC+2*k+1}")
        mrole("global_store_dwordx4 v40, v[44:47], s[28:29] sc1")
        if self.mearly:
            mrole("s_mov_b32 s26, 1\ns_waitcnt vmcnt(1)")
        else:
            mrole(f"""
            s_waitcnt vmcnt(0)
            s_mov_b64 exec, {(1 << NREP) - 1}
            global_store_dword v41, v42, s[28:29] sc1
            s_mov_b64 exec, -1
            """)
        mrole(f"""
        s_branch {lj2}
        {lj2}_w:
        s_waitcnt vmcnt(0)
        s_branch {lj2}
        """)
        self.stamp("Srole")
        a(f"""
        v_lshlrev_b32 v{vEs}, 9, v{vEs}
        s_setprio {self.sprio}
        s_lshl_b32 s64, s31, 10
        s_lshr_b32 s10, s1, 1
        s_lshl_b32 s10, s10, 14
        s_add_u32 s11, s10, 4096
        s_add_u32 s12, s10, 8192
        s_add_u32 s13, s10, 12288
        v_cmp_gt_u32 vcc, 0xe80, v{vL16}
        s_mov_b64 s[14:15], vcc
        """)

        def arow(t, th):
            a(f"v_add_u32_dpp v9, v{vEs}, v{vLo} row_newbcast:{t} {DPPF}")
            if th and self.sthr:
                a(f"s_waitcnt vmcnt({self.sthr - 2})")
            for h in range(2):
                a(f"buffer_load_dwordx4 {r4(AT(t, h))}, v9, s[{X}:{X+3}], 0 offen offset:{256*h}{self.gfl}")

        nd = 0
        for t in range(self.ipos):
            arow(t, t >= self.sfree)
            if t == 1 and self.mearly:
                lf = self.lab("flagged")
                a(f"""
                s_cmp_eq_u32 s26, 0
                s_cbranch_scc1 {lf}
                s_waitcnt vmcnt({4 + nd})
                s_mov_b64 exec, {(1 << NREP) - 1}
                global_store_dword v41, v42, s[28:29] sc1
                s_mov_b64 exec, -1
                {lf}:
                """)
            while nd < 5 and (nd + 1) * self.ipos <= 5 * (t + 1):
                a(f"s_add_u32 m0, s64, {DIS + nd*4096}\ns_mov_b32 s65, {nd*4096}")
                a(f"buffer_load_dwordx4 v{vL16}, s[{DS}:{DS+3}], s65 offen lds")
                nd += 1
        assert nd == 5
        late = list(range(self.ipos, 10))
        late, late2 = late[:len(late) - self.lpos], late[len(late) - self.lpos:]
        self.stamp("Sat")
        l = self.lab("ipoll")
        a(f"{l}:")
        for i in range(4):
            if i == 3:
                a("s_mov_b64 exec, s[14:15]")
            a(f"buffer_load_dwordx4 {r4(48 + 4*i)}, v{vL16}, s[{IB}:{IB+3}], s{10+i} offen sc1")
        a("s_mov_b64 exec, -1")
        self.wait_cnt(C_HV, 1, vZ, 44, geth=True)
        tags(a)
        a("s_and_b32 s64, s1, 1\ns_lshl_b32 s64, s64, 21")
        for k in range(4):
            a(f"s_or_b32 s{TG+k}, s{TG+k}, s64\nv_mov_b32 v{76+k}, {EMPTY}")
        a(f"s_mov_b32 s16, {20 << 16}\nv_mov_b32 v42, 2")
        for i in range(4):
            a(f"s_waitcnt vmcnt({3-i})")
            if i == 3:
                a("s_mov_b64 exec, s[14:15]")
            for k in range(4):
                a(f"v_xor_b32 v{64+4*i+k}, s{TG+k}, v{48+4*i+k}")
            if i == 3:
                a("s_mov_b64 exec, -1")
            if i == 0:
                a("v_or3_b32 v40, v64, v65, v66\nv_or_b32 v40, v40, v67")
            else:
                a(f"v_or3_b32 v40, v40, v{64+4*i}, v{65+4*i}\nv_or3_b32 v40, v40, v{66+4*i}, v{67+4*i}")
            for k in range(4):
                n = 4 * i + k
                a(f"v_cmp_gt_u32 s[{MK+2*n}:{MK+2*n+1}], s16, v{64+n}")
                a(f"v_lshlrev_b32_sdwa v{80+n}, 2, v{64+n} dst_sel:DWORD dst_unused:UNUSED_PAD src0_sel:DWORD src1_sel:WORD_1")
        a(f"v_cmp_le_u32 vcc, 0x400000, v40\ns_cbranch_vccnz {self.retry(l, 4)}")
        self.stamp("Sin")
        for n in range(16):
            a(f"s_mov_b64 exec, s[{MK+2*n}:{MK+2*n+1}]\nds_add_rtn_u32 v{80+n}, v{80+n}, v42 offset:{LCNT}")
        a("s_mov_b64 exec, -1")
        for t in late[:(len(late) + 1) // 2]:
            arow(t, False)
        for i in range(4):
            a(f"v_and_b32 v{48+i}, {OVF}, v{67+4*i}")
        a(f"""
        v_max3_u32 v48, v48, v49, v50
        v_max_u32 v48, v48, v51
        v_cmp_eq_u32 vcc, {OVF}, v48
        s_mov_b64 s[16:17], vcc
        """)
        for n in range(16):
            if n % 4 == 0:
                a("s_waitcnt lgkmcnt(12)")
            a(f"s_mov_b64 exec, s[{MK+2*n}:{MK+2*n+1}]\nds_write_b16 v{80+n}, v{64+n}")
        a(f"s_mov_b64 exec, s[16:17]\nds_write_b32 v{vZ}, v{vOne} offset:{C_OVF}")
        self.signal(C_LIST, vZ, vOne)
        self.stamp("Slw")
        for t in late[(len(late) + 1) // 2:]:
            arow(t, False)
        a(f"""
        s_lshl_b32 s{sQ[0]}, s31, 1
        s_add_u32 s{sQ[1]}, s{sQ[0]}, 1
        s_add_u32 s{sQ[2]}, s{sQ[0]}, 8
        s_add_u32 s{sQ[3]}, s{sQ[0]}, 9
        s_add_u32 s{sQ[4]}, s31, 16
        v_add_u32 v47, -1, v{vN}
        v_bfe_u32 v40, v47, 1, 1
        v_and_b32 v41, 1, v47
        v_lshl_add_u32 v40, v40, 3, v41
        v_add_u32 v40, s{sQ[0]}, v40
        v_mov_b32 v41, s{sQ[4]}
        v_cmp_ne_u32 vcc, 0, v{vN}
        v_min_u32 v47, 19, v2
        v_mul_u32_u24 v46, {LSTRIDE}, v47
        v_cndmask_b32 v40, v41, v40, vcc
        v_mul_u32_u24 v41, {LSTRIDE}, v40
        v_add_u32 v41, {LIST}, v41
        v_lshlrev_b32 v40, 2, v40
        v_add_u32 v46, {LIST + 2*LCAP}, v46
        v_lshlrev_b32 v47, 2, v47
        v_lshlrev_b32 v43, 3, v{vN}
        v_lshl_add_u32 v43, v{vG}, 1, v43
        """)
        self.wait_cnt(C_LIST, 4, vZ, 44)
        self.stamp("Sls")
        a(f"""
        ds_read_b32 v44, v40 offset:{LCNT}
        ds_read_b32 v47, v47 offset:{LCNT}
        ds_read_b32 v45, v{vZ} offset:{C_OVF}
        s_waitcnt lgkmcnt(2)
        v_sub_u32 v44, v44, v41
        v_max_u32 v44, 18, v44
        s_waitcnt lgkmcnt(0)
        v_cmp_gt_u32 vcc, v47, v46
        v_add_u32_dpp v48, v44, v44 row_shr:1 {DPPF} bound_ctrl:1
        v_readfirstlane_b32 s{sSlow}, v45
        s_or_b32 s64, vcc_lo, vcc_hi
        v_add_u32_dpp v48, v48, v48 row_shr:2 {DPPF} bound_ctrl:1
        s_or_b32 s{sSlow}, s{sSlow}, s64
        s_mov_b32 s{sF}, 0
        v_add_u32_dpp v48, v48, v48 row_shr:4 {DPPF} bound_ctrl:1
        v_sub_u32 v44, v48, v44
        v_sub_u32 v44, v41, v44
        """)
        BT, BU = 160, 40
        for j in range(5):
            a(f"v_readlane_b32 s{sP[j]}, v48, {j}")
        for j in range(5):
            a(f"v_add_u32_dpp v{BT+j}, v44, v43 row_newbcast:{j} {DPPF}")
        a(f"""
        s_add_u32 s{sG}, s{sP[4]}, 14
        s_lshr_b32 s{sG}, s{sG}, 4
        s_cmp_gt_u32 s{sG}, 32
        s_cselect_b32 s{sSlow}, 1, s{sSlow}
        s_max_u32 s{sG}, s{sG}, {8 + R // 2 if self.fp else R // 2 + 1}
        """)

        def build(chunks):
            for c in chunks:
                a(f"v_add_u32 v{BU+c}, {128*c}, v43")
                for j in range(4):
                    a(f"v_cmp_le_u32 s[{64+2*j}:{65+2*j}], s{sP[j]}, v{BU+c}")
                for j in range(4):
                    a(f"v_cndmask_b32 v{BU+c}, v{BT if j == 0 else BU+c}, v{BT+1+j}, s[{64+2*j}:{65+2*j}]")
                a(f"ds_read_u16 v{BU+c}, v{BU+c} offset:{128*c}")
            for n, c in enumerate(chunks):
                a(f"""
                s_waitcnt lgkmcnt({len(chunks) - 1})
                v_and_b32 v{EA[c]}, 0x7ffe, v{BU+c}
                ds_read_u16 v{EW[c]}, v{EA[c]} offset:{DIS}
                {f"v_and_b32 v{EA[c]}, {self.hot}, v{EA[c]}" if self.hot else ""}
                v_lshlrev_b32 v{EA[c]}, 8, v{EA[c]}
                v_lshlrev_b32 v{BU+c}, 4, v{BU+c}
                """)

        def finish(chunks):
            for c in chunks:
                a(f"v_lshlrev_b32 v{EW[c]}, v{BU+c}, v{EW[c]}\nds_bpermute_b32 v{EW[c]}, v46, v{EW[c]}")

        def issue(u, halves=(0, 1)):
            a(f"v_add_u32_dpp v{vAd}, v{EA[u // 16]}, v{vLo} row_newbcast:{u % 16} {DPPF}")
            for h in halves:
                a(f"buffer_load_dwordx4 {r4(RG(u, h))}, v{vAd}, s[{X}:{X+3}], 0 offen offset:{256*h}{self.gfl}")

        build([0, 1, 2, 3])
        self.stamp("Sent")
        for t in late2:
            arow(t, False)
        for u in range(self.npre):
            issue(u)
        npro = 8 + R if self.fp else R
        nsc = 12 if self.fp else min(12, max(npro - 4, (self.npre + npro + 1) // 2))
        pend = list(range(self.npre, nsc))
        pend2 = list(range(nsc, npro))
        pend3 = []
        if self.nin < npro - self.npre:
            nsc = self.npre + (self.nin + 1) // 2
            pend, pend2 = list(range(self.npre, nsc)), list(range(nsc, self.npre + self.nin))
            pend3 = list(range(self.npre + self.nin, npro))
        a(f"s_mov_b32 s{sGam}, 0")
        for j in range(4, -1, -1):
            a(f"""
            s_sub_u32 s64, s{sP[j]}, 18
            s_lshr_b32 s65, s64, 4
            s_bitset1_b32 s{sF}, s65
            s_and_b32 s64, s64, 14
            s_lshl4_add_u32 s{sGam}, s{sGam}, s64
            s_and_b32 s65, s{sQ[j]}, 7
            s_lshl_b32 s65, s65, 5
            s_lshl_b32 s{sK[j]}, s{sQ[j]}, 10
            s_or_b32 s{sK[j]}, s{sK[j]}, s65
            """)
        TA = [144, 145, 146, 147, 148, 149]
        P = lambda t: 150 + t
        TF = lambda s, h: 160 + s * 8 + 4 * h
        a(f"""
        s_sub_u32 s64, s{sG}, {R // 2 + 1}
        s_lshl_b32 s{sD}, 1, s64
        s_or_b32 s{sM}, s{sD}, s{sF}
        v_and_b32 v46, 1, v{vN}
        v_lshl_add_u32 v46, v{vG}, 1, v46
        v_and_b32 v46, 3, v46
        v_and_b32 v47, 14, v{vN}
        v_lshl_add_u32 v46, v46, 4, v47
        v_lshrrev_b32 v47, 1, v{vG}
        v_add_lshl_u32 v46, v46, v47, 2
        v_lshrrev_b32 v44, 1, v{vG}
        v_mul_u32_u24 v44, 528, v44
        v_xor_b32 v44, v44, v{vLo}
        v_and_b32 v45, 1, v{vG}
        v_lshl_or_b32 v{vFa}, v45, 3, v44
        v_xor_b32 v{TA[0]}, s{sK[0]}, v{vLo}
        v_xor_b32 v{TA[2]}, s{sK[1]}, v{vLo}
        v_xor_b32 v{TA[4]}, s{sK[4]}, v{vLo}
        v_xor_b32 v{TA[1]}, 528, v{TA[0]}
        v_xor_b32 v{TA[3]}, 528, v{TA[2]}
        v_xor_b32 v{TA[5]}, 528, v{TA[4]}
        s_mul_i32 s64, s1, 80
        s_add_u32 s64, s64, {DIS}
        v_and_b32 v45, 2, v{vG}
        v_add_u32 v{vEs}, s64, v45
        s_getpc_b64 s[{sAnc}:{sAnc+1}]
        L_anc:
        v_lshlrev_b32 v{vG}, 2, v{vG}
        s_mov_b32 s{sMode}, L_{"fp" if self.fp else "st"}1-L_anc
        s_mov_b32 s{sMode+1}, L_{"fp" if self.fp else "st"}1-L_{"fp" if self.fp else "st"}0
        s_mov_b32 s{sDr}, L_dr1-L_anc
        s_mov_b32 s{sDr+1}, L_dr1-L_dr0
        s_mov_b32 s{sJ}, 0
        v_mov_b32 v{vJ}, 0
        s_lshl_b32 s64, s31, 2
        v_mov_b32 v{vPa}, s64
        v_and_b32 v9, 8, v{vN}
        v_lshlrev_b32 v9, 1, v9
        s_mov_b32 s66, 0x22222222
        s_mov_b32 s67, 0x22222222
        s_mov_b32 s68, 0x44444444
        s_mov_b32 s69, 0x44444444
        """)
        for t in range(0, 10, 2):
            a(f"v_mov_b64 {r2(P(t))}, 0")
        for k in range(4):
            a(f"v_mov_b64 {r2(ACC + 2*k)}, 0")
        a("s_waitcnt lgkmcnt(0)")
        finish([0, 1, 2, 3])
        a(f"s_waitcnt vmcnt({2 * self.npre}) lgkmcnt(0)")
        self.stamp("Srdy")
        a("s_barrier")
        self.stamp("Sbt")

        def tread(t):
            ad, off = (TA[t & 3], 8192 * (t >> 2)) if t < 8 else (TA[t - 4], 0)
            for h in range(2):
                a(f"ds_read_b128 {r4(TF(t & 1, h))}, v{ad} offset:{TT + off + 256*h}")

        def level1(t):
            a(f"v_add_f32_dpp v{P(t)}, v{P(t)}, v{P(t)} row_ror:8 row_mask:0xf bank_mask:0x3")
            a(f"v_add_f32_dpp v{P(t)}, v{P(t+1)}, v{P(t+1)} row_ror:8 row_mask:0xf bank_mask:0xc")

        def level2(t):
            a(f"v_add_f32_dpp v{P(t)}, v{P(t)}, v{P(t)} row_half_mirror row_mask:0xf bank_mask:0x5")
            if t < 8:
                a(f"v_add_f32_dpp v{P(t)}, v{P(t+2)}, v{P(t+2)} row_half_mirror row_mask:0xf bank_mask:0xa")

        tread(0)
        for t in range(10):
            if t < 9:
                tread(t + 1)
            a(f"s_waitcnt lgkmcnt({2 if t < 9 else 0})")
            for h in range(2):
                for k in range(0 if self.nodot else 4):
                    a(f"v_dot2c_f32_bf16 v{P(t)}, v{AT(t, h)+k}, v{TF(t & 1, h)+k}")
            if t >= 2 and t % 2 == 0:
                level1(t - 2)
            if t in (5, 9):
                level2(t - 5)
            for _ in range(-(-len(pend) // (10 - t))):
                issue(pend.pop(0))
        self.stamp("Sdot")
        vE = P(0)
        a(f"""
        v_add_f32_dpp v{P(0)}, v{P(0)}, v{P(0)} quad_perm:[1,0,3,2] {DPPF}
        s_nop 0
        """)
        level1(8)
        a(f"""
        v_add_f32_dpp v{P(4)}, v{P(4)}, v{P(4)} quad_perm:[1,0,3,2] {DPPF}
        v_add_f32_dpp v{P(0)}, v{P(0)}, v{P(0)} quad_perm:[2,3,0,1] {DPPF}
        """)
        level2(8)
        a(f"""
        v_add_f32_dpp v{P(4)}, v{P(4)}, v{P(4)} quad_perm:[2,3,0,1] {DPPF}
        s_nop 0
        v_add_f32_dpp v{P(8)}, v{P(8)}, v{P(8)} quad_perm:[1,0,3,2] {DPPF}
        v_cndmask_b32 v{vE}, v{vE}, v{P(4)}, s[66:67]
        s_nop 0
        v_add_f32_dpp v{P(8)}, v{P(8)}, v{P(8)} quad_perm:[2,3,0,1] {DPPF}
        v_cndmask_b32 v{vE}, v{vE}, v{P(8)}, s[68:69]
        v_mul_f32 v{vE}, 0x3db8aa3b, v{vE}
        v_exp_f32 v{vE}, v{vE}
        s_nop 0
        v_mov_b32 v44, v{vE}
        v_mov_b32 v45, v{vE}
        s_nop 1
        v_permlane32_swap_b32 v44, v45
        v_add_f32 v44, v44, v45
        v_mov_b32 v45, v44
        s_nop 1
        v_permlane16_swap_b32 v44, v45
        v_add_f32 v44, v44, v45
        v_add_f32 v44, 0x3089705f, v44
        v_rcp_f32 v44, v44
        s_nop 0
        v_mul_f32 v{vE}, v{vE}, v44
        v_cvt_pk_bf16_f32 v{vE}, v{vE}, 0
        v_lshlrev_b32 v8, v9, v{vE}
        s_nop 1
        """)
        vE = 8
        self.stamp("Ssm")
        elane = lambda t: 4 * [0, 2, 1, 3][t & 3] + (t >> 2)

        def wops(src, lane, p):
            return [f"v_and_b32_dpp v{A[p]+r}, v{src}, v{MSK+r} row_newbcast:{lane} {DPPF}" for r in range(2)]

        def wops8(s_, p):
            return [f"v_and_b32_dpp v{A[p]+2*e+r}, v{EW[s_ // 8]}, v{MSK+r} row_newbcast:{2*(s_ % 8)+e} {DPPF}"
                    for e in range(2) for r in range(2)]

        AV = lambda j: 40 if j % 2 == 0 else ACC

        def zero(c):
            for k in range(4):
                self.mov2(c + 2 * k, None)

        def aflush(j):
            c, f = AV(j), FS((j + 1) % 5)
            a(f"v_xor_b32 v{f}, s{sK[j]}, v{vFa}\ns_lshl_b32 s64, s{sQ[j]}, 2\nv_add_u32 v9, s64, v{vEs}\nv_mov_b32 v{f+1}, 0")
            for h in range(2):
                a(f"""
                v_cvt_pk_bf16_f32 v{30}, v{c+4*h}, v{c+4*h+1}
                v_cvt_pk_bf16_f32 v{31}, v{c+4*h+2}, v{c+4*h+3}
                ds_write_b64 v{f}, v[30:31] offset:{XT + 256*h}
                """)
            a(f"ds_read_u16_d16_hi v{f+1}, v9")
            if j < 4:
                zero(c)

        for o in wops(vE, elane(0), 0):
            a(o)
        zero(40)
        for t in range(10):
            nxt = wops(vE, elane(t + 1), (t + 1) & 1) if t < 9 else wops8(0, 0)
            c0 = AV(t // 2)
            a(f"{SM} {r4(c0)}, {r2(A[t & 1])}, {r4(AT(t, 0))}, v{vIx}")
            a("\n".join(nxt))
            a(f"{SM} {r4(c0 + 4)}, {r2(A[t & 1])}, {r4(AT(t, 1))}, v{vIx}")
            if pend2 and t % 2 == 0:
                issue(pend2.pop(0))
            elif t & 1 and t >= 3:
                aflush(t // 2 - 1)
                a("s_nop 0")
            else:
                a("s_nop 0")
        aflush(4)
        assert not pend and not pend2
        a("s_waitcnt lgkmcnt(0)\ns_barrier")
        self.stamp("Sbv")
        for u in pend3:
            issue(u)
        self.stamp("Spro")
        a(f"s_cmp_lg_u32 s{sSlow}, 0\ns_cbranch_scc1 L_slow")

        def rotate():
            for c in range(3):
                self.mov2(EA[c], EA[c + 1])
            for m in (sM, sF, sD):
                a(f"s_lshr_b32 s{m}, s{m}, 8")

        assert R % 2 == 0 and 4 <= R <= (8 if self.fp else 16)
        for mode in (("fp", "st", "dr") if self.fp else ("st", "dr")):
            for t in range(8):
                nxt = wops8(t + 1, (t + 1) & 1)
                a(f"L_{mode}{t}:\ns_bitcmp1_b32 s{sM}, {t}")
                if mode == "dr":
                    a(f"ds_write_b32 v{vPa}, v{vOne} offset:{C_DR}")
                a(f"s_waitcnt vmcnt({2 * (6 + R - t) if mode == 'fp' else 2*R - 4})")
                if not self.diag & 1:
                    a(f"{SX} {r4(ACC)}, {r4(A[t & 1])}, {r8(RG(2*t, 0))}, v{vIx}")
                    a(nxt[0] + "\n" + nxt[1])
                    a(f"{SX} {r4(ACC+4)}, {r4(A[t & 1])}, {r8(RG(2*t, 1))}, v{vIx}")
                    a(nxt[2] + "\n" + nxt[3])
                if mode == "st":
                    issue(2 * t + R)
                    issue(2 * t + R + 1)
                if mode == "fp":
                    issue(8 + R + t)
                if mode == "dr":
                    a(f"buffer_load_ubyte v15, off, s[{X}:{X+3}], 0\n" * 4)
                a(f"s_cbranch_scc1 L_ev{t}")
            a(f"L_{mode}8:")
            rotate()
            if mode == "fp":
                a(f"s_mov_b32 s{sMode}, L_st1-L_anc\ns_mov_b32 s{sMode+1}, L_st1-L_st0")
            else:
                a(f"s_branch L_{mode}0")
        for t in range(8):
            n = (t + 1) & 7
            An = A[n & 1]
            a(f"""
            L_ev{t}:
            s_and_b32 s65, s{sGam}, 15
            v_cmp_ge_u32 s[66:67], s65, v{vG}
            v_cmp_gt_u32 s[68:69], s65, v{vG}
            s_bitcmp1_b32 s{sD}, {t}
            s_cselect_b64 s[{sMode}:{sMode+1}], s[{sDr}:{sDr+1}], s[{sMode}:{sMode+1}]
            v_cndmask_b32 v40, 0, v{An}, s[66:67]
            v_cndmask_b32 v41, 0, v{An+1}, s[66:67]
            v_cndmask_b32 v42, 0, v{An+2}, s[68:69]
            v_cndmask_b32 v43, 0, v{An+3}, s[68:69]
            s_mul_i32 s64, s{sMode+1}, {t}
            s_bitcmp1_b32 s{sF}, {t}
            s_cbranch_scc0 L_evret
            s_waitcnt vmcnt({2*R - 4})
            {SX} {r4(ACC)}, v[40:43], {r8(RG(2*n, 0))}, v{vIx}
            v_xor_b32 v{An}, v{An}, v40
            v_xor_b32 v{An+1}, v{An+1}, v41
            {SX} {r4(ACC+4)}, v[40:43], {r8(RG(2*n, 1))}, v{vIx}
            v_xor_b32 v{An+2}, v{An+2}, v42
            v_xor_b32 v{An+3}, v{An+3}, v43
            {"s_branch L_flush" if t < 7 else "s_nop 0"}
            """)
        a(f"""
        L_flush:
        s_lshr_b32 s{sGam}, s{sGam}, 4
        s_cmp_eq_u32 s{sJ}, 4
        v_add_u32 v{vJ}, 1, v{vJ}
        """)
        for h in range(2):
            for k in range(4):
                a(f"v_mul_f32 v{40+4*h+k}, v{FS(0)+1}, v{ACC+4*h+k}")
            a(f"""
            v_cvt_pk_bf16_f32 v{40+4*h}, v{40+4*h}, v{41+4*h}
            v_cvt_pk_bf16_f32 v{41+4*h}, v{42+4*h}, v{43+4*h}
            ds_write_b64 v{FS(0)}, v[{40+4*h}:{41+4*h}] offset:{AG + 256*h}
            """)
        a(f"ds_write_b32 v{vPa}, v{vJ} offset:{C_AG}\ns_cbranch_scc1 L_sdone")
        if self.prof and "Sfl" in self.st:
            a("s_waitcnt lgkmcnt(0)\ns_mov_b64 s[86:87], s[88:89]\ns_mov_b64 s[88:89], s[90:91]\ns_mov_b64 s[90:91], s[92:93]\ns_memrealtime s[92:93]")
        zero(ACC)
        a(f"s_add_u32 s{sJ}, s{sJ}, 1")
        for j in range(4):
            self.mov2(FS(j), FS(j + 1))
        a(f"""
        L_evret:
        s_add_u32 s64, s64, s{sMode}
        s_add_u32 s{sRet}, s{sAnc}, s64
        s_addc_u32 s{sRet+1}, s{sAnc+1}, 0
        s_setpc_b64 s[{sRet}:{sRet+1}]
        """)
        a(f"""
        L_slow:
        s_mov_b32 s{sMode}, L_slow_pair-L_anc
        v_mbcnt_lo_u32_b32 v200, -1, 0
        v_mbcnt_hi_u32_b32 v200, -1, v200
        L_slow_pair:
        v_lshlrev_b32 v201, 2, v200
        s_mul_i32 s70, s1, 40
        s_lshl1_add_u32 s70, s{sQ[4]}, s70
        s_mov_b32 s71, 0
        s_mov_b32 s{sQ[4]}, s{sQ[0]}
        s_mov_b32 s{sQ[0]}, s{sQ[1]}
        s_mov_b32 s{sQ[1]}, s{sQ[2]}
        s_mov_b32 s{sQ[2]}, s{sQ[3]}
        L_slow_chunk:
        global_load_dword v202, v201, s[8:9]
        global_load_dword v203, v201, s[6:7]
        v_add_u32 v201, 0x100, v201
        s_waitcnt vmcnt(0)
        v_subrev_u32 v202, s70, v202
        v_cmp_gt_u32 vcc, 2, v202
        v_lshlrev_b32 v204, 1, v203
        ds_read_u16 v204, v204 offset:{DIS}
        s_mov_b64 s[76:77], vcc
        v_lshlrev_b32 v202, 4, v202
        v_lshlrev_b32 v203, 9, v203
        s_waitcnt lgkmcnt(0)
        v_lshlrev_b32 v204, v202, v204
        L_slow_edge:
        s_cmp_eq_u64 s[76:77], 0
        s_cbranch_scc1 L_slow_next
        s_ff1_i32_b64 s74, s[76:77]
        s_bitset0_b64 s[76:77], s74
        v_readlane_b32 s64, v203, s74
        v_readlane_b32 s65, v204, s74
        v_mov_b32 v{vW}, 0
        v_mov_b32 v{vAd}, {OOB}
        s_mov_b64 exec, 0xffff
        v_mov_b32 v{vW}, s65
        v_add_u32 v{vAd}, s64, v{vLo}
        s_mov_b64 exec, -1
        buffer_load_dwordx4 v[208:211], v{vAd}, s[{X}:{X+3}], 0 offen
        buffer_load_dwordx4 v[212:215], v{vAd}, s[{X}:{X+3}], 0 offen offset:256
        """)
        for r in range(2):
            a(f"v_and_b32 v{A[0]+r}, v{vW}, v{MSK+r}")
        a(f"""
        s_nop 0
        s_waitcnt vmcnt(0)
        {SM} {r4(ACC)}, {r2(A[0])}, v[208:211], v{vIx}
        {SM} {r4(ACC+4)}, {r2(A[0])}, v[212:215], v{vIx}
        s_branch L_slow_edge
        L_slow_next:
        s_add_u32 s71, s71, 1
        s_cmp_lt_u32 s71, 2500
        s_cbranch_scc1 L_slow_chunk
        s_mov_b32 s64, 0
        s_nop 3
        s_branch L_flush
        L_sdone:
        ds_write_b32 v{vPa}, v{vOne} offset:{C_DR}
        """)
        self.stamp("Send")
        self.dump()
        a("s_endpgm")
        self.flush_cold()
        self.mrole = mrole

    def kernel(self, label):
        self.entry()
        self.sparse_waves()
        self.a.lines += self.mrole.lines
        self.gemm_waves()
        self.a("L_end:\ns_endpgm")
        return dict(label=label, body=self.a.text(), grid=NWG, block=512, lds=LDS_BYTES, vgpr=256)

    def build(self):
        return wrap([self.kernel(NAME + "_kernel")])


if __name__ == "__main__":
    opts = {k: (v if k == "st" else int(v)) for k, v in (kv.split("=") for kv in sys.argv[2:])}
    open(sys.argv[1], "w").write(Gen(**opts).build())
```

```python
import sys
from asmlib import *

NMAIN, NWG = 250, 253
WS_FLAG, WS_M, WS_INBOX, WS_STAMP = 0x1000, 0x10000, 0x100000, 0x8000000
C_BIN, C_XT, C_HV, C_H, C_LIST, C_OVF, C_AG, C_DR = 0, 4, 8, 12, 16, 20, 32, 48
LCNT, BCNT = 128, 512
XT, TT, AG, DIS, WST = 1024, 21504, 41984, 62464, 82944
LIST, LSTRIDE, LCAP = 148480, 264, 124
LDS_BYTES = 161792
BST = AG
EMPTY, OVF = 30 << 16, 31 << 16
PAD2 = 0x4E204E20
OOB = 0x80000000
DPPF = "row_mask:0xf bank_mask:0xf"
r4 = lambda r: f"v[{r}:{r+3}]"
MF = "v_mfma_f32_16x16x32_bf16"
SM = "v_smfmac_f32_16x16x32_bf16"
SX = "v_smfmac_f32_16x16x64_bf16"
r8 = lambda r: f"v[{r}:{r+7}]"
r2 = lambda r: f"v[{r}:{r+1}]"


ABOUT = """;
; alpha = exp(e) / (sum exp(e) + 1e-9),  e_j = (x[d] @ M) . x[esrc_j] / 16,  M = wq @ wk^T,  edst = repeat(arange(N), 4).
; from d_ws word 0 (advanced at the end of each launch) tells this launch's hand-offs from older contents.
"""


class Gen:
    def __init__(self, prof=0, st=None, spin=1 << 26, noepoch=0,
                 gprio=2, sprio=1, gsleep=1, msleep=2, nrep=8,
                 gstart=2, gthr0=10, gthr=5, gfree=7, fpos=1, mring=10, wlin=10, gwait=1,
                 sthr=4, sfree=2, mfree=8, ipos=6, lpos=0, npre=6, slate=4, lag=8, mbar=2, xa=2):
        self.__dict__.update(locals())
        self.a = Asm()
        self.st = (st or "Gm,Gtf,Gbv,Gwl,Gst,Ga2,Srole,Sin,Sent,Srdy,Sbt,Sbv").split(",") + ["Gend", "Send"]
        self.uid = 0

    def lab(self, p):
        self.uid += 1
        return f"L_{p}_{self.uid}"

    def stamp(self, name):
        if self.prof:
            sel = [n for n in self.st if n[0] == name[0]]
            if name in sel:
                i = 7 if name[1:] == "end" else 1 + sel.index(name)
                self.a(f"s_memrealtime s[{80+2*i}:{81+2*i}]")

    def srd(self, r, p, size, add=0):
        a = self.a
        if add:
            a(f"s_add_u32 s{r}, s{p}, {add}\ns_addc_u32 s{r+1}, s{p+1}, 0\ns_and_b32 s{r+1}, s{r+1}, 0xffff")
        else:
            a(f"s_mov_b32 s{r}, s{p}\ns_and_b32 s{r+1}, s{p+1}, 0xffff")
        a(f"s_mov_b32 s{r+2}, {size}\ns_mov_b32 s{r+3}, 0x20000")

    def signal(self, off, vz, vone):
        self.a(f"""
        s_waitcnt lgkmcnt(0)
        s_mov_b64 exec, 1
        ds_add_u32 v{vz}, v{vone} offset:{off}
        s_mov_b64 exec, -1
        """)

    def retry(self, l, sleep):
        r = self.lab("retry")
        self.cold.append(f"""
        {r}:
        s_sub_u32 s100, s100, 1
        s_cbranch_scc1 L_end
        {f"s_sleep {sleep}" if sleep else ""}
        s_branch {l}
        """)
        return r

    def wait_cnt(self, off, target, vz, vt, geth=False, sleep=1):
        l = self.lab("spin")
        if geth:
            rd, v = f"ds_read_b128 {r4(vt)}, v{vz}", vt + off // 4
        else:
            rd, v = f"ds_read_b32 v{vt}, v{vz} offset:{off}", vt
        self.a(f"""
        {l}:
        {rd}
        s_waitcnt lgkmcnt(0)
        v_readfirstlane_b32 s101, v{v}
        """)
        if geth:
            self.a(f"v_readfirstlane_b32 s30, v{vt + C_H // 4}")
        self.a(f"s_cmp_ge_u32 s101, {target}\ns_cbranch_scc0 {self.retry(l, sleep)}")

    def mov2(self, d, src):
        self.a(f"v_mov_b64 {r2(d)}, {0 if src is None else r2(src)}")

    def warm(self):
        a = self.a
        done = self.lab("warmed")
        for w in range(4):
            nx = self.lab("nw")
            if w < 3:
                a(f"s_cmp_eq_u32 s31, {w}\ns_cbranch_scc0 {nx}")
            for p in [2 * w, 2 * w + 1] + ([8 + w] if w < 2 else []):
                a(f"s_call_b64 s[68:69], L_pad{p}")
            if w < 3:
                a(f"s_branch {done}\n{nx}:")
        a(f"{done}:")

    def flush_cold(self):
        for c in self.cold:
            self.a(c)
        self.cold = []

    def dump(self):
        if not self.prof:
            return
        a = self.a
        a("s_memtime s[98:99]\ns_waitcnt lgkmcnt(0)\nv_mov_b32 v10, 0")
        for i in range(20):
            a(f"v_writelane_b32 v10, s{80+i}, {i}")
        a(f"""
        s_getreg_b32 s64, hwreg(HW_REG_XCC_ID)
        v_writelane_b32 v10, s64, 20
        s_lshl_b32 s64, s2, 3
        s_add_u32 s64, s64, s3
        s_lshl_b32 s64, s64, 7
        s_add_u32 s64, s64, {WS_STAMP}
        v_mbcnt_lo_u32_b32 v11, -1, 0
        v_mbcnt_hi_u32_b32 v11, -1, v11
        v_cmp_gt_u32 vcc, 32, v11
        v_lshl_add_u32 v11, v11, 2, s64
        s_and_saveexec_b64 s[66:67], vcc
        global_store_dword v11, v10, s[28:29]
        """)

    def entry(self):
        a = self.a
        self.cold = []
        a("L_begin:")
        if self.prof:
            a("s_memrealtime s[80:81]\ns_memtime s[96:97]")
        a(f"""
        s_cmp_ge_u32 s2, {NWG}
        s_cbranch_scc1 L_end
        s_load_dwordx16 s[4:19], s[0:1], 0
        s_load_dwordx8 s[20:27], s[0:1], 64
        s_load_dwordx2 s[28:29], s[0:1], 96
        """)
        a(f"""
        s_and_b32 s64, s2, 0xf8
        s_cmp_lg_u32 s64, 8
        s_cbranch_scc1 L_nopf
        s_getpc_b64 s[32:33]
        L_pc:
        v_lshlrev_b32 v1, 6, v0
        v_min_u32 v1, L_end-L_pc, v1
        global_load_dword v255, v1, s[32:33]
        L_nopf:
        """)
        a(f"""
        v_lshrrev_b32 v1, 6, v0
        v_lshlrev_b32 v8, 4, v0
        v_mov_b32 v12, {EMPTY}
        v_readfirstlane_b32 s3, v1
        v_mov_b32 v13, {EMPTY}
        v_mov_b32 v14, {EMPTY}
        v_mov_b32 v15, {EMPTY}
        ds_write_b128 v8, v[12:15] offset:{BST}
        ds_write_b128 v8, v[12:15] offset:{BST + 8192}
        v_subrev_u32 v9, {LCNT // 4}, v0
        v_cmp_gt_u32 vcc, 20, v9
        v_mul_u32_u24 v9, {LSTRIDE}, v9
        v_add_u32 v9, {LIST}, v9
        v_lshlrev_b32 v10, 2, v0
        v_cndmask_b32 v9, 0, v9, vcc
        v_min_u32 v11, 1020, v10
        ds_write_b32 v11, v9
        v_mov_b32 v16, {PAD2}
        v_mov_b32 v17, {PAD2}
        v_mov_b32 v18, {PAD2}
        v_mov_b32 v19, {PAD2}
        v_add_u32 v9, {LIST}, v8
        ds_write_b128 v9, v[16:19]
        v_and_b32 v2, 63, v0
        v_and_b32 v3, 15, v0
        v_bfe_u32 v4, v0, 4, 2
        v_mov_b32 v5, 0
        v_mov_b32 v6, 1
        s_mov_b32 s100, {self.spin}
        """)
        if self.prof:
            for i in range(1, 8):
                a(f"s_mov_b64 s[{80+2*i}:{81+2*i}], 0")
        a("""
        s_and_b32 s64, s2, 7
        s_lshl_b32 s64, s64, 1
        s_bfe_u32 s65, s2, 0x10003
        s_or_b32 s64, s64, s65
        s_and_b32 s65, s2, 0xf0
        s_or_b32 s64, s64, s65
        s_cmp_lt_u32 s2, 240
        s_cselect_b32 s1, s64, s2
        """)
        a("""
        s_and_b32 s31, s3, 3
        s_cmp_lt_u32 s3, 4
        s_cbranch_scc1 L_gemm
        """)

    def gemm_waves(self):
        a = self.a
        W = lambda jb, ks: 128 + (ks * 4 + jb) * 4
        ACC = lambda b, jb: 80 + (b * 4 + jb) * 4
        MR = lambda n: 40 + (n % 10) * 4
        BF = lambda s, b: 16 + (s * 3 + b) * 4
        vN, vG, vZ, vOne = 3, 4, 5, 6
        vB = [7, 8, 9, 10]
        vTR = [11, 12]
        vD, vM, vT = 13, 14, 15
        X, WV, WL, WS, OUT = 32, 36, 40, 44, 48
        thr = self.gthr

        a("L_gemm:")
        a("; ---- G waves: first touches, x tile and wv staging (LDS-DMA + transposing reads)")
        a(f"""
        v_lshrrev_b32 v0, 5, v2
        s_lshl_b32 s64, s31, 1
        v_add_u32 v0, s64, v0
        v_and_b32 v1, 31, v2
        v_xor_b32 v1, v1, v0
        v_lshlrev_b32 v1, 4, v1
        v_lshl_add_u32 v30, v0, 9, v1
        v_xor_b32 v31, 0x80, v30
        v_lshrrev_b32 v{vD}, 3, v2
        v_lshrrev_b32 v{vT}, 2, v2
        v_and_b32 v{vT}, 4, v{vT}
        v_and_b32 v{vM}, 7, v2
        v_xor_b32 v{vT}, v{vT}, v{vM}
        v_lshlrev_b32 v{vT}, 4, v{vT}
        v_lshl_add_u32 v{vD}, v{vD}, 9, v{vT}
        s_lshr_b32 s67, s2, 3
        s_and_b32 s67, s67, 7
        s_lshl_b32 s64, s31, 7
        s_lshl_b32 s65, s67, 14
        s_or_b32 s64, s64, s65
        v_add_u32 v{vD}, s64, v{vD}
        s_mul_i32 s63, s1, 20480
        s_lshl_b32 s66, s31, 10
        s_lshl_b32 s70, s31, 14
        s_add_u32 s70, s70, {WST}
        s_mov_b32 s71, 3072
        s_mov_b32 s72, 6144
        s_mov_b32 s73, 9216
        """)
        a("s_waitcnt lgkmcnt(0)")
        self.srd(X, 4, 5120000)
        self.srd(WV, 22, 131072)
        lt = self.lab("touched")
        a(f"""
        s_bitcmp1_b32 s2, 3
        s_cbranch_scc0 {lt}
        s_lshr_b32 s64, s2, 4
        s_lshl_b32 s64, s64, 3
        s_and_b32 s68, s2, 7
        s_or_b32 s64, s64, s68
        s_lshl_b32 s64, s64, 10
        v_lshl_add_u32 v16, v2, 4, s64
        s_cmp_eq_u32 s31, 1
        s_cselect_b64 s[68:69], s[22:23], s[16:17]
        s_cmp_eq_u32 s31, 2
        s_cselect_b64 s[68:69], s[18:19], s[68:69]
        s_cmp_eq_u32 s31, 3
        s_cselect_b64 s[68:69], s[20:21], s[68:69]
        global_load_dwordx4 v[20:23], v16, s[68:69]
        {lt}:
        """)
        a(f"s_cmp_ge_u32 s2, {NMAIN}\ns_cbranch_scc1 L_end")
        a(f"""
        s_mul_i32 s64, s1, 20480
        s_mov_b32 s76, 0
        s_cmp_eq_u32 s31, 0
        s_cselect_b64 s[68:69], s[24:25], s[16:17]
        s_cselect_b32 s64, s64, 0
        s_cmp_eq_u32 s31, 2
        s_cselect_b64 s[68:69], s[28:29], s[68:69]
        s_cselect_b32 s64, 0x800, s64
        s_cselect_b32 s76, 0x2f8000, s76
        s_cmp_eq_u32 s31, 3
        s_cselect_b64 s[68:69], s[4:5], s[68:69]
        s_cselect_b32 s76, 0x200000, s76
        s_cselect_b32 s77, 2, 1
        v_min_u32 v17, s77, v2
        v_mul_lo_u32 v17, v17, s76
        v_add_u32 v17, s64, v17
        global_load_dword v24, v17, s[68:69]
        """)
        b0 = f"s_barrier\ns_setprio {self.gprio}"
        a(b0)
        self.stamp("Gb0")

        def throttle(th):
            return f"s_waitcnt vmcnt({th - 1})\n" if th < 16 else ""

        def xtile(lo=0, hi=5):
            for i in range(lo, hi):
                a(f"s_add_u32 m0, s66, {XT + i*4096}")
                a("s_add_u32 s63, s63, 4096" if i else "s_nop 0")
                a(f"buffer_load_dwordx4 v{30 + (i & 1)}, s[{X}:{X+3}], s63 offen lds")

        xtile(0, self.xa)

        def dma_list(srd, ks, th=False, m0=None):
            so = ["0", "s71", "s72", "s73"]
            slot = ks & 3
            ops = []
            for i in range(4):
                pre = (f"s_mov_b32 m0, {m0}\n" if m0 else f"s_add_u32 m0, s70, {slot*4096}\n") if i == 0 else ""
                t = throttle(th) if th else ""
                if i == 0 and not t:
                    t = "s_nop 0\n"
                post = f"\nv_xor_b32 v{vD}, {(ks ^ ((ks + 1) & 7)) << 14}, v{vD}" if i == 3 else ""
                ops.append(pre + t + f"buffer_load_dwordx4 v{vD}, s[{srd}:{srd+3}], {so[i]} offen offset:{i*1024} lds" + post)
            return ops

        def dma(srd, slot, th=False, m0=None):
            for o in dma_list(srd, slot, th, m0):
                a(o)

        WL_ = lambda jb, ks: 48 + (ks * 4 + jb) * 4 if ks < 2 else W(jb, ks - 2)

        def tr_list(ks, slot, reg=W):
            return [f"ds_read_b64_tr_b16 {r2(reg(jb, ks) + 2*hh)}, v{vTR[jb >> 1]} offset:{slot*4096 + hh*512 + (jb & 1)*8}"
                    for jb in range(4) for hh in range(2)]

        def tr(ks, slot, reg=W):
            a("\n".join(tr_list(ks, slot, reg)))

        dma(WV, 0)
        self.srd(WL, 16, 131072)
        self.srd(WS, 28, 0x100000)
        self.srd(OUT, 24, 5120000)
        a(f"""
        v_xor_b32 v{vT}, v{vG}, v{vN}
        v_lshlrev_b32 v{vT}, 4, v{vT}
        v_lshl_add_u32 v{vB[0]}, v{vN}, 9, v{vT}
        s_lshl_b32 s64, s67, 6
        v_xor_b32 v{vB[0]}, s64, v{vB[0]}
        v_xor_b32 v{vB[1]}, 64, v{vB[0]}
        v_xor_b32 v{vB[2]}, 0x80, v{vB[0]}
        v_xor_b32 v{vB[3]}, 0xc0, v{vB[0]}
        v_lshrrev_b32 v{vT}, 2, v{vN}
        v_lshl_add_u32 v{vT}, v{vG}, 3, v{vT}
        v_lshlrev_b32 v{vT}, 7, v{vT}
        v_lshrrev_b32 v{vM}, 1, v{vN}
        v_and_b32 v{vM}, 4, v{vM}
        v_and_b32 v0, 3, v{vN}
        v_xor_b32 v{vM}, v{vM}, v0
        v_lshl_add_u32 v{vT}, v{vM}, 4, v{vT}
        v_add_u32 v{vTR[0]}, s70, v{vT}
        v_xor_b32 v{vTR[1]}, 64, v{vTR[0]}
        v_and_b32 v0, 31, v2
        v_lshlrev_b32 v0, 2, v0
        s_and_b32 s64, s2, {self.nrep-1}
        s_lshl_b32 s64, s64, 9
        s_lshl_b32 s65, s31, 7
        s_add_u32 s64, s64, s65
        s_add_u32 s74, s64, {WS_FLAG}
        v_lshlrev_b32 v{vM}, 4, v2
        s_lshl_b32 s75, s31, 15
        s_lshl_b32 s64, s67, 12
        s_or_b32 s75, s75, s64
        s_add_u32 s75, s75, {WS_M}
        """)
        flagload = f"buffer_load_dword v1, v0, s[{WS}:{WS+3}], s74 offen sc1"

        def mload(n):
            s = f"buffer_load_dwordx4 {r4(MR(n))}, v{vM}, s[{WS}:{WS+3}], s75 offen offset:{(n & 3)*1024} sc1"
            if n & 3 == 3:
                s += f"\ns_xor_b32 s75, s75, {((n >> 2) ^ (((n >> 2) + 1) & 7)) << 12}"
            return s

        ngrp = 8
        fafter = ngrp - 1 - self.fpos
        order = ["X"] * 5 + ["D0"] * 4
        def issue_group(g):
            dma(WV if g < 8 else WL, g & 7, self.gthr0 if g < self.gstart else (thr if g < self.gfree else 0))
            order.extend([f"D{g}"] * 4)
            self.stamp(f"Gi{g}")
            if g == fafter:
                a(flagload)
                order.append("F")
        def wait_for(tag):
            last = max(i for i, o in enumerate(order) if o == tag)
            a(f"s_waitcnt vmcnt({len(order) - 1 - last})")
        def mstart():
            wait_for("F")
            self.stamp("Gf")
            l = self.lab("mchk")
            self.wait_cnt(C_HV, 1, vZ, 16, geth=True)
            rl = self.lab("mre")
            self.cold.append(f"""
            {rl}:
            s_sub_u32 s100, s100, 1
            s_cbranch_scc1 L_end
            s_sleep {self.msleep}
            {flagload}
            s_waitcnt vmcnt(0)
            s_branch {l}
            """)
            a(f"{l}:\nv_cmp_ne_u32 vcc, s30, v1\ns_cbranch_vccnz {rl}")
            self.stamp("Gm")
            for n in range(self.mring):
                a(mload(n))
            order.extend(["M"] * self.mring)
        for g in range(1, 4):
            if g == 1:
                self.warm()
                xtile(self.xa, 5)
                a("s_barrier")
            if g == self.mbar:
                lb = self.lab("nobar")
                a(f"s_bitcmp1_b32 s2, 3\ns_cbranch_scc1 {lb}\ns_barrier\n{lb}:")
            issue_group(g)
        started = False
        for ks in range(8):
            wait_for(f"D{ks}")
            self.stamp(f"Gd{ks}")
            if ks == 1:
                self.signal(C_XT, vZ, vOne)
            tr(ks, ks & 3)
            if ks + 4 < ngrp:
                a("s_waitcnt lgkmcnt(0)")
                issue_group(ks + 4)
            if not started and ks + 4 >= ngrp - 1 and ks >= min(fafter, 7):
                mstart()
                started = True
        assert started

        def bread(tile, ks, b, r, last=2):
            a(f"ds_read_b128 {r4(r)}, v{vB[ks & 3]} offset:{tile + b*8192}")
            if b == last:
                a(f"v_xor_b32 v{vB[ks & 3]}, 0x100, v{vB[ks & 3]}")

        a("; ---- G: T = x @ M, M streamed as ready-made fragments")
        self.wait_cnt(C_XT, 4, vZ, vT)
        follow = [mload(n) for n in range(self.mring, 32)]
        follow += sum((dma_list(WL, s) for s in range(4)), [])
        for b in range(3):
            bread(XT, 0, b, BF(0, b))
        inflight = self.mring
        for ks in range(8):
            if ks < 7:
                for b in range(3):
                    bread(XT, ks + 1, b, BF((ks + 1) & 1, b))
            a(f"s_waitcnt lgkmcnt({3 if ks < 7 else 0})")
            self.stamp(f"Gt{ks}")
            for jb in range(4):
                n = 4 * ks + jb
                a(f"s_waitcnt vmcnt({inflight - 1})")
                for b in range(3):
                    c = r4(ACC(b, jb)) if ks else "0"
                    a(f"{MF} {r4(ACC(b, jb))}, {r4(MR(n))}, {r4(BF(ks & 1, b))}, {c}")
                if follow and n < 32 - self.mring + self.wlin:
                    a(follow.pop(0))
                else:
                    inflight -= 1
        self.stamp("Gt8")
        a(f"""
        s_lshl_b32 s64, s31, 3
        v_add_u32 v0, s64, v{vG}
        v_xor_b32 v0, v0, v{vN}
        v_lshlrev_b32 v0, 4, v0
        v_lshl_add_u32 v0, v{vN}, 9, v0
        v_xor_b32 v1, 64, v0
        s_mov_b32 s76, 0x00ff00ff
        s_mov_b32 s77, 0x00ff00ff
        """)

        def pack(b, h, r):
            for k in range(2):
                s = ACC(b, 2 * h + k)
                a(f"v_cvt_pk_bf16_f32 v{r+2*k}, v{s}, v{s+1}\nv_cvt_pk_bf16_f32 v{r+2*k+1}, v{s+2}, v{s+3}")

        for b in range(3):
            if b == 2:
                a("s_mov_b64 exec, s[76:77]")
            for h in range(2):
                r = 16 + (b * 2 + h) * 4
                pack(b, h, r)
                a(f"ds_write_b128 v{h}, {r4(r)} offset:{TT + b*8192}")
        a("s_mov_b64 exec, -1\ns_waitcnt lgkmcnt(0)")
        self.stamp("Gtf")
        a("s_barrier")
        self.stamp("Gbt")
        for o in follow:
            a(o)
        a(f"""
        v_lshlrev_b32 v0, 4, v{vG}
        v_and_b32 v1, 7, v{vN}
        v_lshl_add_u32 v0, v1, 9, v0
        v_and_b32 v1, 8, v{vN}
        v_lshl_add_u32 v0, v1, 3, v0
        s_mul_i32 s74, s1, 20480
        s_lshl_b32 s64, s31, 7
        s_add_u32 s74, s74, s64
        s_waitcnt vmcnt(8)
        """)
        tr(0, 0, WL_)
        tr(1, 1, WL_)
        a("s_waitcnt lgkmcnt(8)")
        dma(WL, 4)
        a("s_waitcnt lgkmcnt(0)")
        dma(WL, 5)
        a(f"""
        s_lshl_b32 s64, s31, 12
        s_add_u32 s78, s64, {TT}
        s_add_u32 s79, s64, {LIST}
        s_cmp_eq_u32 s31, 3
        s_cselect_b32 s79, {TT + 16384}, s79
        s_sub_u32 s76, s78, s70
        s_sub_u32 s77, s79, s78
        """)
        vB8 = vB + [40, 41, 42, 43]
        for k in range(4):
            a(f"v_xor_b32 v{40+k}, 0x100, v{vB[k]}")
        a("s_barrier")
        self.stamp("Gbv")
        a("; ---- G: attention aggregate @ wv, w_l moves into the freed registers")
        dma(WL, 6, m0="s78")
        dma(WL, 7, m0="s79")
        lo = "s_setprio 0"
        hi = f"s_setprio {self.gprio}"
        a(lo)

        def wait_prog(target, sleep, off=C_AG):
            l = self.lab("prog")
            a(f"""
            {l}:
            ds_read_b128 v[16:19], v{vZ} offset:{off}
            s_waitcnt lgkmcnt(0)
            v_min3_u32 v16, v16, v17, v18
            v_min_u32 v16, v16, v19
            v_cmp_gt_u32 vcc, {target}, v16
            s_cbranch_vccnz {self.retry(l, sleep)}
            """)

        if self.gwait:
            wait_prog(self.gwait, 1)
        self.stamp("Gv0")
        rd = lambda tile, ks, b, r: f"ds_read_b128 {r4(r)}, v{vB8[ks]} offset:{tile + b*8192}"

        def weave(mf, fill):
            fill = list(fill)
            for m in mf:
                a(m)
                if fill:
                    a(fill.pop(0))
            for f in fill:
                a(f)

        for b in range(3):
            a(rd(XT, 0, b, BF(0, b)))
        a("s_waitcnt vmcnt(8)")
        young = 0
        for ks in range(8):
            a(f"s_waitcnt lgkmcnt({young})")
            mf = [f"{MF} {r4(ACC(b, jb))}, {r4(W(jb, ks))}, {r4(BF(ks & 1, b))}, {r4(ACC(b, jb)) if ks else 0}"
                  for jb in range(4) for b in range(3)]
            fill = [rd(XT, ks + 1, b, BF((ks + 1) & 1, b)) for b in range(3)] if ks < 7 else []
            young = 0
            if 1 <= ks <= 4:
                fill += tr_list(ks + 1, (ks + 1) & 3, WL_)
                young = 8
            if ks >= 6:
                d = 76 if ks == 6 else 77
                t = tr_list(ks, 0, WL_)
                t[0] = f"s_waitcnt vmcnt({4 * (7 - ks)})\n" + t[0]
                fill = [f"v_add_u32 v{vTR[0]}, s{d}, v{vTR[0]}\nv_add_u32 v{vTR[1]}, s{d}, v{vTR[1]}"] + fill + t
                young = 8
            weave(mf, fill)
        self.stamp("Gwl")
        a("; ---- G: edge aggregate @ w_l per row block, pack, store")
        FB = lambda ks: 16 + ks * 4 if ks < 6 else (44 if ks == 6 else 252)
        sf = " sc1"
        st = lambda r: f"buffer_store_dwordx4 {r4(r)}, v0, s[{OUT}:{OUT+3}], s74 offen{sf}"

        def packl(b, h, r):
            return [f"v_cvt_pk_bf16_f32 v{r+k}, v{ACC(b, 2*h) + 2*k}, v{ACC(b, 2*h) + 2*k + 1}" for k in range(4)]

        def epi(b, ra, rb):
            o = packl(b, 1, rb) + packl(b, 0, ra)
            if b < 2:
                o += packl(b, 0, 240)
            o += [f"v_mov_b32_dpp v{ra+k}, v{rb+k} row_ror:8 row_mask:0xf bank_mask:0xc" for k in range(4)]
            if b < 2:
                o += [f"v_mov_b32_dpp v{rb+k}, v{240+k} row_ror:8 row_mask:0xf bank_mask:0x3" for k in range(4)]
            return o

        a("s_add_u32 s75, s74, 4096\ns_add_u32 s76, s74, 8192\ns_add_u32 s77, s74, 12288\ns_add_u32 s78, s74, 16384")
        st = lambda r, i: f"buffer_store_dwordx4 {r4(r)}, v0, s[{OUT}:{OUT+3}], s{74+i} offen{sf}"
        for n, b in enumerate((2, 0, 1)):
            if n == 2:
                a(f"v_lshlrev_b32 v1, 4, v{vG}\nv_lshl_add_u32 v1, v{vN}, 9, v1")
            if n == 2:
                a("s_barrier")
            else:
                wait_prog((1, 3)[n], self.gsleep)
            self.stamp(f"Ga{n}")
            if n == 2:
                a(hi)
            for ks in range(8):
                a(rd(AG, ks, b, FB(ks)))
            mf = []
            if n == 2:
                st2 = lambda r, h: f"buffer_store_dwordx4 {r4(r)}, v1, s[{OUT}:{OUT+3}], s76 offen offset:{64*h}{sf}"
                for h in (1, 0):
                    for ks in range(8):
                        for i in range(2):
                            jb = 2 * h + i
                            w = f"s_waitcnt lgkmcnt({7-ks})\n" if i == 0 and h == 1 else ""
                            mf.append(w + f"{MF} {r4(ACC(b, jb))}, {r4(WL_(jb, ks))}, {r4(FB(ks))}, {r4(ACC(b, jb))}")
                weave(mf, [""] * 23 + packl(b, 1, 236) + [st2(236, 1)])
                a("s_nop 6")
                a("\n".join(packl(b, 0, 232)) + "\n" + st2(232, 0))
                continue
            for ks in range(8):
                for i, jb in enumerate((2, 3, 0, 1)):
                    w = f"s_waitcnt lgkmcnt({7-ks})\n" if i == 0 else ""
                    mf.append(w + f"{MF} {r4(ACC(b, jb))}, {r4(WL_(jb, ks))}, {r4(FB(ks))}, {r4(ACC(b, jb))}")
            weave(mf, epi(2, 244, 248) if n == 1 else [])
            if n == 1:
                a("s_nop 4")
                a("\n".join(epi(0, 224, 228)))
                wait_prog(1, self.gsleep, C_DR)
                self.stamp("Gst")
                a(f"{hi}\n{st(244, 4)}\n{st(224, 0)}\n{st(228, 1)}\n{lo}")
        l = self.lab("noepoch")
        a(f"""
        s_or_b32 s64, s2, s3
        s_cbranch_scc1 {l}
        v_mov_b32 v1, s30
        s_mov_b64 exec, 1
        {"" if self.noepoch else f"buffer_store_dword v1, v{vZ}, s[{WS}:{WS+3}], 0 offen sc1"}
        {l}:
        """)
        if self.prof:
            a("s_mov_b64 exec, -1\ns_waitcnt vmcnt(0)")
        self.stamp("Gend")
        self.dump()
        a("s_endpgm")
        self.flush_cold()

    def sparse_waves(self):
        a = self.a
        R = self.lag
        AT = lambda t, h: 176 + t * 8 + 4 * h
        RG = lambda u, h: 48 + ((u >> 1) & 7) * 16 + 8 * h + 4 * (u & 1)
        vN, vG, vZ, vOne = 3, 4, 5, 6
        vLo, vEs, vFa = 7, 0, 2
        vL16 = 8
        MSK, vIx, ACC = 12, 14, 16
        A = [24, 28]
        vJ, vPa = 1, 10
        FS = lambda j: 176 + 2 * j
        EA = [32, 34, 36, 38]
        EW = [33, 35, 37, 39]
        vW, vAd = 205, 11
        X, DS, IB, TG, MK = 32, 36, 40, 44, 48
        sIdx = 27
        sP = [10, 11, 12, 13, 14]
        sK = [15, 16, 17, 18, 19]
        sQ = [20, 21, 22, 23, 24]
        sSlow, sJ, sT, sG = 25, 26, 49, 50
        sM, sF, sD, sGam, sRet, sMode, sDr, sAnc = 52, 53, 56, 57, 54, 62, 70, 72

        a(f"""
        s_setprio 3
        v_and_b32 v{vL16}, 0xfff, v8
        v_and_b32 v9, 0x3ff, v10
        s_lshr_b32 s66, s2, 4
        s_lshl_b32 s66, s66, 3
        s_and_b32 s67, s2, 7
        s_or_b32 s68, s66, s67
        s_mul_i32 s64, s68, 5120
        v_add_u32 v40, s64, v{vL16}
        s_add_u32 s64, s64, 4096
        v_add_u32 v41, s64, v9
        """)
        a(f"""
        v_lshrrev_b32 v42, 2, v{vN}
        v_and_b32 v43, 3, v{vN}
        v_lshl_add_u32 v42, v42, 4, v43
        s_lshl_b32 s64, s31, 1
        v_mov_b32 v43, s64
        v_lshlrev_b32 v44, 1, v43
        v_cmp_gt_u32 vcc, 8, v{vN}
        s_mul_i32 s65, s1, 640
        v_lshlrev_b32 v{vLo}, 4, v{vN}
        v_cndmask_b32 v43, v43, v44, vcc
        v_add_lshl_u32 v42, v42, v43, 4
        v_lshl_add_u32 v42, v{vG}, 2, v42
        v_add_u32 v42, s65, v42
        v_min_u32 v42, 159996, v42
        """)
        lm, lj = self.lab("mrole"), self.lab("roled")
        eload = f"global_load_dword v{vEs}, v42, s[10:11] nt"
        a(f"""
        s_bitcmp1_b32 s2, 3
        s_cbranch_scc0 {lm}
        s_waitcnt lgkmcnt(0)
        {eload}
        global_load_dwordx4 v[48:51], v40, s[8:9] nt
        global_load_dword v52, v41, s[8:9] nt
        global_load_dwordx4 v[56:59], v40, s[6:7] nt
        global_load_dword v60, v41, s[6:7] nt
        {lj}:
        s_mov_b32 s{sIdx}, s68
        s_mov_b32 s26, 0
        s_cmp_lg_u32 s31, 0
        s_cbranch_scc1 {lj}_b
        s_load_dword s30, s[28:29], 0
        {lj}_b:
        s_barrier
        """)
        mrole = Asm()
        mrole(f"""
        {lm}:
        v_lshrrev_b32 v43, 5, v2
        s_lshl_b32 s66, s31, 2
        v_add_u32 v44, s66, v43
        v_and_b32 v46, 31, v2
        v_xor_b32 v46, v46, v44
        v_lshlrev_b32 v46, 4, v46
        v_lshl_add_u32 v46, v43, 9, v46
        s_bfe_u32 s64, s68, 0x30002
        s_lshl_b32 s64, s64, 14
        s_lshr_b32 s65, s68, 5
        s_lshl_b32 s65, s65, 15
        s_bfe_u32 s66, s68, 0x10001
        s_lshl_b32 s66, s66, 14
        s_add_u32 s65, s65, s66
        s_and_b32 s66, s68, 1
        s_lshl_b32 s66, s66, 11
        s_add_u32 s65, s65, s66
        s_lshl_b32 s66, s31, 12
        v_add_u32 v46, s66, v46
        v_add_u32 v44, s64, v46
        v_add_u32 v46, s65, v46
        v_xor_b32 v45, 0x420, v44
        v_xor_b32 v47, 0x420, v46
        s_lshl_b32 s66, s31, 11
        s_waitcnt lgkmcnt(0)
        {eload}
        """)
        MQ, MKT = TT, DIS
        for base, v, ptr, off in ((MKT, 46, 20, 0), (MQ, 44, 18, 0), (MQ + 8192, 44, 18, 2048)):
            for i in range(2):
                mrole(f"s_add_u32 m0, s66, {base + 1024*i - off}\ns_nop 0\nglobal_load_lds_dwordx4 v{v+i}, s[{ptr}:{ptr+1}] offset:{off}")
        mrole(f"s_branch {lj}")
        self.stamp("Sb0")
        self.srd(X, 4, 5120000)
        self.srd(DS, 14, 20000)
        self.srd(IB, 28, 125 * 16384, add=WS_INBOX)
        a(f"""
        v_and_b32 v40, 8, v{vN}
        v_lshlrev_b32 v40, 1, v40
        v_mov_b32 v41, 0xffff
        v_lshlrev_b32 v40, v40, v41
        s_mov_b32 s64, 0x0f0f0f0f
        s_mov_b32 s65, 0x0f0f0f0f
        v_cndmask_b32 v{MSK}, 0, v40, s[64:65]
        v_xor_b32 v{MSK+1}, v40, v{MSK}
        v_and_b32 v{vIx}, 3, v{vN}
        v_mul_u32_u24 v{vIx}, 0x5555, v{vIx}
        """)
        lh = self.lab("tagged")
        a(f"""
        s_cmp_lg_u32 s31, 0
        s_cbranch_scc1 {lh}
        s_waitcnt lgkmcnt(0)
        s_mul_i32 s30, s30, 0x9E3779B1
        s_add_u32 s30, s30, 0x7F4A7C15
        v_mov_b32 v40, 1
        v_mov_b32 v41, s30
        ds_write_b64 v{vZ}, v[40:41] offset:{C_HV}
        {lh}:
        """)

        def tags(dst):
            dst(f"""
            s_and_b32 s{TG}, s30, 0xffc00000
            s_lshl_b32 s{TG+1}, s30, 10
            s_and_b32 s{TG+1}, s{TG+1}, 0xffc00000
            s_lshl_b32 s{TG+2}, s30, 20
            s_and_b32 s{TG+2}, s{TG+2}, 0xffc00000
            s_lshl_b32 s{TG+3}, s30, 22
            """)

        lm2, lj2 = self.lab("mwork"), self.lab("worked")
        a(f"s_bitcmp1_b32 s2, 3\ns_cbranch_scc0 {lm2}")
        a("; ---- S: bin 1280 edges by destination bucket and publish them with the launch tag")
        a(f"""
        v_mov_b32 v43, 4
        v_mov_b32 v44, {OVF}
        s_mov_b32 s64, 0x3f0001
        v_lshrrev_b32 v40, 6, v{vL16}
        v_and_b32 v41, 0x30, v{vL16}
        v_lshl_add_u32 v40, v40, 14, v41
        s_lshl_b32 s68, s{sIdx}, 6
        s_add_u32 s69, s68, 0x100000
        s_add_u32 s70, s68, 8192
        s_add_u32 s71, s69, 8192
        s_mov_b32 s65, 0x203c
        s_waitcnt vmcnt(2)
        """)
        for k in range(5):
            a(f"""
            v_mul_u32_u24 v{64+k}, 52429, v{48+k}
            v_lshrrev_b32 v{72+k}, 22, v{64+k}
            v_lshlrev_b32 v{80+k}, 2, v{72+k}
            ds_add_rtn_u32 v{80+k}, v{80+k}, v43 offset:{BCNT}
            """)
        for k in range(5):
            a(f"""
            v_lshrrev_b32 v{64+k}, 21, v{64+k}
            v_mad_u32_u24 v{64+k}, v{64+k}, 24, v{48+k}
            v_mul_u32_u24 v{64+k}, 0x8001, v{64+k}
            v_bfe_u32 v{88+k}, v{72+k}, 1, 2
            v_lshl_or_b32 v{72+k}, v{72+k}, 2, v{88+k}
            v_lshlrev_b32 v{72+k}, 4, v{72+k}
            """)
        a("s_waitcnt vmcnt(0)")
        for k in range(5):
            a(f"v_lshlrev_b32 v{56+k}, 1, v{56+k}\nv_and_or_b32 v{64+k}, v{64+k}, s64, v{56+k}")
        a("s_waitcnt lgkmcnt(0)")
        for k in range(5):
            a(f"""
            v_cmp_gt_u32 vcc, 124, v{80+k}
            v_min_u32 v{80+k}, 124, v{80+k}
            v_lshl_or_b32 v{80+k}, v{80+k}, 7, v{80+k}
            v_cndmask_b32 v{64+k}, v44, v{64+k}, vcc
            v_bitop3_b32 v{80+k}, v{80+k}, s65, v{72+k} bitop3:0x6a
            ds_write_b32 v{80+k}, v{64+k} offset:{BST}
            """)
        a(f"s_waitcnt lgkmcnt(0)\ns_barrier\nds_read_b32 v44, v{vZ} offset:{C_H}")
        for i in range(4):
            a(f"ds_read_b128 {r4(48 + 4*i)}, v{vL16} offset:{BST + i*4096}")
        a("s_waitcnt lgkmcnt(4)\nv_readfirstlane_b32 s30, v44\ns_nop 0")
        tags(a)
        for i in range(4):
            a(f"s_waitcnt lgkmcnt({3-i})")
            ls = self.lab("nosec")
            if i < 2:
                a(f"v_cmp_eq_u32 vcc, {EMPTY}, v{51+4*i}")
            else:
                a(f"s_not_b64 exec, s[{68+2*i}:{69+2*i}]\ns_cbranch_scc0 {ls}")
            for k in range(4):
                a(f"v_or_b32 v{48+4*i+k}, s{TG+k}, v{48+4*i+k}")
            a(f"buffer_store_dwordx4 {r4(48 + 4*i)}, v40, s[{IB}:{IB+3}], s{68+i} offen sc1")
            a(f"s_wqm_b64 s[{72+2*i}:{73+2*i}], vcc" if i < 2 else f"{ls}:")
        a("s_mov_b64 exec, -1")
        a(f"""
        s_cmp_ge_u32 s2, {NMAIN}
        s_cbranch_scc1 L_end
        {lj2}:
        """)
        mrole(f"""
        {lm2}:
        v_xor_b32 v44, v{vG}, v{vN}
        v_lshlrev_b32 v44, 4, v44
        v_lshl_add_u32 v44, v{vN}, 9, v44
        v_xor_b32 v45, 64, v44
        v_xor_b32 v46, 0x80, v44
        v_xor_b32 v47, 0xc0, v44
        s_cmp_lg_u32 s31, 0
        s_waitcnt vmcnt(0)
        s_barrier
        s_cbranch_scc1 {lj2}_w
        """)

        def mread(k):
            for n, base in enumerate((MKT, MQ, MQ + 8192)):
                mrole(f"ds_read_b128 {r4(48 + 12*k + 4*n)}, v{44 + (k & 3)} offset:{base + 256*(k >> 2)}")

        for k in range(3):
            mread(k)
        for k in range(8):
            if k < 5:
                mread(k + 3)
            mrole(f"s_waitcnt lgkmcnt({3 * min(3, 7 - k)})")
            for jj in range(2):
                c = r4(ACC + 4 * jj) if k else "0"
                mrole(f"{MF} {r4(ACC + 4*jj)}, {r4(52 + 12*k + 4*jj)}, {r4(48 + 12*k)}, {c}")
        mrole(f"""
        s_lshl_b32 s64, s{sIdx}, 10
        s_add_u32 s64, s64, {WS_M}
        v_lshl_add_u32 v40, v2, 4, s64
        s_lshl_b32 s64, s{sIdx}, 2
        s_add_u32 s64, s64, {WS_FLAG}
        v_lshl_add_u32 v41, v2, 9, s64
        v_mov_b32 v42, s30
        s_nop 1
        """)
        for k in range(4):
            mrole(f"v_cvt_pk_bf16_f32 v{44+k}, v{ACC+2*k}, v{ACC+2*k+1}")
        mrole("global_store_dwordx4 v40, v[44:47], s[28:29] sc1\ns_barrier")
        if self.mfree:
            mrole("s_mov_b32 s26, 2")
        mrole(f"""
        s_waitcnt vmcnt(0)
        s_mov_b64 exec, {hex((1 << self.nrep) - 1)}
        global_store_dword v41, v42, s[28:29] sc1
        s_mov_b64 exec, -1
        """)
        mrole(f"""
        s_branch {lj2}
        {lj2}_w:
        s_barrier
        s_branch {lj2}
        """)
        self.stamp("Srole")
        a("; ---- S: attention rows, deg_inv_sqrt table, incoming bins -> per node-pair lists")
        a(f"""
        v_lshlrev_b32 v{vEs}, 9, v{vEs}
        s_setprio {self.sprio}
        s_lshl_b32 s64, s31, 10
        s_lshr_b32 s10, s1, 1
        s_lshl_b32 s10, s10, 14
        s_add_u32 s11, s10, 4096
        s_add_u32 s12, s10, 8192
        s_add_u32 s13, s10, 12288
        v_cmp_gt_u32 vcc, 0xf40, v{vL16}
        s_mov_b64 s[14:15], vcc
        """)

        def arow(t, th):
            a(f"v_add_u32_dpp v9, v{vEs}, v{vLo} row_newbcast:{t} {DPPF}")
            if th and self.sthr and self.mfree:
                lk = self.lab("loose")
                a(f"s_cmp_eq_u32 s26, 2\ns_cbranch_scc1 {lk}\ns_waitcnt vmcnt({self.sthr - 2})\n{lk}:\ns_waitcnt vmcnt({self.mfree - 2})")
            elif th and self.sthr:
                a(f"s_waitcnt vmcnt({self.sthr - 2})")
            for h in range(2):
                a(f"buffer_load_dwordx4 {r4(AT(t, h))}, v9, s[{X}:{X+3}], 0 offen offset:{256*h}")

        nd = 0
        for t in range(self.ipos):
            arow(t, t >= self.sfree)
            self.stamp(f"Sr{t}")
            while nd < 5 and (nd + 1) * self.ipos <= 5 * (t + 1):
                a(f"s_add_u32 m0, s64, {DIS + nd*4096}\ns_mov_b32 s65, {nd*4096}")
                a(f"buffer_load_dwordx4 v{vL16}, s[{DS}:{DS+3}], s65 offen lds")
                nd += 1
        assert nd == 5
        late = list(range(self.ipos, 10))
        late, late2 = late[:len(late) - self.lpos], late[len(late) - self.lpos:]
        self.stamp("Sat")
        l = self.lab("ipoll")
        iload = lambda i: f"buffer_load_dwordx4 {r4(48 + 4*i)}, v{vL16}, s[{IB}:{IB+3}], s{10+i} offen sc1"
        a(f"{l}:\n{iload(0)}\ns_mov_b64 exec, s[14:15]\n{iload(1)}\ns_mov_b64 exec, -1")
        self.wait_cnt(C_HV, 1, vZ, 44, geth=True)
        tags(a)
        a(f"s_and_b32 s64, s1, 1\ns_lshl_b32 s64, s64, 21\ns_xor_b32 s17, s64, {EMPTY}")
        for k in range(4):
            a(f"s_or_b32 s{TG+k}, s{TG+k}, s64\nv_mov_b32 v{68+k}, s17")
        a(f"s_mov_b32 s16, {20 << 16}\nv_mov_b32 v42, 2")

        def decode(i, m):
            for k in range(4):
                n = 4 * i + k
                a(f"v_cmp_gt_u32 s[{m+2*k}:{m+2*k+1}], s16, v{64+n}")
                a(f"v_lshlrev_b32_sdwa v{80+n}, 2, v{64+n} dst_sel:DWORD dst_unused:UNUSED_PAD src0_sel:DWORD src1_sel:WORD_1")

        for i in range(2):
            a(f"s_waitcnt vmcnt({1-i})")
            if i == 1:
                a("s_mov_b64 exec, s[14:15]")
            for k in range(4):
                a(f"v_xor_b32 v{64+4*i+k}, s{TG+k}, v{48+4*i+k}")
            if i == 1:
                a("s_mov_b64 exec, -1\nv_or3_b32 v40, v40, v68, v69\nv_or3_b32 v40, v40, v70, v71")
            else:
                a("v_or3_b32 v40, v64, v65, v66\nv_or_b32 v40, v40, v67")
            a(f"v_cmp_eq_u32 s[{72+2*i}:{73+2*i}], s17, v{67+4*i}")
            if i == 0:
                decode(0, MK)
        a(f"v_cmp_le_u32 vcc, 0x400000, v40\ns_cbranch_vccnz {self.retry(l, 4)}")
        self.stamp("Sin")
        for i in range(2):
            ln = self.lab("nosec")
            a(f"""
            s_wqm_b64 s[{72+2*i}:{73+2*i}], s[{72+2*i}:{73+2*i}]
            s_not_b64 exec, s[{72+2*i}:{73+2*i}]
            s_cbranch_scc0 {ln}
            {iload(2 + i)}
            {ln}:
            """)
        a("s_mov_b64 exec, -1")
        decode(1, MK + 8)
        for n in range(8):
            a(f"s_mov_b64 exec, s[{MK+2*n}:{MK+2*n+1}]\nds_add_rtn_u32 v{80+n}, v{80+n}, v42 offset:{LCNT}")
        a("s_mov_b64 exec, -1")
        nla = (len(late) + 1) // 2
        for t in late[:nla]:
            arow(t, False)
        for n in range(8):
            if n % 4 == 0:
                a("s_waitcnt lgkmcnt(4)")
            a(f"s_mov_b64 exec, s[{MK+2*n}:{MK+2*n+1}]\nds_write_b16 v{80+n}, v{64+n}")
        for i in (2, 3):
            lp, ld, lr = (self.lab(x) for x in ("sec", "secdone", "secload"))
            a(f"s_not_b64 exec, s[{68+2*i}:{69+2*i}]\ns_cbranch_scc0 {ld}\ns_waitcnt vmcnt({2 * nla})\n{lp}:")
            for k in range(4):
                a(f"v_xor_b32 v{64+4*i+k}, s{TG+k}, v{48+4*i+k}")
            a(f"""
            v_or3_b32 v40, v{64+4*i}, v{65+4*i}, v{66+4*i}
            v_or_b32 v40, v40, v{67+4*i}
            v_cmp_le_u32 vcc, 0x400000, v40
            s_cbranch_vccnz {self.retry(lr, 2)}
            v_and_b32 v40, {OVF}, v{67+4*i}
            v_cmp_eq_u32 vcc, {OVF}, v40
            """)
            decode(i, MK + 16)
            for k in range(4):
                a(f"s_mov_b64 exec, s[{MK+16+2*k}:{MK+17+2*k}]\nds_add_rtn_u32 v{80+4*i+k}, v{80+4*i+k}, v42 offset:{LCNT}")
            a(f"s_mov_b64 exec, vcc\nds_write_b32 v{vZ}, v{vOne} offset:{C_OVF}\ns_waitcnt lgkmcnt(0)")
            for k in range(4):
                a(f"s_mov_b64 exec, s[{MK+16+2*k}:{MK+17+2*k}]\nds_write_b16 v{80+4*i+k}, v{64+4*i+k}")
            a(f"{ld}:")
            self.cold.append(f"{lr}:\n{iload(i)}\ns_waitcnt vmcnt(0)\ns_branch {lp}")
        self.signal(C_LIST, vZ, vOne)
        self.stamp("Slw")
        for t in late[(len(late) + 1) // 2:]:
            arow(t, False)
        a(f"""
        s_lshl_b32 s{sQ[0]}, s31, 1
        s_add_u32 s{sQ[1]}, s{sQ[0]}, 1
        s_add_u32 s{sQ[2]}, s{sQ[0]}, 8
        s_add_u32 s{sQ[3]}, s{sQ[0]}, 9
        s_add_u32 s{sQ[4]}, s31, 16
        v_add_u32 v47, -1, v{vN}
        v_bfe_u32 v40, v47, 1, 1
        v_and_b32 v41, 1, v47
        v_lshl_add_u32 v40, v40, 3, v41
        v_add_u32 v40, s{sQ[0]}, v40
        v_mov_b32 v41, s{sQ[4]}
        v_cmp_ne_u32 vcc, 0, v{vN}
        v_min_u32 v47, 19, v2
        v_mul_u32_u24 v46, {LSTRIDE}, v47
        v_cndmask_b32 v40, v41, v40, vcc
        v_mul_u32_u24 v41, {LSTRIDE}, v40
        v_add_u32 v41, {LIST}, v41
        v_lshlrev_b32 v40, 2, v40
        v_add_u32 v46, {LIST + 2*LCAP}, v46
        v_lshlrev_b32 v47, 2, v47
        v_lshlrev_b32 v43, 3, v{vN}
        v_lshl_add_u32 v43, v{vG}, 1, v43
        """)
        self.wait_cnt(C_LIST, 4, vZ, 44)
        self.stamp("Sls")
        a(f"""
        ds_read_b32 v44, v40 offset:{LCNT}
        ds_read_b32 v47, v47 offset:{LCNT}
        ds_read_b32 v45, v{vZ} offset:{C_OVF}
        s_waitcnt lgkmcnt(2)
        v_sub_u32 v44, v44, v41
        v_max_u32 v44, 18, v44
        s_waitcnt lgkmcnt(0)
        v_cmp_gt_u32 vcc, v47, v46
        v_add_u32_dpp v48, v44, v44 row_shr:1 {DPPF} bound_ctrl:1
        v_readfirstlane_b32 s{sSlow}, v45
        s_or_b32 s64, vcc_lo, vcc_hi
        v_add_u32_dpp v48, v48, v48 row_shr:2 {DPPF} bound_ctrl:1
        s_or_b32 s{sSlow}, s{sSlow}, s64
        s_mov_b32 s{sF}, 0
        v_add_u32_dpp v48, v48, v48 row_shr:4 {DPPF} bound_ctrl:1
        v_sub_u32 v44, v48, v44
        v_sub_u32 v44, v41, v44
        """)
        BT, BU = 160, 40
        for j in range(5):
            a(f"v_readlane_b32 s{sP[j]}, v48, {j}")
        for j in range(5):
            a(f"v_add_u32_dpp v{BT+j}, v44, v43 row_newbcast:{j} {DPPF}")
        a(f"""
        s_add_u32 s{sG}, s{sP[4]}, 14
        s_lshr_b32 s{sG}, s{sG}, 4
        s_cmp_gt_u32 s{sG}, 32
        s_cselect_b32 s{sSlow}, 1, s{sSlow}
        s_max_u32 s{sG}, s{sG}, {8 + R // 2}
        """)

        def build(chunks):
            for c in chunks:
                a(f"v_add_u32 v{BU+c}, {128*c}, v43")
                for j in range(4):
                    a(f"v_cmp_le_u32 s[{64+2*j}:{65+2*j}], s{sP[j]}, v{BU+c}")
                for j in range(4):
                    a(f"v_cndmask_b32 v{BU+c}, v{BT if j == 0 else BU+c}, v{BT+1+j}, s[{64+2*j}:{65+2*j}]")
                a(f"ds_read_u16 v{BU+c}, v{BU+c} offset:{128*c}")
            for n, c in enumerate(chunks):
                a(f"""
                s_waitcnt lgkmcnt({len(chunks) - 1})
                v_and_b32 v{EA[c]}, 0x7ffe, v{BU+c}
                ds_read_u16 v{EW[c]}, v{EA[c]} offset:{DIS}
                v_lshlrev_b32 v{EA[c]}, 8, v{EA[c]}
                v_lshlrev_b32 v{BU+c}, 4, v{BU+c}
                """)

        def finish(chunks):
            for c in chunks:
                a(f"v_lshlrev_b32 v{EW[c]}, v{BU+c}, v{EW[c]}\nds_bpermute_b32 v{EW[c]}, v46, v{EW[c]}")

        def issue(u, halves=(0, 1)):
            a(f"v_add_u32_dpp v{vAd}, v{EA[u // 16]}, v{vLo} row_newbcast:{u % 16} {DPPF}")
            for h in halves:
                a(f"buffer_load_dwordx4 {r4(RG(u, h))}, v{vAd}, s[{X}:{X+3}], 0 offen offset:{256*h}")

        build([0, 1, 2, 3])
        self.stamp("Sent")
        for t in late2:
            arow(t, False)
        for u in range(self.npre):
            issue(u)
        pend, pend2 = list(range(self.npre, 12)), list(range(12, 8 + R))
        a(f"s_mov_b32 s{sGam}, 0")
        for j in range(4, -1, -1):
            a(f"""
            s_sub_u32 s64, s{sP[j]}, 18
            s_lshr_b32 s65, s64, 4
            s_bitset1_b32 s{sF}, s65
            s_and_b32 s64, s64, 14
            s_lshl4_add_u32 s{sGam}, s{sGam}, s64
            s_and_b32 s65, s{sQ[j]}, 7
            s_lshl_b32 s65, s65, 5
            s_lshl_b32 s{sK[j]}, s{sQ[j]}, 10
            s_or_b32 s{sK[j]}, s{sK[j]}, s65
            """)
        TA = [144, 145, 146, 147, 148, 149]
        P = lambda t: 150 + t
        TF = lambda s, h: 160 + s * 8 + 4 * h
        a(f"""
        s_sub_u32 s64, s{sG}, {R // 2 + 1}
        s_lshl_b32 s{sD}, 1, s64
        s_or_b32 s{sM}, s{sD}, s{sF}
        v_and_b32 v46, 1, v{vN}
        v_lshl_add_u32 v46, v{vG}, 1, v46
        v_and_b32 v46, 3, v46
        v_and_b32 v47, 14, v{vN}
        v_lshl_add_u32 v46, v46, 4, v47
        v_lshrrev_b32 v47, 1, v{vG}
        v_add_lshl_u32 v46, v46, v47, 2
        v_lshrrev_b32 v44, 1, v{vG}
        v_mul_u32_u24 v44, 528, v44
        v_xor_b32 v44, v44, v{vLo}
        v_and_b32 v45, 1, v{vG}
        v_lshl_or_b32 v{vFa}, v45, 3, v44
        v_xor_b32 v{TA[0]}, s{sK[0]}, v{vLo}
        v_xor_b32 v{TA[2]}, s{sK[1]}, v{vLo}
        v_xor_b32 v{TA[4]}, s{sK[4]}, v{vLo}
        v_xor_b32 v{TA[1]}, 528, v{TA[0]}
        v_xor_b32 v{TA[3]}, 528, v{TA[2]}
        v_xor_b32 v{TA[5]}, 528, v{TA[4]}
        s_mul_i32 s64, s1, 80
        s_add_u32 s64, s64, {DIS}
        v_and_b32 v45, 2, v{vG}
        v_add_u32 v{vEs}, s64, v45
        s_getpc_b64 s[{sAnc}:{sAnc+1}]
        L_anc:
        v_lshlrev_b32 v{vG}, 2, v{vG}
        s_mov_b32 s{sMode}, L_fp1-L_anc
        s_mov_b32 s{sMode+1}, L_fp1-L_fp0
        s_mov_b32 s{sDr}, L_dr1-L_anc
        s_mov_b32 s{sDr+1}, L_dr1-L_dr0
        s_mov_b32 s{sJ}, 0
        v_mov_b32 v{vJ}, 0
        s_lshl_b32 s64, s31, 2
        v_mov_b32 v{vPa}, s64
        v_and_b32 v9, 8, v{vN}
        v_lshlrev_b32 v9, 1, v9
        s_mov_b32 s66, 0x22222222
        s_mov_b32 s67, 0x22222222
        s_mov_b32 s68, 0x44444444
        s_mov_b32 s69, 0x44444444
        """)
        for t in range(0, 10, 2):
            a(f"v_mov_b64 {r2(P(t))}, 0")
        for k in range(4):
            a(f"v_mov_b64 {r2(ACC + 2*k)}, 0")
        a("s_waitcnt lgkmcnt(0)")
        finish([0, 1, 2, 3])
        a(f"s_waitcnt vmcnt({2 * self.npre}) lgkmcnt(0)")
        self.stamp("Srdy")
        a("s_barrier")
        self.stamp("Sbt")

        def tread(t):
            ad, off = (TA[t & 3], 8192 * (t >> 2)) if t < 8 else (TA[t - 4], 0)
            for h in range(2):
                a(f"ds_read_b128 {r4(TF(t & 1, h))}, v{ad} offset:{TT + off + 256*h}")

        def level1(t):
            a(f"v_add_f32_dpp v{P(t)}, v{P(t)}, v{P(t)} row_ror:8 row_mask:0xf bank_mask:0x3")
            a(f"v_add_f32_dpp v{P(t)}, v{P(t+1)}, v{P(t+1)} row_ror:8 row_mask:0xf bank_mask:0xc")

        def level2(t):
            a(f"v_add_f32_dpp v{P(t)}, v{P(t)}, v{P(t)} row_half_mirror row_mask:0xf bank_mask:0x5")
            if t < 8:
                a(f"v_add_f32_dpp v{P(t)}, v{P(t+2)}, v{P(t+2)} row_half_mirror row_mask:0xf bank_mask:0xa")

        tread(0)
        for t in range(10):
            if t < 9:
                tread(t + 1)
            a(f"s_waitcnt lgkmcnt({2 if t < 9 else 0})")
            for h in range(2):
                for k in range(4):
                    a(f"v_dot2c_f32_bf16 v{P(t)}, v{AT(t, h)+k}, v{TF(t & 1, h)+k}")
            if t >= 2 and t % 2 == 0:
                level1(t - 2)
            if t in (5, 9):
                level2(t - 5)
            for _ in range(-(-len(pend) // (10 - t)) if t >= self.slate else 0):
                issue(pend.pop(0))
        self.stamp("Sdot")
        vE = P(0)
        a(f"""
        v_add_f32_dpp v{P(0)}, v{P(0)}, v{P(0)} quad_perm:[1,0,3,2] {DPPF}
        s_nop 0
        """)
        level1(8)
        a(f"""
        v_add_f32_dpp v{P(4)}, v{P(4)}, v{P(4)} quad_perm:[1,0,3,2] {DPPF}
        v_add_f32_dpp v{P(0)}, v{P(0)}, v{P(0)} quad_perm:[2,3,0,1] {DPPF}
        """)
        level2(8)
        a(f"""
        v_add_f32_dpp v{P(4)}, v{P(4)}, v{P(4)} quad_perm:[2,3,0,1] {DPPF}
        s_nop 0
        v_add_f32_dpp v{P(8)}, v{P(8)}, v{P(8)} quad_perm:[1,0,3,2] {DPPF}
        v_cndmask_b32 v{vE}, v{vE}, v{P(4)}, s[66:67]
        s_nop 0
        v_add_f32_dpp v{P(8)}, v{P(8)}, v{P(8)} quad_perm:[2,3,0,1] {DPPF}
        v_cndmask_b32 v{vE}, v{vE}, v{P(8)}, s[68:69]
        v_mul_f32 v{vE}, 0x3db8aa3b, v{vE}
        v_exp_f32 v{vE}, v{vE}
        s_nop 0
        v_mov_b32 v44, v{vE}
        v_mov_b32 v45, v{vE}
        s_nop 1
        v_permlane32_swap_b32 v44, v45
        v_add_f32 v44, v44, v45
        v_mov_b32 v45, v44
        s_nop 1
        v_permlane16_swap_b32 v44, v45
        v_add_f32 v44, v44, v45
        v_add_f32 v44, 0x3089705f, v44
        v_rcp_f32 v44, v44
        s_nop 0
        v_mul_f32 v{vE}, v{vE}, v44
        v_cvt_pk_bf16_f32 v{vE}, v{vE}, 0
        v_lshlrev_b32 v8, v9, v{vE}
        s_nop 1
        """)
        vE = 8
        self.stamp("Ssm")
        elane = lambda t: 4 * [0, 2, 1, 3][t & 3] + (t >> 2)

        def wops(src, lane, p):
            return [f"v_and_b32_dpp v{A[p]+r}, v{src}, v{MSK+r} row_newbcast:{lane} {DPPF}" for r in range(2)]

        def wops8(s_, p):
            return [f"v_and_b32_dpp v{A[p]+2*e+r}, v{EW[s_ // 8]}, v{MSK+r} row_newbcast:{2*(s_ % 8)+e} {DPPF}"
                    for e in range(2) for r in range(2)]

        AV = lambda j: 40 if j % 2 == 0 else ACC

        def zero(c):
            for k in range(4):
                self.mov2(c + 2 * k, None)

        def aflush(j):
            c, f = AV(j), FS((j + 1) % 5)
            a(f"v_xor_b32 v{f}, s{sK[j]}, v{vFa}\ns_lshl_b32 s64, s{sQ[j]}, 2\nv_add_u32 v9, s64, v{vEs}\nv_mov_b32 v{f+1}, 0")
            for h in range(2):
                a(f"""
                v_cvt_pk_bf16_f32 v{30}, v{c+4*h}, v{c+4*h+1}
                v_cvt_pk_bf16_f32 v{31}, v{c+4*h+2}, v{c+4*h+3}
                ds_write_b64 v{f}, v[30:31] offset:{XT + 256*h}
                """)
            a(f"ds_read_u16_d16_hi v{f+1}, v9")
            if j < 4:
                zero(c)

        for o in wops(vE, elane(0), 0):
            a(o)
        zero(40)
        for t in range(10):
            nxt = wops(vE, elane(t + 1), (t + 1) & 1) if t < 9 else wops8(0, 0)
            c0 = AV(t // 2)
            a(f"{SM} {r4(c0)}, {r2(A[t & 1])}, {r4(AT(t, 0))}, v{vIx}")
            a("\n".join(nxt))
            a(f"{SM} {r4(c0 + 4)}, {r2(A[t & 1])}, {r4(AT(t, 1))}, v{vIx}")
            if pend2 and t % 2 == 0:
                issue(pend2.pop(0))
            elif t & 1 and t >= 3:
                aflush(t // 2 - 1)
                a("s_nop 0")
            else:
                a("s_nop 0")
        aflush(4)
        assert not pend and not pend2
        a("s_waitcnt lgkmcnt(0)\ns_barrier")
        self.stamp("Sbv")
        a(f"s_cmp_lg_u32 s{sSlow}, 0\ns_cbranch_scc1 L_slow")

        def rotate():
            for c in range(3):
                self.mov2(EA[c], EA[c + 1])
            for m in (sM, sF, sD):
                a(f"s_lshr_b32 s{m}, s{m}, 8")

        a("; ---- S: gather ring (first pass, steady, drain), 8 edges per step")
        assert R % 2 == 0 and 4 <= R <= 8
        for mode in ("fp", "st", "dr"):
            for t in range(8):
                nxt = wops8(t + 1, (t + 1) & 1)
                a(f"L_{mode}{t}:\ns_bitcmp1_b32 s{sM}, {t}")
                if mode == "dr":
                    a(f"ds_write_b32 v{vPa}, v{vOne} offset:{C_DR}")
                a(f"s_waitcnt vmcnt({2 * (6 + R - t) if mode == 'fp' else 2*R - 4})")
                a(f"{SX} {r4(ACC)}, {r4(A[t & 1])}, {r8(RG(2*t, 0))}, v{vIx}")
                a(nxt[0] + "\n" + nxt[1])
                a(f"{SX} {r4(ACC+4)}, {r4(A[t & 1])}, {r8(RG(2*t, 1))}, v{vIx}")
                a(nxt[2] + "\n" + nxt[3])
                if mode == "st":
                    issue(2 * t + R)
                    issue(2 * t + R + 1)
                if mode == "fp":
                    issue(8 + R + t)
                if mode == "dr":
                    a(f"buffer_load_ubyte v15, off, s[{X}:{X+3}], 0\n" * 4)
                a(f"s_cbranch_scc1 L_ev{t}")
            a(f"L_{mode}8:")
            rotate()
            if mode == "fp":
                a(f"s_mov_b32 s{sMode}, L_st1-L_anc\ns_mov_b32 s{sMode+1}, L_st1-L_st0")
            else:
                a(f"s_branch L_{mode}0")
                if mode == "st":
                    a("L_pad8:\ns_setpc_b64 s[68:69]")
        a("; ---- S: list boundaries and flush")
        for t in range(8):
            n = (t + 1) & 7
            An = A[n & 1]
            a(f"L_pad{t}:\ns_setpc_b64 s[68:69]")
            a(f"""
            L_ev{t}:
            s_and_b32 s65, s{sGam}, 15
            v_cmp_ge_u32 s[66:67], s65, v{vG}
            v_cmp_gt_u32 s[68:69], s65, v{vG}
            s_bitcmp1_b32 s{sD}, {t}
            s_cselect_b64 s[{sMode}:{sMode+1}], s[{sDr}:{sDr+1}], s[{sMode}:{sMode+1}]
            v_cndmask_b32 v40, 0, v{An}, s[66:67]
            v_cndmask_b32 v41, 0, v{An+1}, s[66:67]
            v_cndmask_b32 v42, 0, v{An+2}, s[68:69]
            v_cndmask_b32 v43, 0, v{An+3}, s[68:69]
            s_mul_i32 s64, s{sMode+1}, {t}
            s_bitcmp1_b32 s{sF}, {t}
            s_cbranch_scc0 L_evret
            s_waitcnt vmcnt({2*R - 4})
            {SX} {r4(ACC)}, v[40:43], {r8(RG(2*n, 0))}, v{vIx}
            v_xor_b32 v{An}, v{An}, v40
            v_xor_b32 v{An+1}, v{An+1}, v41
            {SX} {r4(ACC+4)}, v[40:43], {r8(RG(2*n, 1))}, v{vIx}
            v_xor_b32 v{An+2}, v{An+2}, v42
            v_xor_b32 v{An+3}, v{An+3}, v43
            {"s_branch L_flush" if t < 7 else "s_nop 0"}
            """)
        a(f"""
        L_flush:
        s_lshr_b32 s{sGam}, s{sGam}, 4
        s_cmp_eq_u32 s{sJ}, 4
        v_add_u32 v{vJ}, 1, v{vJ}
        """)
        for h in range(2):
            for k in range(4):
                a(f"v_mul_f32 v{40+4*h+k}, v{FS(0)+1}, v{ACC+4*h+k}")
            a(f"""
            v_cvt_pk_bf16_f32 v{40+4*h}, v{40+4*h}, v{41+4*h}
            v_cvt_pk_bf16_f32 v{41+4*h}, v{42+4*h}, v{43+4*h}
            ds_write_b64 v{FS(0)}, v[{40+4*h}:{41+4*h}] offset:{AG + 256*h}
            """)
        a(f"ds_write_b32 v{vPa}, v{vJ} offset:{C_AG}\ns_cbranch_scc1 L_sdone")
        if self.prof and "Sfl" in self.st:
            a("s_waitcnt lgkmcnt(0)\ns_mov_b64 s[86:87], s[88:89]\ns_mov_b64 s[88:89], s[90:91]\ns_mov_b64 s[90:91], s[92:93]\ns_memrealtime s[92:93]")
        zero(ACC)
        a(f"s_add_u32 s{sJ}, s{sJ}, 1")
        for j in range(4):
            self.mov2(FS(j), FS(j + 1))
        a(f"""
        L_evret:
        s_add_u32 s64, s64, s{sMode}
        s_add_u32 s{sRet}, s{sAnc}, s64
        s_addc_u32 s{sRet+1}, s{sAnc+1}, 0
        s_setpc_b64 s[{sRet}:{sRet+1}]
        """)
        a("L_pad9:\ns_setpc_b64 s[68:69]")
        a("; ---- S: general path (any degree distribution): scan all edges per node pair")
        a(f"""
        L_slow:
        s_mov_b32 s{sMode}, L_slow_pair-L_anc
        v_mbcnt_lo_u32_b32 v200, -1, 0
        v_mbcnt_hi_u32_b32 v200, -1, v200
        L_slow_pair:
        v_lshlrev_b32 v201, 2, v200
        s_mul_i32 s70, s1, 40
        s_lshl1_add_u32 s70, s{sQ[4]}, s70
        s_mov_b32 s71, 0
        s_mov_b32 s{sQ[4]}, s{sQ[0]}
        s_mov_b32 s{sQ[0]}, s{sQ[1]}
        s_mov_b32 s{sQ[1]}, s{sQ[2]}
        s_mov_b32 s{sQ[2]}, s{sQ[3]}
        L_slow_chunk:
        global_load_dword v202, v201, s[8:9]
        global_load_dword v203, v201, s[6:7]
        v_add_u32 v201, 0x100, v201
        s_waitcnt vmcnt(0)
        v_subrev_u32 v202, s70, v202
        v_cmp_gt_u32 vcc, 2, v202
        v_lshlrev_b32 v204, 1, v203
        ds_read_u16 v204, v204 offset:{DIS}
        s_mov_b64 s[76:77], vcc
        v_lshlrev_b32 v202, 4, v202
        v_lshlrev_b32 v203, 9, v203
        s_waitcnt lgkmcnt(0)
        v_lshlrev_b32 v204, v202, v204
        L_slow_edge:
        s_cmp_eq_u64 s[76:77], 0
        s_cbranch_scc1 L_slow_next
        s_ff1_i32_b64 s74, s[76:77]
        s_bitset0_b64 s[76:77], s74
        v_readlane_b32 s64, v203, s74
        v_readlane_b32 s65, v204, s74
        v_mov_b32 v{vW}, 0
        v_mov_b32 v{vAd}, {OOB}
        s_mov_b64 exec, 0xffff
        v_mov_b32 v{vW}, s65
        v_add_u32 v{vAd}, s64, v{vLo}
        s_mov_b64 exec, -1
        buffer_load_dwordx4 v[208:211], v{vAd}, s[{X}:{X+3}], 0 offen
        buffer_load_dwordx4 v[212:215], v{vAd}, s[{X}:{X+3}], 0 offen offset:256
        """)
        for r in range(2):
            a(f"v_and_b32 v{A[0]+r}, v{vW}, v{MSK+r}")
        a(f"""
        s_nop 0
        s_waitcnt vmcnt(0)
        {SM} {r4(ACC)}, {r2(A[0])}, v[208:211], v{vIx}
        {SM} {r4(ACC+4)}, {r2(A[0])}, v[212:215], v{vIx}
        s_branch L_slow_edge
        L_slow_next:
        s_add_u32 s71, s71, 1
        s_cmp_lt_u32 s71, 2500
        s_cbranch_scc1 L_slow_chunk
        s_mov_b32 s64, 0
        s_nop 3
        s_branch L_flush
        L_sdone:
        ds_write_b32 v{vPa}, v{vOne} offset:{C_DR}
        s_waitcnt lgkmcnt(0)
        s_barrier
        """)
        self.stamp("Send")
        self.dump()
        a("s_endpgm")
        self.flush_cold()
        self.mrole = mrole

    def kernel(self, label):
        self.entry()
        self.sparse_waves()
        self.a.lines += self.mrole.lines
        self.gemm_waves()
        L = self.a.lines
        m0 = next(i for i, l in enumerate(L) if l.startswith("L_mrole"))
        m1 = next(i for i, l in enumerate(L) if l.startswith("L_mwork"))
        early = L[m0:m1]
        del L[m0:m1]
        b = L.index("    s_barrier") + 1
        L[b:b] = ["    s_branch L_pastm"] + early + ["L_pastm:"]
        self.a("L_end:\ns_endpgm")
        return dict(label=label, body=self.a.text(), grid=NWG, block=512, lds=LDS_BYTES, vgpr=256)

    def build(self):
        return wrap([self.kernel(NAME + "_kernel")], ABOUT)


if __name__ == "__main__":
    opts = {k: (v if k == "st" else int(v)) for k, v in (kv.split("=") for kv in sys.argv[2:])}
    open(sys.argv[1], "w").write(Gen(**opts).build())
```

```python
import sys
from asmlib import *

NMAIN, NWG = 250, 253
WS_FLAG, WS_M, WS_INBOX, WS_STAMP = 0x1000, 0x10000, 0x100000, 0x8000000
C_BIN, C_XT, C_HV, C_H, C_LIST, C_OVF, C_AG, C_DR = 0, 4, 8, 12, 16, 20, 32, 48
LCNT, BCNT = 128, 512
XT, TT, AG, DIS, WST = 1024, 21504, 41984, 62464, 82944
LIST, LSTRIDE, LCAP = 148480, 264, 124
LDS_BYTES = 161792
BST = AG
EMPTY, OVF = 30 << 16, 31 << 16
PAD2 = 0x4E204E20
OOB = 0x80000000
DPPF = "row_mask:0xf bank_mask:0xf"
r4 = lambda r: f"v[{r}:{r+3}]"
MF = "v_mfma_f32_16x16x32_bf16"
SM = "v_smfmac_f32_16x16x32_bf16"
SX = "v_smfmac_f32_16x16x64_bf16"
r8 = lambda r: f"v[{r}:{r+7}]"
r2 = lambda r: f"v[{r}:{r+1}]"


ABOUT = """;
; alpha = exp(e) / (sum exp(e) + 1e-9),  e_j = (x[d] @ M) . x[esrc_j] / 16,  M = wq @ wk^T,  edst = repeat(arange(N), 4).
; from d_ws word 0 (advanced at the end of each launch) tells this launch's hand-offs from older contents.
"""


class Gen:
    def __init__(self, prof=0, st=None, spin=1 << 26, noepoch=0,
                 gprio=2, sprio=1, gsleep=1, msleep=2, nrep=8,
                 gstart=3, gthr0=10, gthr=7, gfree=7, fpos=1, mring=10, wlin=10, gwait=1,
                 sthr=6, ipos=7, lpos=0, npre=6, slate=4, lag=8, mbar=2, xa=2, go="icxbpwtd"):
        self.__dict__.update(locals())
        self.a = Asm()
        self.st = (st or "Gm,Gtf,Gbv,Gwl,Gst,Ga2,Srole,Sin,Sent,Srdy,Sbt,Sbv").split(",") + ["Gend", "Send"]
        self.uid = 0

    def lab(self, p):
        self.uid += 1
        return f"L_{p}_{self.uid}"

    def stamp(self, name):
        if self.prof:
            sel = [n for n in self.st if n[0] == name[0]]
            if name in sel:
                i = 7 if name[1:] == "end" else 1 + sel.index(name)
                self.a(f"s_memrealtime s[{80+2*i}:{81+2*i}]")

    def srd(self, r, p, size, add=0):
        a = self.a
        if add:
            a(f"s_add_u32 s{r}, s{p}, {add}\ns_addc_u32 s{r+1}, s{p+1}, 0\ns_and_b32 s{r+1}, s{r+1}, 0xffff")
        else:
            a(f"s_mov_b32 s{r}, s{p}\ns_and_b32 s{r+1}, s{p+1}, 0xffff")
        a(f"s_mov_b32 s{r+2}, {size}\ns_mov_b32 s{r+3}, 0x20000")

    def signal(self, off, vz, vone):
        self.a(f"""
        s_waitcnt lgkmcnt(0)
        s_mov_b64 exec, 1
        ds_add_u32 v{vz}, v{vone} offset:{off}
        s_mov_b64 exec, -1
        """)

    def retry(self, l, sleep):
        r = self.lab("retry")
        self.cold.append(f"""
        {r}:
        s_sub_u32 s100, s100, 1
        s_cbranch_scc1 L_end
        {f"s_sleep {sleep}" if sleep else ""}
        s_branch {l}
        """)
        return r

    def wait_cnt(self, off, target, vz, vt, geth=False, sleep=1):
        l = self.lab("spin")
        if geth:
            rd, v = f"ds_read_b128 {r4(vt)}, v{vz}", vt + off // 4
        else:
            rd, v = f"ds_read_b32 v{vt}, v{vz} offset:{off}", vt
        self.a(f"""
        {l}:
        {rd}
        s_waitcnt lgkmcnt(0)
        v_readfirstlane_b32 s101, v{v}
        """)
        if geth:
            self.a(f"v_readfirstlane_b32 s30, v{vt + C_H // 4}")
        self.a(f"s_cmp_ge_u32 s101, {target}\ns_cbranch_scc0 {self.retry(l, sleep)}")

    def mov2(self, d, src):
        self.a(f"v_mov_b64 {r2(d)}, {0 if src is None else r2(src)}")

    def warm(self):
        a = self.a
        done = self.lab("warmed")
        for w in range(4):
            nx = self.lab("nw")
            if w < 3:
                a(f"s_cmp_eq_u32 s31, {w}\ns_cbranch_scc0 {nx}")
            for p in [2 * w, 2 * w + 1] + ([8 + w] if w < 2 else []):
                a(f"s_call_b64 s[68:69], L_pad{p}")
            if w < 3:
                a(f"s_branch {done}\n{nx}:")
        a(f"{done}:")

    def flush_cold(self):
        for c in self.cold:
            self.a(c)
        self.cold = []

    def dump(self):
        if not self.prof:
            return
        a = self.a
        a("s_memtime s[98:99]\ns_waitcnt lgkmcnt(0)\nv_mov_b32 v10, 0")
        for i in range(20):
            a(f"v_writelane_b32 v10, s{80+i}, {i}")
        a(f"""
        s_getreg_b32 s64, hwreg(HW_REG_XCC_ID)
        v_writelane_b32 v10, s64, 20
        s_lshl_b32 s64, s2, 3
        s_add_u32 s64, s64, s3
        s_lshl_b32 s64, s64, 7
        s_add_u32 s64, s64, {WS_STAMP}
        v_mbcnt_lo_u32_b32 v11, -1, 0
        v_mbcnt_hi_u32_b32 v11, -1, v11
        v_cmp_gt_u32 vcc, 32, v11
        v_lshl_add_u32 v11, v11, 2, s64
        s_and_saveexec_b64 s[66:67], vcc
        global_store_dword v11, v10, s[28:29]
        """)

    def entry(self):
        a = self.a
        self.cold = []
        a("L_begin:")
        if self.prof:
            a("s_memrealtime s[80:81]\ns_memtime s[96:97]")
        a(f"""
        s_cmp_ge_u32 s2, {NWG}
        s_cbranch_scc1 L_end
        s_load_dwordx16 s[4:19], s[0:1], 0
        s_load_dwordx8 s[20:27], s[0:1], 64
        s_load_dwordx2 s[28:29], s[0:1], 96
        """)
        a(f"""
        s_and_b32 s64, s2, 0xf8
        s_cmp_lg_u32 s64, 8
        s_cbranch_scc1 L_nopf
        s_getpc_b64 s[32:33]
        L_pc:
        v_lshlrev_b32 v1, 6, v0
        v_min_u32 v1, L_end-L_pc, v1
        global_load_dword v255, v1, s[32:33]
        L_nopf:
        """)
        a("""
        v_lshrrev_b32 v1, 6, v0
        v_and_b32 v2, 63, v0
        v_readfirstlane_b32 s3, v1
        s_and_b32 s67, s2, 7
        s_and_b32 s31, s3, 3
        s_cmp_lt_u32 s3, 4
        s_cbranch_scc1 L_gemm
        """)

    def common(self):
        self.a(f"""
        v_and_b32 v3, 15, v2
        v_lshrrev_b32 v4, 4, v2
        v_mov_b32 v5, 0
        v_mov_b32 v6, 1
        s_mov_b32 s100, {self.spin}
        s_bfe_u32 s65, s2, 0x10003
        s_lshl1_add_u32 s64, s67, s65
        s_and_b32 s65, s2, 0xf0
        s_or_b32 s64, s64, s65
        s_cmp_lt_u32 s2, 240
        s_cselect_b32 s1, s64, s2
        """)
        if self.prof:
            for i in range(1, 8):
                self.a(f"s_mov_b64 s[{80+2*i}:{81+2*i}], 0")

    def lds_init(self):
        a = self.a
        a(f"""
        v_lshlrev_b32 v8, 4, v0
        v_lshlrev_b32 v10, 2, v0
        v_mov_b32 v32, {EMPTY}
        v_mov_b32 v33, {EMPTY}
        v_mov_b64 v[34:35], v[32:33]
        v_subrev_u32 v9, {LCNT // 4}, v0
        v_cmp_gt_u32 vcc, 20, v9
        """)
        for i in range(4):
            a(f"ds_write_b128 v8, v[32:35] offset:{BST + 4096*i}")
        a(f"""
        v_mul_u32_u24 v9, {LSTRIDE}, v9
        v_add_u32 v9, {LIST}, v9
        v_cndmask_b32 v9, 0, v9, vcc
        ds_write_b32 v10, v9
        v_mov_b32 v16, {PAD2}
        v_mov_b32 v17, {PAD2}
        v_mov_b64 v[18:19], v[16:17]
        v_add_u32 v9, {LIST}, v8
        ds_write_b128 v9, v[16:19]
        ds_write_b128 v9, v[16:19] offset:4096
        """)

    def gemm_waves(self):
        a = self.a
        W = lambda jb, ks: 128 + (ks * 4 + jb) * 4
        ACC = lambda b, jb: 80 + (b * 4 + jb) * 4
        MR = lambda n: 40 + (n % 10) * 4
        BF = lambda s, b: 16 + (s * 3 + b) * 4
        vN, vG, vZ, vOne = 3, 4, 5, 6
        vB = [7, 8, 9, 10]
        vTR = [11, 12]
        vD, vM, vT = 13, 14, 15
        X, WV, WL, WS, OUT = 32, 36, 40, 44, 48
        thr = self.gthr

        a("L_gemm:")
        a("; ---- G waves: LDS initialisation, first touches, x tile and wv staging (LDS-DMA + transposing reads)")

        def xtile(lo=0, hi=5):
            for i in range(lo, hi):
                a(f"s_add_u32 m0, s66, {XT + i*4096}")
                a("s_add_u32 s63, s63, 4096" if i else "s_nop 0")
                a(f"buffer_load_dwordx4 v{30 + (i & 1)}, s[{X}:{X+3}], s63 offen lds")

        def g_common():
            self.common()
            a(f"""
            v_lshrrev_b32 v28, 5, v0
            v_and_b32 v1, 31, v2
            v_xor_b32 v1, v1, v28
            v_lshlrev_b32 v1, 4, v1
            v_lshl_add_u32 v30, v28, 9, v1
            v_xor_b32 v31, 0x80, v30
            s_mul_i32 s63, s1, 20480
            s_lshl_b32 s66, s31, 10
            s_waitcnt lgkmcnt(0)
            """)
            self.srd(X, 4, 5120000)

        def g_x():
            self.stamp("Gx")
            xtile(0, self.xa)

        def g_pages():
            a(f"""
            s_min_u32 s64, s1, {NMAIN - 1}
            s_mul_i32 s64, s64, 20480
            s_cmp_eq_u32 s31, 0
            s_cselect_b64 s[68:69], s[24:25], s[16:17]
            s_cselect_b32 s64, s64, 0
            s_cmp_eq_u32 s31, 2
            s_cselect_b64 s[68:69], s[28:29], s[68:69]
            s_cselect_b32 s64, 0x800, s64
            s_cselect_b32 s76, 0x2f8000, 0
            s_cmp_eq_u32 s31, 3
            s_cselect_b64 s[68:69], s[4:5], s[68:69]
            s_cselect_b32 s76, 0x200000, s76
            s_cselect_b32 s77, 2, 1
            v_min_u32 v27, s77, v2
            v_mul_lo_u32 v27, v27, s76
            v_add_u32 v27, s64, v27
            global_load_dword v24, v27, s[68:69]
            """)

        def g_barrier():
            a(f"s_waitcnt lgkmcnt(0)\ns_cmp_ge_u32 s2, {NMAIN}\ns_cbranch_scc1 L_end\ns_barrier\ns_setprio {self.gprio}")
            self.stamp("Gb0")

        def g_weights():
            a(f"""
            v_lshrrev_b32 v{vD}, 3, v2
            v_lshrrev_b32 v{vT}, 2, v2
            v_and_b32 v{vT}, 4, v{vT}
            v_and_b32 v{vM}, 7, v2
            v_xor_b32 v{vT}, v{vT}, v{vM}
            v_lshlrev_b32 v{vT}, 4, v{vT}
            v_lshl_add_u32 v{vD}, v{vD}, 9, v{vT}
            s_bfe_u32 s67, s2, 0x30003
            s_lshl_b32 s64, s31, 7
            s_lshl_b32 s65, s67, 14
            s_or_b32 s64, s64, s65
            v_add_u32 v{vD}, s64, v{vD}
            s_lshl_b32 s70, s31, 14
            s_add_u32 s70, s70, {WST}
            s_mov_b32 s71, 3072
            s_mov_b32 s72, 6144
            s_mov_b32 s73, 9216
            """)
            self.srd(WV, 22, 131072)

        def g_touch():
            lt = self.lab("touched")
            a(f"""
            s_and_b32 s64, s2, 8
            s_or_b32 s64, s64, s31
            s_cbranch_scc1 {lt}
            s_lshr_b32 s64, s2, 4
            s_and_b32 s68, s2, 7
            s_lshl3_add_u32 s64, s64, s68
            s_lshl_b32 s64, s64, 10
            v_lshl_add_u32 v26, v2, 4, s64
            global_load_dwordx4 v[20:23], v26, s[16:17]
            {lt}:
            """)

        def throttle(th):
            return f"s_waitcnt vmcnt({th - 1})\n" if th < 16 else ""

        def dma_list(srd, ks, th=False, m0=None):
            so = ["0", "s71", "s72", "s73"]
            slot = ks & 3
            ops = []
            for i in range(4):
                pre = (f"s_mov_b32 m0, {m0}\n" if m0 else f"s_add_u32 m0, s70, {slot*4096}\n") if i == 0 else ""
                t = throttle(th) if th else ""
                if i == 0 and not t:
                    t = "s_nop 0\n"
                post = f"\nv_xor_b32 v{vD}, {(ks ^ ((ks + 1) & 7)) << 14}, v{vD}" if i == 3 else ""
                ops.append(pre + t + f"buffer_load_dwordx4 v{vD}, s[{srd}:{srd+3}], {so[i]} offen offset:{i*1024} lds" + post)
            return ops

        def dma(srd, slot, th=False, m0=None):
            for o in dma_list(srd, slot, th, m0):
                a(o)

        WL_ = lambda jb, ks: 48 + (ks * 4 + jb) * 4 if ks < 2 else W(jb, ks - 2)

        def tr_list(ks, slot, reg=W):
            return [f"ds_read_b64_tr_b16 {r2(reg(jb, ks) + 2*hh)}, v{vTR[jb >> 1]} offset:{slot*4096 + hh*512 + (jb & 1)*8}"
                    for jb in range(4) for hh in range(2)]

        def tr(ks, slot, reg=W):
            a("\n".join(tr_list(ks, slot, reg)))

        for step in self.go:
            dict(c=g_common, x=g_x, p=g_pages, i=self.lds_init, b=g_barrier, w=g_weights, t=g_touch, d=lambda: dma(WV, 0))[step]()
        self.srd(WL, 16, 131072)
        self.srd(WS, 28, 0x100000)
        self.srd(OUT, 24, 5120000)
        a(f"""
        v_xor_b32 v{vT}, v{vG}, v{vN}
        v_lshlrev_b32 v{vT}, 4, v{vT}
        v_lshl_add_u32 v{vB[0]}, v{vN}, 9, v{vT}
        s_lshl_b32 s64, s67, 6
        v_xor_b32 v{vB[0]}, s64, v{vB[0]}
        v_xor_b32 v{vB[1]}, 64, v{vB[0]}
        v_xor_b32 v{vB[2]}, 0x80, v{vB[0]}
        v_xor_b32 v{vB[3]}, 0xc0, v{vB[0]}
        v_lshrrev_b32 v{vT}, 2, v{vN}
        v_lshl_add_u32 v{vT}, v{vG}, 3, v{vT}
        v_lshlrev_b32 v{vT}, 7, v{vT}
        v_lshrrev_b32 v{vM}, 1, v{vN}
        v_and_b32 v{vM}, 4, v{vM}
        v_and_b32 v0, 3, v{vN}
        v_xor_b32 v{vM}, v{vM}, v0
        v_lshl_add_u32 v{vT}, v{vM}, 4, v{vT}
        v_add_u32 v{vTR[0]}, s70, v{vT}
        v_xor_b32 v{vTR[1]}, 64, v{vTR[0]}
        v_and_b32 v0, 31, v2
        v_lshlrev_b32 v0, 2, v0
        s_and_b32 s64, s2, {self.nrep-1}
        s_lshl_b32 s64, s64, 9
        s_lshl_b32 s65, s31, 7
        s_add_u32 s64, s64, s65
        s_add_u32 s74, s64, {WS_FLAG}
        v_lshlrev_b32 v{vM}, 4, v2
        s_lshl_b32 s75, s31, 15
        s_lshl_b32 s64, s67, 12
        s_or_b32 s75, s75, s64
        s_add_u32 s75, s75, {WS_M}
        """)
        flagload = f"buffer_load_dword v1, v0, s[{WS}:{WS+3}], s74 offen sc1"

        def mload(n):
            s = f"buffer_load_dwordx4 {r4(MR(n))}, v{vM}, s[{WS}:{WS+3}], s75 offen offset:{(n & 3)*1024} sc1"
            if n & 3 == 3:
                s += f"\ns_xor_b32 s75, s75, {((n >> 2) ^ (((n >> 2) + 1) & 7)) << 12}"
            return s

        ngrp = 8
        fafter = ngrp - 1 - self.fpos
        order = ["X"] * 5 + ["D0"] * 4
        def issue_group(g):
            dma(WV if g < 8 else WL, g & 7, self.gthr0 if g < self.gstart else (thr if g < self.gfree else 0))
            order.extend([f"D{g}"] * 4)
            self.stamp(f"Gi{g}")
            if g == fafter:
                a(flagload)
                order.append("F")
        def wait_for(tag):
            last = max(i for i, o in enumerate(order) if o == tag)
            a(f"s_waitcnt vmcnt({len(order) - 1 - last})")
        def mstart():
            wait_for("F")
            self.stamp("Gf")
            l = self.lab("mchk")
            self.wait_cnt(C_HV, 1, vZ, 16, geth=True)
            rl = self.lab("mre")
            self.cold.append(f"""
            {rl}:
            s_sub_u32 s100, s100, 1
            s_cbranch_scc1 L_end
            s_sleep {self.msleep}
            {flagload}
            s_waitcnt vmcnt(0)
            s_branch {l}
            """)
            a(f"{l}:\nv_cmp_ne_u32 vcc, s30, v1\ns_cbranch_vccnz {rl}")
            self.stamp("Gm")
            for n in range(self.mring):
                a(mload(n))
            order.extend(["M"] * self.mring)
        for g in range(1, 4):
            if g == 1:
                xtile(self.xa, 5)
                a("s_barrier")
                self.warm()
            if g == self.mbar:
                lb = self.lab("nobar")
                a(f"s_bitcmp1_b32 s2, 3\ns_cbranch_scc1 {lb}\ns_barrier\n{lb}:")
            issue_group(g)
        started = False
        for ks in range(8):
            wait_for(f"D{ks}")
            self.stamp(f"Gd{ks}")
            if ks == 1:
                self.signal(C_XT, vZ, vOne)
            tr(ks, ks & 3)
            if ks + 4 < ngrp:
                a("s_waitcnt lgkmcnt(0)")
                issue_group(ks + 4)
            if not started and ks + 4 >= ngrp - 1 and ks >= min(fafter, 7):
                mstart()
                started = True
        assert started

        def bread(tile, ks, b, r, last=2):
            a(f"ds_read_b128 {r4(r)}, v{vB[ks & 3]} offset:{tile + b*8192}")
            if b == last:
                a(f"v_xor_b32 v{vB[ks & 3]}, 0x100, v{vB[ks & 3]}")

        a("; ---- G: T = x @ M, M streamed as ready-made fragments")
        self.wait_cnt(C_XT, 4, vZ, vT)
        follow = [mload(n) for n in range(self.mring, 32)]
        follow += sum((dma_list(WL, s) for s in range(4)), [])
        for b in range(3):
            bread(XT, 0, b, BF(0, b))
        inflight = self.mring
        for ks in range(8):
            if ks < 7:
                for b in range(3):
                    bread(XT, ks + 1, b, BF((ks + 1) & 1, b))
            a(f"s_waitcnt lgkmcnt({3 if ks < 7 else 0})")
            self.stamp(f"Gt{ks}")
            for jb in range(4):
                n = 4 * ks + jb
                a(f"s_waitcnt vmcnt({inflight - 1})")
                for b in range(3):
                    c = r4(ACC(b, jb)) if ks else "0"
                    a(f"{MF} {r4(ACC(b, jb))}, {r4(MR(n))}, {r4(BF(ks & 1, b))}, {c}")
                if follow and n < 32 - self.mring + self.wlin:
                    a(follow.pop(0))
                else:
                    inflight -= 1
        self.stamp("Gt8")
        a(f"""
        s_lshl_b32 s64, s31, 3
        v_add_u32 v0, s64, v{vG}
        v_xor_b32 v0, v0, v{vN}
        v_lshlrev_b32 v0, 4, v0
        v_lshl_add_u32 v0, v{vN}, 9, v0
        v_xor_b32 v1, 64, v0
        s_mov_b32 s76, 0x00ff00ff
        s_mov_b32 s77, 0x00ff00ff
        """)

        def pack(b, h, r):
            for k in range(2):
                s = ACC(b, 2 * h + k)
                a(f"v_cvt_pk_bf16_f32 v{r+2*k}, v{s}, v{s+1}\nv_cvt_pk_bf16_f32 v{r+2*k+1}, v{s+2}, v{s+3}")

        for b in range(3):
            if b == 2:
                a("s_mov_b64 exec, s[76:77]")
            for h in range(2):
                r = 16 + (b * 2 + h) * 4
                pack(b, h, r)
                a(f"ds_write_b128 v{h}, {r4(r)} offset:{TT + b*8192}")
        a("s_mov_b64 exec, -1\ns_waitcnt lgkmcnt(0)")
        self.stamp("Gtf")
        a("s_barrier")
        self.stamp("Gbt")
        for o in follow:
            a(o)
        a(f"""
        v_lshlrev_b32 v0, 4, v{vG}
        v_and_b32 v1, 7, v{vN}
        v_lshl_add_u32 v0, v1, 9, v0
        v_and_b32 v1, 8, v{vN}
        v_lshl_add_u32 v0, v1, 3, v0
        s_mul_i32 s74, s1, 20480
        s_lshl_b32 s64, s31, 7
        s_add_u32 s74, s74, s64
        s_waitcnt vmcnt(8)
        """)
        tr(0, 0, WL_)
        tr(1, 1, WL_)
        a("s_waitcnt lgkmcnt(8)")
        dma(WL, 4)
        a("s_waitcnt lgkmcnt(0)")
        dma(WL, 5)
        a(f"""
        s_lshl_b32 s64, s31, 12
        s_add_u32 s78, s64, {TT}
        s_add_u32 s79, s64, {LIST}
        s_cmp_eq_u32 s31, 3
        s_cselect_b32 s79, {TT + 16384}, s79
        s_sub_u32 s76, s78, s70
        s_sub_u32 s77, s79, s78
        """)
        vB8 = vB + [40, 41, 42, 43]
        for k in range(4):
            a(f"v_xor_b32 v{40+k}, 0x100, v{vB[k]}")
        a("s_barrier")
        self.stamp("Gbv")
        a("; ---- G: attention aggregate @ wv, w_l moves into the freed registers")
        dma(WL, 6, m0="s78")
        dma(WL, 7, m0="s79")
        lo = "s_setprio 0"
        hi = f"s_setprio {self.gprio}"
        a(lo)

        def wait_prog(target, sleep, off=C_AG):
            l = self.lab("prog")
            a(f"""
            {l}:
            ds_read_b128 v[16:19], v{vZ} offset:{off}
            s_waitcnt lgkmcnt(0)
            v_min3_u32 v16, v16, v17, v18
            v_min_u32 v16, v16, v19
            v_cmp_gt_u32 vcc, {target}, v16
            s_cbranch_vccnz {self.retry(l, sleep)}
            """)

        if self.gwait:
            wait_prog(self.gwait, 1)
        self.stamp("Gv0")
        rd = lambda tile, ks, b, r: f"ds_read_b128 {r4(r)}, v{vB8[ks]} offset:{tile + b*8192}"

        def weave(mf, fill):
            fill = list(fill)
            for m in mf:
                a(m)
                if fill:
                    a(fill.pop(0))
            for f in fill:
                a(f)

        for b in range(3):
            a(rd(XT, 0, b, BF(0, b)))
        a("s_waitcnt vmcnt(8)")
        young = 0
        for ks in range(8):
            a(f"s_waitcnt lgkmcnt({young})")
            mf = [f"{MF} {r4(ACC(b, jb))}, {r4(W(jb, ks))}, {r4(BF(ks & 1, b))}, {r4(ACC(b, jb)) if ks else 0}"
                  for jb in range(4) for b in range(3)]
            fill = [rd(XT, ks + 1, b, BF((ks + 1) & 1, b)) for b in range(3)] if ks < 7 else []
            young = 0
            if 1 <= ks <= 4:
                fill += tr_list(ks + 1, (ks + 1) & 3, WL_)
                young = 8
            if ks >= 6:
                d = 76 if ks == 6 else 77
                t = tr_list(ks, 0, WL_)
                t[0] = f"s_waitcnt vmcnt({4 * (7 - ks)})\n" + t[0]
                fill = [f"v_add_u32 v{vTR[0]}, s{d}, v{vTR[0]}\nv_add_u32 v{vTR[1]}, s{d}, v{vTR[1]}"] + fill + t
                young = 8
            weave(mf, fill)
        self.stamp("Gwl")
        a("; ---- G: edge aggregate @ w_l per row block, pack, store")
        FB = lambda ks: 16 + ks * 4 if ks < 6 else (44 if ks == 6 else 252)
        sf = " sc1"
        st = lambda r: f"buffer_store_dwordx4 {r4(r)}, v0, s[{OUT}:{OUT+3}], s74 offen{sf}"

        def packl(b, h, r):
            return [f"v_cvt_pk_bf16_f32 v{r+k}, v{ACC(b, 2*h) + 2*k}, v{ACC(b, 2*h) + 2*k + 1}" for k in range(4)]

        def epi(b, ra, rb):
            o = packl(b, 1, rb) + packl(b, 0, ra)
            if b < 2:
                o += packl(b, 0, 240)
            o += [f"v_mov_b32_dpp v{ra+k}, v{rb+k} row_ror:8 row_mask:0xf bank_mask:0xc" for k in range(4)]
            if b < 2:
                o += [f"v_mov_b32_dpp v{rb+k}, v{240+k} row_ror:8 row_mask:0xf bank_mask:0x3" for k in range(4)]
            return o

        a("s_add_u32 s75, s74, 4096\ns_add_u32 s76, s74, 8192\ns_add_u32 s77, s74, 12288\ns_add_u32 s78, s74, 16384")
        st = lambda r, i: f"buffer_store_dwordx4 {r4(r)}, v0, s[{OUT}:{OUT+3}], s{74+i} offen{sf}"
        for n, b in enumerate((2, 0, 1)):
            if n == 2:
                a(f"v_lshlrev_b32 v1, 4, v{vG}\nv_lshl_add_u32 v1, v{vN}, 9, v1")
            if n == 2:
                a("s_barrier")
            else:
                wait_prog((1, 3)[n], self.gsleep)
            self.stamp(f"Ga{n}")
            if n == 2:
                a(hi)
            for ks in range(8):
                a(rd(AG, ks, b, FB(ks)))
            mf = []
            if n == 2:
                st2 = lambda r, h: f"buffer_store_dwordx4 {r4(r)}, v1, s[{OUT}:{OUT+3}], s76 offen offset:{64*h}{sf}"
                for h in (1, 0):
                    for ks in range(8):
                        for i in range(2):
                            jb = 2 * h + i
                            w = f"s_waitcnt lgkmcnt({7-ks})\n" if i == 0 and h == 1 else ""
                            mf.append(w + f"{MF} {r4(ACC(b, jb))}, {r4(WL_(jb, ks))}, {r4(FB(ks))}, {r4(ACC(b, jb))}")
                weave(mf, [""] * 23 + packl(b, 1, 236) + [st2(236, 1)])
                a("s_nop 6")
                a("\n".join(packl(b, 0, 232)) + "\n" + st2(232, 0))
                continue
            for ks in range(8):
                for i, jb in enumerate((2, 3, 0, 1)):
                    w = f"s_waitcnt lgkmcnt({7-ks})\n" if i == 0 else ""
                    mf.append(w + f"{MF} {r4(ACC(b, jb))}, {r4(WL_(jb, ks))}, {r4(FB(ks))}, {r4(ACC(b, jb))}")
            weave(mf, epi(2, 244, 248) if n == 1 else [])
            if n == 1:
                a("s_nop 4")
                a("\n".join(epi(0, 224, 228)))
                wait_prog(1, self.gsleep, C_DR)
                self.stamp("Gst")
                a(f"{hi}\n{st(244, 4)}\n{st(224, 0)}\n{st(228, 1)}\n{lo}")
        l = self.lab("noepoch")
        a(f"""
        s_or_b32 s64, s2, s3
        s_cbranch_scc1 {l}
        v_mov_b32 v1, s30
        s_mov_b64 exec, 1
        {"" if self.noepoch else f"buffer_store_dword v1, v{vZ}, s[{WS}:{WS+3}], 0 offen sc1"}
        {l}:
        """)
        if self.prof:
            a("s_mov_b64 exec, -1\ns_waitcnt vmcnt(0)")
        self.stamp("Gend")
        self.dump()
        a("s_endpgm")
        self.flush_cold()

    def sparse_waves(self):
        a = self.a
        R = self.lag
        FPL = 2 if R <= 8 else (3 if R <= 12 else 4)
        NPRO = 16 + R - 4 * FPL
        AT = lambda t, h: 176 + t * 8 + 4 * h
        RG = lambda u, h: 48 + ((u >> 1) & 7) * 16 + 8 * h + 4 * (u & 1)
        vN, vG, vZ, vOne = 3, 4, 5, 6
        vLo, vEs, vFa = 7, 0, 2
        vL16 = 8
        MSK, vIx, ACC = 12, 14, 16
        A = [24, 28]
        vJ, vPa = 1, 10
        FS = lambda j: 176 + 2 * j
        EA = [32, 34, 36, 38]
        EW = [33, 35, 37, 39]
        vW, vAd = 205, 11
        X, DS, IB, TG, MK = 32, 36, 40, 44, 48
        sIdx = 27
        sP = [10, 11, 12, 13, 14]
        sK = [15, 16, 17, 18, 19]
        sQ = [20, 21, 22, 23, 24]
        sSlow, sJ, sT, sG = 25, 26, 49, 50
        sM, sF, sD, sGam, sRet, sMode, sDr, sAnc = 52, 53, 56, 57, 54, 62, 70, 72

        MQ, MKT = TT, DIS
        lb, lj = self.lab("mload"), self.lab("roled")
        a(f"""
        s_setprio 3
        s_bitcmp1_b32 s2, 3
        s_cbranch_scc0 {lb}
        s_lshr_b32 s66, s2, 4
        s_lshl3_add_u32 s68, s66, s67
        s_mul_i32 s64, s68, 5120
        s_sub_u32 s65, s64, 4096
        v_lshl_add_u32 v40, v0, 4, s65
        s_add_u32 s64, s64, 3072
        v_lshl_add_u32 v41, v0, 2, s64
        s_waitcnt lgkmcnt(0)
        global_load_dwordx4 v[48:51], v40, s[8:9] nt
        global_load_dword v52, v41, s[8:9] nt
        global_load_dwordx4 v[56:59], v40, s[6:7] nt
        global_load_dword v60, v41, s[6:7] nt
        s_mov_b32 s{sIdx}, s68
        s_branch {lj}
        {lb}:
        v_lshrrev_b32 v43, 5, v2
        v_lshl_add_u32 v44, s31, 2, v43
        v_and_b32 v46, 31, v2
        v_xor_b32 v46, v46, v44
        v_lshl_add_u32 v43, s31, 3, v43
        v_lshlrev_b32 v43, 9, v43
        v_lshl_add_u32 v46, v46, 4, v43
        v_lshl_add_u32 v44, s67, 14, v46
        s_and_b32 s65, s2, 0xe0
        s_and_b32 s66, s2, 16
        s_lshl2_add_u32 s65, s65, s66
        v_lshl_add_u32 v46, s65, 7, v46
        s_lshl_b32 s66, s31, 11
        s_add_u32 m0, s66, {MKT}
        s_waitcnt lgkmcnt(0)
        global_load_lds_dwordx4 v46, s[20:21]
        s_add_u32 m0, s66, {MQ}
        v_xor_b32 v46, 0x420, v46
        global_load_lds_dwordx4 v44, s[18:19]
        s_add_u32 m0, s66, {MQ + 8192 - 2048}
        v_xor_b32 v45, 0x420, v44
        global_load_lds_dwordx4 v44, s[18:19] offset:2048
        s_add_u32 m0, s66, {MKT + 1024}
        s_lshr_b32 s64, s2, 6
        global_load_lds_dwordx4 v46, s[20:21]
        s_add_u32 m0, s66, {MQ + 1024}
        s_lshl3_add_u32 s64, s64, s67
        global_load_lds_dwordx4 v45, s[18:19]
        s_add_u32 m0, s66, {MQ + 8192 + 1024 - 2048}
        s_bfe_u32 s65, s2, 0x20004
        global_load_lds_dwordx4 v45, s[18:19] offset:2048
        s_lshl2_add_u32 s{sIdx}, s64, s65
        {lj}:
        s_cmp_lg_u32 s31, 0
        s_cbranch_scc1 {lj}_b
        s_load_dword s30, s[28:29], 0
        {lj}_b:
        """)
        self.common()
        self.stamp("Sk")
        a(f"""
        v_lshrrev_b32 v42, 2, v{vN}
        v_and_b32 v43, 3, v{vN}
        v_lshl_add_u32 v42, v42, 4, v43
        s_lshl_b32 s64, s31, 1
        v_mov_b32 v43, s64
        v_lshlrev_b32 v44, 1, v43
        v_cmp_gt_u32 vcc, 8, v{vN}
        s_mul_i32 s65, s1, 640
        v_lshlrev_b32 v{vLo}, 4, v{vN}
        v_cndmask_b32 v43, v43, v44, vcc
        v_add_lshl_u32 v42, v42, v43, 4
        v_lshl_add_u32 v42, v{vG}, 2, v42
        v_add_u32 v42, s65, v42
        v_min_u32 v42, 159996, v42
        v_lshlrev_b32 v{vL16}, 4, v0
        v_and_b32 v{vL16}, 0xfff, v{vL16}
        global_load_dword v{vEs}, v42, s[10:11] nt
        s_barrier
        """)
        mrole = Asm()
        self.stamp("Sb0")
        self.srd(X, 4, 5120000)
        self.srd(DS, 14, 20000)
        self.srd(IB, 28, 125 * 16384, add=WS_INBOX)
        a(f"""
        v_and_b32 v40, 8, v{vN}
        v_lshlrev_b32 v40, 1, v40
        v_mov_b32 v41, 0xffff
        v_lshlrev_b32 v40, v40, v41
        s_mov_b32 s64, 0x0f0f0f0f
        s_mov_b32 s65, 0x0f0f0f0f
        v_cndmask_b32 v{MSK}, 0, v40, s[64:65]
        v_xor_b32 v{MSK+1}, v40, v{MSK}
        v_and_b32 v{vIx}, 3, v{vN}
        v_mul_u32_u24 v{vIx}, 0x5555, v{vIx}
        """)
        lh = self.lab("tagged")
        a(f"""
        s_cmp_lg_u32 s31, 0
        s_cbranch_scc1 {lh}
        s_waitcnt lgkmcnt(0)
        s_mul_i32 s30, s30, 0x9E3779B1
        s_add_u32 s30, s30, 0x7F4A7C15
        v_mov_b32 v40, 1
        v_mov_b32 v41, s30
        ds_write_b64 v{vZ}, v[40:41] offset:{C_HV}
        {lh}:
        """)

        def tags(dst):
            dst(f"""
            s_and_b32 s{TG}, s30, 0xffc00000
            s_lshl_b32 s{TG+1}, s30, 10
            s_and_b32 s{TG+1}, s{TG+1}, 0xffc00000
            s_lshl_b32 s{TG+2}, s30, 20
            s_and_b32 s{TG+2}, s{TG+2}, 0xffc00000
            s_lshl_b32 s{TG+3}, s30, 22
            """)

        lm2, lj2 = self.lab("mwork"), self.lab("worked")
        a(f"s_bitcmp1_b32 s2, 3\ns_cbranch_scc0 {lm2}")
        a("; ---- S: bin 1280 edges by destination bucket and publish them with the launch tag")
        a(f"""
        v_mov_b32 v43, 4
        v_mov_b32 v44, {OVF}
        s_mov_b32 s64, 0x3f0001
        v_lshrrev_b32 v40, 6, v{vL16}
        v_and_b32 v41, 0x30, v{vL16}
        v_lshl_add_u32 v40, v40, 14, v41
        s_lshl_b32 s68, s{sIdx}, 6
        s_add_u32 s69, s68, 0x100000
        s_add_u32 s70, s68, 8192
        s_add_u32 s71, s69, 8192
        s_mov_b32 s65, 0x203c
        s_waitcnt vmcnt(3)
        """)
        for k in range(5):
            a(f"""
            v_mul_u32_u24 v{64+k}, 52429, v{48+k}
            v_lshrrev_b32 v{72+k}, 22, v{64+k}
            v_lshlrev_b32 v{80+k}, 2, v{72+k}
            ds_add_rtn_u32 v{80+k}, v{80+k}, v43 offset:{BCNT}
            """)
        for k in range(5):
            a(f"""
            v_lshrrev_b32 v{64+k}, 21, v{64+k}
            v_mad_u32_u24 v{64+k}, v{64+k}, 24, v{48+k}
            v_mul_u32_u24 v{64+k}, 0x8001, v{64+k}
            v_bfe_u32 v{88+k}, v{72+k}, 1, 2
            v_lshl_or_b32 v{72+k}, v{72+k}, 2, v{88+k}
            v_lshlrev_b32 v{72+k}, 4, v{72+k}
            """)
        a(f"s_waitcnt vmcnt(1)")
        for k in range(5):
            a(f"v_lshlrev_b32 v{56+k}, 1, v{56+k}\nv_and_or_b32 v{64+k}, v{64+k}, s64, v{56+k}")
        a("s_waitcnt lgkmcnt(0)")
        for k in range(5):
            a(f"""
            v_cmp_gt_u32 vcc, 124, v{80+k}
            v_min_u32 v{80+k}, 124, v{80+k}
            v_lshl_or_b32 v{80+k}, v{80+k}, 7, v{80+k}
            v_cndmask_b32 v{64+k}, v44, v{64+k}, vcc
            v_bitop3_b32 v{80+k}, v{80+k}, s65, v{72+k} bitop3:0x6a
            ds_write_b32 v{80+k}, v{64+k} offset:{BST}
            """)
        a(f"s_waitcnt lgkmcnt(0)\ns_barrier\nds_read_b32 v44, v{vZ} offset:{C_H}")
        for i in range(4):
            a(f"ds_read_b128 {r4(48 + 4*i)}, v{vL16} offset:{BST + i*4096}")
        a("s_waitcnt lgkmcnt(4)\nv_readfirstlane_b32 s30, v44\ns_waitcnt vmcnt(0)")
        tags(a)
        for i in range(4):
            a(f"s_waitcnt lgkmcnt({3-i})")
            ls = self.lab("nosec")
            if i < 2:
                a(f"v_cmp_eq_u32 vcc, {EMPTY}, v{51+4*i}")
            else:
                a(f"s_not_b64 exec, s[{68+2*i}:{69+2*i}]\ns_cbranch_scc0 {ls}")
            for k in range(4):
                a(f"v_or_b32 v{48+4*i+k}, s{TG+k}, v{48+4*i+k}")
            a(f"buffer_store_dwordx4 {r4(48 + 4*i)}, v40, s[{IB}:{IB+3}], s{68+i} offen sc1")
            a(f"s_wqm_b64 s[{72+2*i}:{73+2*i}], vcc" if i < 2 else f"{ls}:")
        a("s_mov_b64 exec, -1")
        a(f"""
        s_cmp_ge_u32 s2, {NMAIN}
        s_cbranch_scc1 L_end
        {lj2}:
        """)
        mrole(f"""
        {lm2}:
        v_xor_b32 v44, v{vG}, v{vN}
        v_lshlrev_b32 v44, 4, v44
        v_lshl_add_u32 v44, v{vN}, 9, v44
        v_xor_b32 v45, 64, v44
        v_xor_b32 v46, 0x80, v44
        v_xor_b32 v47, 0xc0, v44
        s_cmp_lg_u32 s31, 0
        s_waitcnt vmcnt(1)
        s_barrier
        s_cbranch_scc1 {lj2}_w
        """)

        def mread(k):
            for n, base in enumerate((MKT, MQ, MQ + 8192)):
                mrole(f"ds_read_b128 {r4(48 + 12*k + 4*n)}, v{44 + (k & 3)} offset:{base + 256*(k >> 2)}")

        for k in range(3):
            mread(k)
        for k in range(8):
            if k < 5:
                mread(k + 3)
            mrole(f"s_waitcnt lgkmcnt({3 * min(3, 7 - k)})")
            for jj in range(2):
                c = r4(ACC + 4 * jj) if k else "0"
                mrole(f"{MF} {r4(ACC + 4*jj)}, {r4(52 + 12*k + 4*jj)}, {r4(48 + 12*k)}, {c}")
        mrole(f"""
        s_lshl_b32 s64, s{sIdx}, 10
        s_add_u32 s64, s64, {WS_M}
        v_lshl_add_u32 v40, v2, 4, s64
        s_lshl_b32 s64, s{sIdx}, 2
        s_add_u32 s64, s64, {WS_FLAG}
        v_lshl_add_u32 v41, v2, 9, s64
        v_mov_b32 v42, s30
        s_nop 1
        """)
        for k in range(4):
            mrole(f"v_cvt_pk_bf16_f32 v{44+k}, v{ACC+2*k}, v{ACC+2*k+1}")
        mrole("global_store_dwordx4 v40, v[44:47], s[28:29] sc1\ns_barrier")
        mrole(f"""
        s_waitcnt vmcnt(0)
        s_mov_b64 exec, {hex((1 << self.nrep) - 1)}
        global_store_dword v41, v42, s[28:29] sc1
        s_mov_b64 exec, -1
        """)
        mrole(f"""
        s_branch {lj2}
        {lj2}_w:
        s_barrier
        s_waitcnt vmcnt(0)
        s_branch {lj2}
        """)
        self.stamp("Srole")
        a("; ---- S: attention rows, deg_inv_sqrt table, incoming bins -> per node-pair lists")
        a(f"""
        v_lshlrev_b32 v{vEs}, 9, v{vEs}
        s_setprio {self.sprio}
        s_lshl_b32 s64, s31, 10
        s_lshr_b32 s10, s1, 1
        s_lshl_b32 s10, s10, 14
        s_add_u32 s11, s10, 4096
        s_add_u32 s12, s10, 8192
        s_add_u32 s13, s10, 12288
        v_cmp_gt_u32 vcc, 0xf40, v{vL16}
        s_mov_b64 s[14:15], vcc
        """)

        def arow(t, th):
            a(f"v_add_u32_dpp v9, v{vEs}, v{vLo} row_newbcast:{t} {DPPF}")
            if th:
                a(f"s_waitcnt vmcnt({self.sthr - 2})")
            for h in range(2):
                a(f"buffer_load_dwordx4 {r4(AT(t, h))}, v9, s[{X}:{X+3}], 0 offen offset:{256*h}")

        nd = 0
        for t in range(self.ipos):
            arow(t, True)
            self.stamp(f"Sr{t}")
            while nd < 5 and (nd + 1) * self.ipos <= 5 * (t + 1):
                a(f"s_add_u32 m0, s64, {DIS + nd*4096}\ns_mov_b32 s65, {nd*4096}")
                a(f"buffer_load_dwordx4 v{vL16}, s[{DS}:{DS+3}], s65 offen lds")
                nd += 1
        assert nd == 5
        late = list(range(self.ipos, 10))
        late, late2 = late[:len(late) - self.lpos], late[len(late) - self.lpos:]
        self.stamp("Sat")
        l = self.lab("ipoll")
        iload = lambda i: f"buffer_load_dwordx4 {r4(48 + 4*i)}, v{vL16}, s[{IB}:{IB+3}], s{10+i} offen sc1"
        a(f"{l}:\n{iload(0)}\ns_mov_b64 exec, s[14:15]\n{iload(1)}\ns_mov_b64 exec, -1")
        self.wait_cnt(C_HV, 1, vZ, 44, geth=True)
        tags(a)
        a(f"s_and_b32 s64, s1, 1\ns_lshl_b32 s64, s64, 21\ns_xor_b32 s17, s64, {EMPTY}")
        for k in range(4):
            a(f"s_or_b32 s{TG+k}, s{TG+k}, s64\nv_mov_b32 v{68+k}, s17")
        a(f"s_mov_b32 s16, {20 << 16}\nv_mov_b32 v42, 2")

        def decode(i, m):
            for k in range(4):
                n = 4 * i + k
                a(f"v_cmp_gt_u32 s[{m+2*k}:{m+2*k+1}], s16, v{64+n}")
                a(f"v_lshlrev_b32_sdwa v{80+n}, 2, v{64+n} dst_sel:DWORD dst_unused:UNUSED_PAD src0_sel:DWORD src1_sel:WORD_1")

        for i in range(2):
            a(f"s_waitcnt vmcnt({1-i})")
            if i == 1:
                a("s_mov_b64 exec, s[14:15]")
            for k in range(4):
                a(f"v_xor_b32 v{64+4*i+k}, s{TG+k}, v{48+4*i+k}")
            if i == 1:
                a("s_mov_b64 exec, -1\nv_or3_b32 v40, v40, v68, v69\nv_or3_b32 v40, v40, v70, v71")
            else:
                a("v_or3_b32 v40, v64, v65, v66\nv_or_b32 v40, v40, v67")
            a(f"v_cmp_eq_u32 s[{72+2*i}:{73+2*i}], s17, v{67+4*i}")
            if i == 0:
                decode(0, MK)
        a(f"v_cmp_le_u32 vcc, 0x400000, v40\ns_cbranch_vccnz {self.retry(l, 4)}")
        self.stamp("Sin")
        for i in range(2):
            ln = self.lab("nosec")
            a(f"""
            s_wqm_b64 s[{72+2*i}:{73+2*i}], s[{72+2*i}:{73+2*i}]
            s_not_b64 exec, s[{72+2*i}:{73+2*i}]
            s_cbranch_scc0 {ln}
            {iload(2 + i)}
            {ln}:
            """)
        a("s_mov_b64 exec, -1")
        decode(1, MK + 8)
        for n in range(8):
            a(f"s_mov_b64 exec, s[{MK+2*n}:{MK+2*n+1}]\nds_add_rtn_u32 v{80+n}, v{80+n}, v42 offset:{LCNT}")
        a("s_mov_b64 exec, -1")
        nla = (len(late) + 1) // 2
        for t in late[:nla]:
            arow(t, False)
        for n in range(8):
            if n % 4 == 0:
                a("s_waitcnt lgkmcnt(4)")
            a(f"s_mov_b64 exec, s[{MK+2*n}:{MK+2*n+1}]\nds_write_b16 v{80+n}, v{64+n}")
        for i in (2, 3):
            lp, ld, lr = (self.lab(x) for x in ("sec", "secdone", "secload"))
            a(f"s_not_b64 exec, s[{68+2*i}:{69+2*i}]\ns_cbranch_scc0 {ld}\ns_waitcnt vmcnt({2 * nla})\n{lp}:")
            for k in range(4):
                a(f"v_xor_b32 v{64+4*i+k}, s{TG+k}, v{48+4*i+k}")
            a(f"""
            v_or3_b32 v40, v{64+4*i}, v{65+4*i}, v{66+4*i}
            v_or_b32 v40, v40, v{67+4*i}
            v_cmp_le_u32 vcc, 0x400000, v40
            s_cbranch_vccnz {self.retry(lr, 2)}
            v_and_b32 v40, {OVF}, v{67+4*i}
            v_cmp_eq_u32 vcc, {OVF}, v40
            """)
            decode(i, MK + 16)
            for k in range(4):
                a(f"s_mov_b64 exec, s[{MK+16+2*k}:{MK+17+2*k}]\nds_add_rtn_u32 v{80+4*i+k}, v{80+4*i+k}, v42 offset:{LCNT}")
            a(f"s_mov_b64 exec, vcc\nds_write_b32 v{vZ}, v{vOne} offset:{C_OVF}\ns_waitcnt lgkmcnt(0)")
            for k in range(4):
                a(f"s_mov_b64 exec, s[{MK+16+2*k}:{MK+17+2*k}]\nds_write_b16 v{80+4*i+k}, v{64+4*i+k}")
            a(f"{ld}:")
            self.cold.append(f"{lr}:\n{iload(i)}\ns_waitcnt vmcnt(0)\ns_branch {lp}")
        self.signal(C_LIST, vZ, vOne)
        self.stamp("Slw")
        for t in late[(len(late) + 1) // 2:]:
            arow(t, False)
        a(f"""
        s_lshl_b32 s{sQ[0]}, s31, 1
        s_add_u32 s{sQ[1]}, s{sQ[0]}, 1
        s_add_u32 s{sQ[2]}, s{sQ[0]}, 8
        s_add_u32 s{sQ[3]}, s{sQ[0]}, 9
        s_add_u32 s{sQ[4]}, s31, 16
        v_add_u32 v47, -1, v{vN}
        v_bfe_u32 v40, v47, 1, 1
        v_and_b32 v41, 1, v47
        v_lshl_add_u32 v40, v40, 3, v41
        v_add_u32 v40, s{sQ[0]}, v40
        v_mov_b32 v41, s{sQ[4]}
        v_cmp_ne_u32 vcc, 0, v{vN}
        v_min_u32 v47, 19, v2
        v_mul_u32_u24 v46, {LSTRIDE}, v47
        v_cndmask_b32 v40, v41, v40, vcc
        v_mul_u32_u24 v41, {LSTRIDE}, v40
        v_add_u32 v41, {LIST}, v41
        v_lshlrev_b32 v40, 2, v40
        v_add_u32 v46, {LIST + 2*LCAP}, v46
        v_lshlrev_b32 v47, 2, v47
        v_lshlrev_b32 v43, 3, v{vN}
        v_lshl_add_u32 v43, v{vG}, 1, v43
        """)
        self.wait_cnt(C_LIST, 4, vZ, 44)
        self.stamp("Sls")
        a(f"""
        ds_read_b32 v44, v40 offset:{LCNT}
        ds_read_b32 v47, v47 offset:{LCNT}
        ds_read_b32 v45, v{vZ} offset:{C_OVF}
        s_waitcnt lgkmcnt(2)
        v_sub_u32 v44, v44, v41
        v_max_u32 v44, 18, v44
        s_waitcnt lgkmcnt(0)
        v_cmp_gt_u32 vcc, v47, v46
        v_add_u32_dpp v48, v44, v44 row_shr:1 {DPPF} bound_ctrl:1
        v_readfirstlane_b32 s{sSlow}, v45
        s_or_b32 s64, vcc_lo, vcc_hi
        v_add_u32_dpp v48, v48, v48 row_shr:2 {DPPF} bound_ctrl:1
        s_or_b32 s{sSlow}, s{sSlow}, s64
        s_mov_b32 s{sF}, 0
        v_add_u32_dpp v48, v48, v48 row_shr:4 {DPPF} bound_ctrl:1
        v_sub_u32 v44, v48, v44
        v_sub_u32 v44, v41, v44
        """)
        BT, BU = 160, 40
        for j in range(5):
            a(f"v_readlane_b32 s{sP[j]}, v48, {j}")
        for j in range(5):
            a(f"v_add_u32_dpp v{BT+j}, v44, v43 row_newbcast:{j} {DPPF}")
        a(f"""
        s_add_u32 s{sG}, s{sP[4]}, 14
        s_lshr_b32 s{sG}, s{sG}, 4
        s_cmp_gt_u32 s{sG}, 32
        s_cselect_b32 s{sSlow}, 1, s{sSlow}
        s_max_u32 s{sG}, s{sG}, {8 + R // 2}
        """)

        def build(chunks):
            for c in chunks:
                a(f"v_add_u32 v{BU+c}, {128*c}, v43")
                for j in range(4):
                    a(f"v_cmp_le_u32 s[{64+2*j}:{65+2*j}], s{sP[j]}, v{BU+c}")
                for j in range(4):
                    a(f"v_cndmask_b32 v{BU+c}, v{BT if j == 0 else BU+c}, v{BT+1+j}, s[{64+2*j}:{65+2*j}]")
                a(f"ds_read_u16 v{BU+c}, v{BU+c} offset:{128*c}")
            for n, c in enumerate(chunks):
                a(f"""
                s_waitcnt lgkmcnt({len(chunks) - 1})
                v_and_b32 v{EA[c]}, 0x7ffe, v{BU+c}
                ds_read_u16 v{EW[c]}, v{EA[c]} offset:{DIS}
                v_lshlrev_b32 v{EA[c]}, 8, v{EA[c]}
                v_lshlrev_b32 v{BU+c}, 4, v{BU+c}
                """)

        def finish(chunks):
            for c in chunks:
                a(f"v_lshlrev_b32 v{EW[c]}, v{BU+c}, v{EW[c]}\nds_bpermute_b32 v{EW[c]}, v46, v{EW[c]}")

        def issue(u, halves=(0, 1)):
            a(f"v_add_u32_dpp v{vAd}, v{EA[u // 16]}, v{vLo} row_newbcast:{u % 16} {DPPF}")
            for h in halves:
                a(f"buffer_load_dwordx4 {r4(RG(u, h))}, v{vAd}, s[{X}:{X+3}], 0 offen offset:{256*h}")

        build([0, 1, 2, 3])
        self.stamp("Sent")
        for t in late2:
            arow(t, False)
        for u in range(self.npre):
            issue(u)
        pend, pend2 = list(range(self.npre, 12)), list(range(12, NPRO))
        a(f"s_mov_b32 s{sGam}, 0")
        for j in range(4, -1, -1):
            a(f"""
            s_sub_u32 s64, s{sP[j]}, 18
            s_lshr_b32 s65, s64, 4
            s_bitset1_b32 s{sF}, s65
            s_and_b32 s64, s64, 14
            s_lshl4_add_u32 s{sGam}, s{sGam}, s64
            s_and_b32 s65, s{sQ[j]}, 7
            s_lshl_b32 s65, s65, 5
            s_lshl_b32 s{sK[j]}, s{sQ[j]}, 10
            s_or_b32 s{sK[j]}, s{sK[j]}, s65
            """)
        TA = [144, 145, 146, 147, 148, 149]
        P = lambda t: 150 + t
        TF = lambda s, h: 160 + s * 8 + 4 * h
        a(f"""
        s_sub_u32 s64, s{sG}, {R // 2 + 1}
        s_lshl_b32 s{sD}, 1, s64
        s_or_b32 s{sM}, s{sD}, s{sF}
        v_and_b32 v46, 1, v{vN}
        v_lshl_add_u32 v46, v{vG}, 1, v46
        v_and_b32 v46, 3, v46
        v_and_b32 v47, 14, v{vN}
        v_lshl_add_u32 v46, v46, 4, v47
        v_lshrrev_b32 v47, 1, v{vG}
        v_add_lshl_u32 v46, v46, v47, 2
        v_lshrrev_b32 v44, 1, v{vG}
        v_mul_u32_u24 v44, 528, v44
        v_xor_b32 v44, v44, v{vLo}
        v_and_b32 v45, 1, v{vG}
        v_lshl_or_b32 v{vFa}, v45, 3, v44
        v_xor_b32 v{TA[0]}, s{sK[0]}, v{vLo}
        v_xor_b32 v{TA[2]}, s{sK[1]}, v{vLo}
        v_xor_b32 v{TA[4]}, s{sK[4]}, v{vLo}
        v_xor_b32 v{TA[1]}, 528, v{TA[0]}
        v_xor_b32 v{TA[3]}, 528, v{TA[2]}
        v_xor_b32 v{TA[5]}, 528, v{TA[4]}
        s_mul_i32 s64, s1, 80
        s_add_u32 s64, s64, {DIS}
        v_and_b32 v45, 2, v{vG}
        v_add_u32 v{vEs}, s64, v45
        s_getpc_b64 s[{sAnc}:{sAnc+1}]
        L_anc:
        v_lshlrev_b32 v{vG}, 2, v{vG}
        s_mov_b32 s{sMode}, L_fp1-L_anc
        s_mov_b32 s{sMode+1}, L_fp1-L_fp0
        s_mov_b32 s{sDr}, L_dr1-L_anc
        s_mov_b32 s{sDr+1}, L_dr1-L_dr0
        s_mov_b32 s{sJ}, 0
        s_mov_b32 s{sT}, 0
        v_mov_b32 v{vJ}, 0
        s_lshl_b32 s64, s31, 2
        v_mov_b32 v{vPa}, s64
        v_and_b32 v9, 8, v{vN}
        v_lshlrev_b32 v9, 1, v9
        s_mov_b32 s66, 0x22222222
        s_mov_b32 s67, 0x22222222
        s_mov_b32 s68, 0x44444444
        s_mov_b32 s69, 0x44444444
        """)
        for t in range(0, 10, 2):
            a(f"v_mov_b64 {r2(P(t))}, 0")
        for k in range(4):
            a(f"v_mov_b64 {r2(ACC + 2*k)}, 0")
        a("s_waitcnt lgkmcnt(0)")
        finish([0, 1, 2, 3])
        a(f"s_waitcnt vmcnt({2 * self.npre}) lgkmcnt(0)")
        self.stamp("Srdy")
        a("s_barrier")
        self.stamp("Sbt")

        def tread(t):
            ad, off = (TA[t & 3], 8192 * (t >> 2)) if t < 8 else (TA[t - 4], 0)
            for h in range(2):
                a(f"ds_read_b128 {r4(TF(t & 1, h))}, v{ad} offset:{TT + off + 256*h}")

        def level1(t):
            a(f"v_add_f32_dpp v{P(t)}, v{P(t)}, v{P(t)} row_ror:8 row_mask:0xf bank_mask:0x3")
            a(f"v_add_f32_dpp v{P(t)}, v{P(t+1)}, v{P(t+1)} row_ror:8 row_mask:0xf bank_mask:0xc")

        def level2(t):
            a(f"v_add_f32_dpp v{P(t)}, v{P(t)}, v{P(t)} row_half_mirror row_mask:0xf bank_mask:0x5")
            if t < 8:
                a(f"v_add_f32_dpp v{P(t)}, v{P(t+2)}, v{P(t+2)} row_half_mirror row_mask:0xf bank_mask:0xa")

        tread(0)
        for t in range(10):
            if t < 9:
                tread(t + 1)
            a(f"s_waitcnt lgkmcnt({2 if t < 9 else 0})")
            for h in range(2):
                for k in range(4):
                    a(f"v_dot2c_f32_bf16 v{P(t)}, v{AT(t, h)+k}, v{TF(t & 1, h)+k}")
            if t >= 2 and t % 2 == 0:
                level1(t - 2)
            if t in (5, 9):
                level2(t - 5)
            for _ in range(-(-len(pend) // (10 - t)) if t >= self.slate else 0):
                issue(pend.pop(0))
        self.stamp("Sdot")
        vE = P(0)
        a(f"""
        v_add_f32_dpp v{P(0)}, v{P(0)}, v{P(0)} quad_perm:[1,0,3,2] {DPPF}
        s_nop 0
        """)
        level1(8)
        a(f"""
        v_add_f32_dpp v{P(4)}, v{P(4)}, v{P(4)} quad_perm:[1,0,3,2] {DPPF}
        v_add_f32_dpp v{P(0)}, v{P(0)}, v{P(0)} quad_perm:[2,3,0,1] {DPPF}
        """)
        level2(8)
        a(f"""
        v_add_f32_dpp v{P(4)}, v{P(4)}, v{P(4)} quad_perm:[2,3,0,1] {DPPF}
        s_nop 0
        v_add_f32_dpp v{P(8)}, v{P(8)}, v{P(8)} quad_perm:[1,0,3,2] {DPPF}
        v_cndmask_b32 v{vE}, v{vE}, v{P(4)}, s[66:67]
        s_nop 0
        v_add_f32_dpp v{P(8)}, v{P(8)}, v{P(8)} quad_perm:[2,3,0,1] {DPPF}
        v_cndmask_b32 v{vE}, v{vE}, v{P(8)}, s[68:69]
        v_mul_f32 v{vE}, 0x3db8aa3b, v{vE}
        v_exp_f32 v{vE}, v{vE}
        s_nop 0
        v_mov_b32 v44, v{vE}
        v_mov_b32 v45, v{vE}
        s_nop 1
        v_permlane32_swap_b32 v44, v45
        v_add_f32 v44, v44, v45
        v_mov_b32 v45, v44
        s_nop 1
        v_permlane16_swap_b32 v44, v45
        v_add_f32 v44, v44, v45
        v_add_f32 v44, 0x3089705f, v44
        v_rcp_f32 v44, v44
        s_nop 0
        v_mul_f32 v{vE}, v{vE}, v44
        v_cvt_pk_bf16_f32 v{vE}, v{vE}, 0
        v_lshlrev_b32 v8, v9, v{vE}
        s_nop 1
        """)
        vE = 8
        self.stamp("Ssm")
        elane = lambda t: 4 * [0, 2, 1, 3][t & 3] + (t >> 2)

        def wops(src, lane, p):
            return [f"v_and_b32_dpp v{A[p]+r}, v{src}, v{MSK+r} row_newbcast:{lane} {DPPF}" for r in range(2)]

        def wops8(s_, p):
            return [f"v_and_b32_dpp v{A[p]+2*e+r}, v{EW[s_ // 8]}, v{MSK+r} row_newbcast:{2*(s_ % 8)+e} {DPPF}"
                    for e in range(2) for r in range(2)]

        AV = lambda j: 40 if j % 2 == 0 else ACC

        def zero(c):
            for k in range(4):
                self.mov2(c + 2 * k, None)

        def aflush(j):
            c, f = AV(j), FS((j + 1) % 5)
            a(f"v_xor_b32 v{f}, s{sK[j]}, v{vFa}\ns_lshl_b32 s64, s{sQ[j]}, 2\nv_add_u32 v9, s64, v{vEs}\nv_mov_b32 v{f+1}, 0")
            for h in range(2):
                a(f"""
                v_cvt_pk_bf16_f32 v{30}, v{c+4*h}, v{c+4*h+1}
                v_cvt_pk_bf16_f32 v{31}, v{c+4*h+2}, v{c+4*h+3}
                ds_write_b64 v{f}, v[30:31] offset:{XT + 256*h}
                """)
            a(f"ds_read_u16_d16_hi v{f+1}, v9")
            if j < 4:
                zero(c)

        for o in wops(vE, elane(0), 0):
            a(o)
        zero(40)
        for t in range(10):
            nxt = wops(vE, elane(t + 1), (t + 1) & 1) if t < 9 else wops8(0, 0)
            c0 = AV(t // 2)
            a(f"{SM} {r4(c0)}, {r2(A[t & 1])}, {r4(AT(t, 0))}, v{vIx}")
            a("\n".join(nxt))
            a(f"{SM} {r4(c0 + 4)}, {r2(A[t & 1])}, {r4(AT(t, 1))}, v{vIx}")
            if pend2 and t % 2 == 0:
                issue(pend2.pop(0))
            elif t & 1 and t >= 3:
                aflush(t // 2 - 1)
                a("s_nop 0")
            else:
                a("s_nop 0")
        aflush(4)
        assert not pend and not pend2
        a("s_waitcnt lgkmcnt(0)\ns_barrier")
        self.stamp("Sbv")
        a(f"s_cmp_lg_u32 s{sSlow}, 0\ns_cbranch_scc1 L_slow")

        def rotate():
            for c in range(3):
                self.mov2(EA[c], EA[c + 1])
            for m in (sM, sF, sD):
                a(f"s_lshr_b32 s{m}, s{m}, 8")

        a("; ---- S: gather ring (first pass, steady, drain), 8 edges per step")
        assert R % 2 == 0 and 12 <= NPRO <= 16
        for mode in ("fp", "st", "dr"):
            for t in range(8):
                nxt = wops8(t + 1, (t + 1) & 1)
                ladder = mode == "dr"
                a(f"L_{mode}{t}:\n" + (f"s_add_u32 s{sT}, s{sT}, 1" if ladder else f"s_bitcmp1_b32 s{sM}, {t}"))
                if mode == "dr":
                    a(f"ds_write_b32 v{vPa}, v{vOne} offset:{C_DR}")
                a(f"s_waitcnt vmcnt({2 * NPRO + FPL * t - 4 * (t + 1) if mode == 'fp' else 2*R - 4})")
                a(f"{SX} {r4(ACC)}, {r4(A[t & 1])}, {r8(RG(2*t, 0))}, v{vIx}")
                a(nxt[0] + "\n" + nxt[1])
                a(f"{SX} {r4(ACC+4)}, {r4(A[t & 1])}, {r8(RG(2*t, 1))}, v{vIx}")
                a(nxt[2] + "\n" + nxt[3])
                if mode == "st":
                    issue(2 * t + R)
                    issue(2 * t + R + 1)
                if mode == "fp":
                    ns = range(FPL * t, FPL * (t + 1))
                    for u in sorted({n // 2 for n in ns}):
                        issue(NPRO + u, [n % 2 for n in ns if n // 2 == u])
                if ladder:
                    nw = R // 2 - 1
                    for k in range(1, nw):
                        a(f"s_cmp_eq_u32 s{sT}, {k}\ns_cbranch_scc1 L_dw{t}_{k}")
                    for k in range(nw, 0, -1):
                        a(f"L_dw{t}_{k}:\ns_waitcnt vmcnt({2*R - 4 - 4*k})")
                    a(f"s_bitcmp1_b32 s{sM}, {t}")
                a(f"s_cbranch_scc1 L_ev{t}")
            a(f"L_{mode}8:")
            rotate()
            if mode == "fp":
                a(f"s_mov_b32 s{sMode}, L_st1-L_anc\ns_mov_b32 s{sMode+1}, L_st1-L_st0")
            else:
                a(f"s_branch L_{mode}0")
                if mode == "st":
                    a("L_pad8:\ns_setpc_b64 s[68:69]")
        a("; ---- S: list boundaries and flush")
        for t in range(8):
            n = (t + 1) & 7
            An = A[n & 1]
            a(f"L_pad{t}:\ns_setpc_b64 s[68:69]")
            a(f"""
            L_ev{t}:
            s_and_b32 s65, s{sGam}, 15
            v_cmp_ge_u32 s[66:67], s65, v{vG}
            v_cmp_gt_u32 s[68:69], s65, v{vG}
            s_bitcmp1_b32 s{sD}, {t}
            s_cselect_b64 s[{sMode}:{sMode+1}], s[{sDr}:{sDr+1}], s[{sMode}:{sMode+1}]
            v_cndmask_b32 v40, 0, v{An}, s[66:67]
            v_cndmask_b32 v41, 0, v{An+1}, s[66:67]
            v_cndmask_b32 v42, 0, v{An+2}, s[68:69]
            v_cndmask_b32 v43, 0, v{An+3}, s[68:69]
            s_mul_i32 s64, s{sMode+1}, {t}
            s_bitcmp1_b32 s{sF}, {t}
            s_cbranch_scc0 L_evret
            s_waitcnt vmcnt({2*R - 4})
            {SX} {r4(ACC)}, v[40:43], {r8(RG(2*n, 0))}, v{vIx}
            v_xor_b32 v{An}, v{An}, v40
            v_xor_b32 v{An+1}, v{An+1}, v41
            {SX} {r4(ACC+4)}, v[40:43], {r8(RG(2*n, 1))}, v{vIx}
            v_xor_b32 v{An+2}, v{An+2}, v42
            v_xor_b32 v{An+3}, v{An+3}, v43
            {"s_branch L_flush" if t < 7 else "s_nop 0"}
            """)
        a(f"""
        L_flush:
        s_lshr_b32 s{sGam}, s{sGam}, 4
        s_cmp_eq_u32 s{sJ}, 4
        v_add_u32 v{vJ}, 1, v{vJ}
        """)
        for h in range(2):
            for k in range(4):
                a(f"v_mul_f32 v{40+4*h+k}, v{FS(0)+1}, v{ACC+4*h+k}")
            a(f"""
            v_cvt_pk_bf16_f32 v{40+4*h}, v{40+4*h}, v{41+4*h}
            v_cvt_pk_bf16_f32 v{41+4*h}, v{42+4*h}, v{43+4*h}
            ds_write_b64 v{FS(0)}, v[{40+4*h}:{41+4*h}] offset:{AG + 256*h}
            """)
        a(f"ds_write_b32 v{vPa}, v{vJ} offset:{C_AG}\ns_cbranch_scc1 L_sdone")
        if self.prof and "Sfl" in self.st:
            a("s_waitcnt lgkmcnt(0)\ns_mov_b64 s[86:87], s[88:89]\ns_mov_b64 s[88:89], s[90:91]\ns_mov_b64 s[90:91], s[92:93]\ns_memrealtime s[92:93]")
        zero(ACC)
        a(f"s_add_u32 s{sJ}, s{sJ}, 1")
        for j in range(4):
            self.mov2(FS(j), FS(j + 1))
        a(f"""
        L_evret:
        s_add_u32 s64, s64, s{sMode}
        s_add_u32 s{sRet}, s{sAnc}, s64
        s_addc_u32 s{sRet+1}, s{sAnc+1}, 0
        s_setpc_b64 s[{sRet}:{sRet+1}]
        """)
        a("L_pad9:\ns_setpc_b64 s[68:69]")
        a("; ---- S: general path (any degree distribution): scan all edges per node pair")
        a(f"""
        L_slow:
        s_mov_b32 s{sMode}, L_slow_pair-L_anc
        v_mbcnt_lo_u32_b32 v200, -1, 0
        v_mbcnt_hi_u32_b32 v200, -1, v200
        L_slow_pair:
        v_lshlrev_b32 v201, 2, v200
        s_mul_i32 s70, s1, 40
        s_lshl1_add_u32 s70, s{sQ[4]}, s70
        s_mov_b32 s71, 0
        s_mov_b32 s{sQ[4]}, s{sQ[0]}
        s_mov_b32 s{sQ[0]}, s{sQ[1]}
        s_mov_b32 s{sQ[1]}, s{sQ[2]}
        s_mov_b32 s{sQ[2]}, s{sQ[3]}
        L_slow_chunk:
        global_load_dword v202, v201, s[8:9]
        global_load_dword v203, v201, s[6:7]
        v_add_u32 v201, 0x100, v201
        s_waitcnt vmcnt(0)
        v_subrev_u32 v202, s70, v202
        v_cmp_gt_u32 vcc, 2, v202
        v_lshlrev_b32 v204, 1, v203
        ds_read_u16 v204, v204 offset:{DIS}
        s_mov_b64 s[76:77], vcc
        v_lshlrev_b32 v202, 4, v202
        v_lshlrev_b32 v203, 9, v203
        s_waitcnt lgkmcnt(0)
        v_lshlrev_b32 v204, v202, v204
        L_slow_edge:
        s_cmp_eq_u64 s[76:77], 0
        s_cbranch_scc1 L_slow_next
        s_ff1_i32_b64 s74, s[76:77]
        s_bitset0_b64 s[76:77], s74
        v_readlane_b32 s64, v203, s74
        v_readlane_b32 s65, v204, s74
        v_mov_b32 v{vW}, 0
        v_mov_b32 v{vAd}, {OOB}
        s_mov_b64 exec, 0xffff
        v_mov_b32 v{vW}, s65
        v_add_u32 v{vAd}, s64, v{vLo}
        s_mov_b64 exec, -1
        buffer_load_dwordx4 v[208:211], v{vAd}, s[{X}:{X+3}], 0 offen
        buffer_load_dwordx4 v[212:215], v{vAd}, s[{X}:{X+3}], 0 offen offset:256
        """)
        for r in range(2):
            a(f"v_and_b32 v{A[0]+r}, v{vW}, v{MSK+r}")
        a(f"""
        s_nop 0
        s_waitcnt vmcnt(0)
        {SM} {r4(ACC)}, {r2(A[0])}, v[208:211], v{vIx}
        {SM} {r4(ACC+4)}, {r2(A[0])}, v[212:215], v{vIx}
        s_branch L_slow_edge
        L_slow_next:
        s_add_u32 s71, s71, 1
        s_cmp_lt_u32 s71, 2500
        s_cbranch_scc1 L_slow_chunk
        s_mov_b32 s64, 0
        s_nop 3
        s_branch L_flush
        L_sdone:
        ds_write_b32 v{vPa}, v{vOne} offset:{C_DR}
        s_waitcnt lgkmcnt(0)
        s_barrier
        """)
        self.stamp("Send")
        self.dump()
        a("s_endpgm")
        self.flush_cold()
        self.mrole = mrole

    def kernel(self, label):
        self.entry()
        self.sparse_waves()
        self.a.lines += self.mrole.lines
        self.gemm_waves()
        self.a("L_end:\ns_endpgm")
        return dict(label=label, body=self.a.text(), grid=NWG, block=512, lds=LDS_BYTES, vgpr=256)

    def build(self):
        return wrap([self.kernel(NAME + "_kernel")], ABOUT)


if __name__ == "__main__":
    opts = {k: (v if k in ("st", "go") else int(v)) for k, v in (kv.split("=") for kv in sys.argv[2:])}
    open(sys.argv[1], "w").write(Gen(**opts).build())
```

```python
import sys
from asmlib import *

NMAIN, NWG = 250, 253
WS_FLAG, WS_M, WS_INBOX, WS_STAMP = 0x1000, 0x10000, 0x100000, 0x8000000
C_BIN, C_XT, C_HV, C_H, C_LIST, C_OVF, C_AG, C_DR = 0, 4, 8, 12, 16, 20, 32, 48
LCNT, BCNT = 128, 512
XT, TT, AG, DIS, WST = 1024, 21504, 41984, 62464, 82944
LIST, LSTRIDE, LCAP = 148480, 264, 124
LDS_BYTES = 161792
BST = AG
EMPTY, OVF = 30 << 16, 31 << 16
PAD2 = 0x4E204E20
OOB = 0x80000000
DPPF = "row_mask:0xf bank_mask:0xf"
r4 = lambda r: f"v[{r}:{r+3}]"
MF = "v_mfma_f32_16x16x32_bf16"
SM = "v_smfmac_f32_16x16x32_bf16"
SX = "v_smfmac_f32_16x16x64_bf16"
r8 = lambda r: f"v[{r}:{r+7}]"
r2 = lambda r: f"v[{r}:{r+1}]"


ABOUT = """;
; alpha = exp(e) / (sum exp(e) + 1e-9),  e_j = (x[d] @ M) . x[esrc_j] / 16,  M = wq @ wk^T,  edst = repeat(arange(N), 4).
; from d_ws word 0 (advanced at the end of each launch) tells this launch's hand-offs from older contents.
"""


class Gen:
    def __init__(self, prof=0, st=None, spin=1 << 26, noepoch=0,
                 gprio=2, sprio=1, gsleep=1, msleep=2, nrep=8,
                 gstart=3, gthr0=10, gthr=7, gfree=7, fpos=1, mring=10, wlin=10, gwait=1,
                 sthr=6, ipos=7, lpos=0, npre=6, slate=4, lag=8, mbar=2, xa=2, go="icpbxwtd"):
        self.__dict__.update(locals())
        self.a = Asm()
        self.st = (st or "Gm,Gtf,Gbv,Gwl,Gst,Ga2,Srole,Sin,Sent,Srdy,Sbt,Sbv").split(",") + ["Gend", "Send"]
        self.uid = 0

    def lab(self, p):
        self.uid += 1
        return f"L_{p}_{self.uid}"

    def stamp(self, name):
        if self.prof:
            sel = [n for n in self.st if n[0] == name[0]]
            if name in sel:
                i = 7 if name[1:] == "end" else 1 + sel.index(name)
                self.a(f"s_memrealtime s[{80+2*i}:{81+2*i}]")

    def srd(self, r, p, size, add=0):
        a = self.a
        if add:
            a(f"s_add_u32 s{r}, s{p}, {add}\ns_addc_u32 s{r+1}, s{p+1}, 0\ns_and_b32 s{r+1}, s{r+1}, 0xffff")
        else:
            a(f"s_mov_b32 s{r}, s{p}\ns_and_b32 s{r+1}, s{p+1}, 0xffff")
        a(f"s_mov_b32 s{r+2}, {size}\ns_mov_b32 s{r+3}, 0x20000")

    def signal(self, off, vz, vone):
        self.a(f"""
        s_waitcnt lgkmcnt(0)
        s_mov_b64 exec, 1
        ds_add_u32 v{vz}, v{vone} offset:{off}
        s_mov_b64 exec, -1
        """)

    def retry(self, l, sleep):
        r = self.lab("retry")
        self.cold.append(f"""
        {r}:
        s_sub_u32 s100, s100, 1
        s_cbranch_scc1 L_end
        {f"s_sleep {sleep}" if sleep else ""}
        s_branch {l}
        """)
        return r

    def wait_cnt(self, off, target, vz, vt, geth=False, sleep=1):
        l = self.lab("spin")
        if geth:
            rd, v = f"ds_read_b128 {r4(vt)}, v{vz}", vt + off // 4
        else:
            rd, v = f"ds_read_b32 v{vt}, v{vz} offset:{off}", vt
        self.a(f"""
        {l}:
        {rd}
        s_waitcnt lgkmcnt(0)
        v_readfirstlane_b32 s101, v{v}
        """)
        if geth:
            self.a(f"v_readfirstlane_b32 s30, v{vt + C_H // 4}")
        self.a(f"s_cmp_ge_u32 s101, {target}\ns_cbranch_scc0 {self.retry(l, sleep)}")

    def mov2(self, d, src):
        self.a(f"v_mov_b64 {r2(d)}, {0 if src is None else r2(src)}")

    def warm(self):
        a = self.a
        done = self.lab("warmed")
        for w in range(4):
            nx = self.lab("nw")
            if w < 3:
                a(f"s_cmp_eq_u32 s31, {w}\ns_cbranch_scc0 {nx}")
            for p in [2 * w, 2 * w + 1] + ([8 + w] if w < 2 else []):
                a(f"s_call_b64 s[68:69], L_pad{p}")
            if w < 3:
                a(f"s_branch {done}\n{nx}:")
        a(f"{done}:")

    def flush_cold(self):
        for c in self.cold:
            self.a(c)
        self.cold = []

    def dump(self):
        if not self.prof:
            return
        a = self.a
        a("s_memtime s[98:99]\ns_waitcnt lgkmcnt(0)\nv_mov_b32 v10, 0")
        for i in range(20):
            a(f"v_writelane_b32 v10, s{80+i}, {i}")
        a(f"""
        s_getreg_b32 s64, hwreg(HW_REG_XCC_ID)
        v_writelane_b32 v10, s64, 20
        s_lshl_b32 s64, s2, 3
        s_add_u32 s64, s64, s3
        s_lshl_b32 s64, s64, 7
        s_add_u32 s64, s64, {WS_STAMP}
        v_mbcnt_lo_u32_b32 v11, -1, 0
        v_mbcnt_hi_u32_b32 v11, -1, v11
        v_cmp_gt_u32 vcc, 32, v11
        v_lshl_add_u32 v11, v11, 2, s64
        s_and_saveexec_b64 s[66:67], vcc
        global_store_dword v11, v10, s[28:29]
        """)

    def entry(self):
        a = self.a
        self.cold = []
        a("L_begin:")
        if self.prof:
            a("s_memrealtime s[80:81]\ns_memtime s[96:97]")
        a(f"""
        s_cmp_ge_u32 s2, {NWG}
        s_cbranch_scc1 L_end
        s_load_dwordx16 s[4:19], s[0:1], 0
        s_load_dwordx8 s[20:27], s[0:1], 64
        s_load_dwordx2 s[28:29], s[0:1], 96
        """)
        a(f"""
        s_and_b32 s64, s2, 0xf8
        s_cmp_lg_u32 s64, 8
        s_cbranch_scc1 L_nopf
        s_getpc_b64 s[32:33]
        L_pc:
        v_lshlrev_b32 v1, 6, v0
        v_min_u32 v1, L_end-L_pc, v1
        global_load_dword v255, v1, s[32:33]
        L_nopf:
        """)
        a("""
        v_lshrrev_b32 v1, 6, v0
        v_and_b32 v2, 63, v0
        v_readfirstlane_b32 s3, v1
        s_and_b32 s67, s2, 7
        s_and_b32 s31, s3, 3
        s_cmp_lt_u32 s3, 4
        s_cbranch_scc1 L_gemm
        """)

    def common(self):
        self.a(f"""
        v_and_b32 v3, 15, v2
        v_lshrrev_b32 v4, 4, v2
        v_mov_b32 v5, 0
        v_mov_b32 v6, 1
        s_mov_b32 s100, {self.spin}
        s_bfe_u32 s65, s2, 0x10003
        s_lshl1_add_u32 s64, s67, s65
        s_and_b32 s65, s2, 0xf0
        s_or_b32 s64, s64, s65
        s_cmp_lt_u32 s2, 240
        s_cselect_b32 s1, s64, s2
        """)
        if self.prof:
            for i in range(1, 8):
                self.a(f"s_mov_b64 s[{80+2*i}:{81+2*i}], 0")

    def lds_init(self):
        a = self.a
        a(f"""
        v_lshlrev_b32 v8, 4, v0
        v_lshlrev_b32 v10, 2, v0
        v_mov_b32 v32, {EMPTY}
        v_mov_b32 v33, {EMPTY}
        v_mov_b64 v[34:35], v[32:33]
        v_subrev_u32 v9, {LCNT // 4}, v0
        v_cmp_gt_u32 vcc, 20, v9
        """)
        for i in range(4):
            a(f"ds_write_b128 v8, v[32:35] offset:{BST + 4096*i}")
        a(f"""
        v_mul_u32_u24 v9, {LSTRIDE}, v9
        v_add_u32 v9, {LIST}, v9
        v_cndmask_b32 v9, 0, v9, vcc
        ds_write_b32 v10, v9
        v_mov_b32 v16, {PAD2}
        v_mov_b32 v17, {PAD2}
        v_mov_b64 v[18:19], v[16:17]
        v_add_u32 v9, {LIST}, v8
        ds_write_b128 v9, v[16:19]
        ds_write_b128 v9, v[16:19] offset:4096
        """)

    def gemm_waves(self):
        a = self.a
        W = lambda jb, ks: 128 + (ks * 4 + jb) * 4
        ACC = lambda b, jb: 80 + (b * 4 + jb) * 4
        MR = lambda n: 40 + (n % 10) * 4
        BF = lambda s, b: 16 + (s * 3 + b) * 4
        vN, vG, vZ, vOne = 3, 4, 5, 6
        vB = [7, 8, 9, 10]
        vTR = [11, 12]
        vD, vM, vT = 13, 14, 15
        X, WV, WL, WS, OUT = 32, 36, 40, 44, 48
        thr = self.gthr

        a("L_gemm:")
        a("; ---- G waves: LDS initialisation, first touches, x tile and wv staging (LDS-DMA + transposing reads)")

        def xtile(lo=0, hi=5):
            for i in range(lo, hi):
                a(f"s_add_u32 m0, s66, {XT + i*4096}")
                a("s_add_u32 s63, s63, 4096" if i else "s_nop 0")
                a(f"buffer_load_dwordx4 v{30 + (i & 1)}, s[{X}:{X+3}], s63 offen lds")

        def g_common():
            self.common()
            a(f"""
            v_lshrrev_b32 v28, 5, v0
            v_and_b32 v1, 31, v2
            v_xor_b32 v1, v1, v28
            v_lshlrev_b32 v1, 4, v1
            v_lshl_add_u32 v30, v28, 9, v1
            v_xor_b32 v31, 0x80, v30
            s_mul_i32 s63, s1, 20480
            s_lshl_b32 s66, s31, 10
            s_waitcnt lgkmcnt(0)
            """)
            self.srd(X, 4, 5120000)

        def g_x():
            self.stamp("Gx")
            xtile(0, self.xa)

        def g_pages():
            a(f"""
            s_min_u32 s64, s1, {NMAIN - 1}
            s_mul_i32 s64, s64, 20480
            s_cmp_eq_u32 s31, 0
            s_cselect_b64 s[68:69], s[24:25], s[16:17]
            s_cselect_b32 s64, s64, 0
            s_cmp_eq_u32 s31, 2
            s_cselect_b64 s[68:69], s[28:29], s[68:69]
            s_cselect_b32 s64, 0x800, s64
            s_cselect_b32 s76, 0x2f8000, 0
            s_cmp_eq_u32 s31, 3
            s_cselect_b64 s[68:69], s[4:5], s[68:69]
            s_cselect_b32 s76, 0x200000, s76
            s_cselect_b32 s77, 2, 1
            v_min_u32 v27, s77, v2
            v_mul_lo_u32 v27, v27, s76
            v_add_u32 v27, s64, v27
            global_load_dword v24, v27, s[68:69]
            """)

        def g_barrier():
            a(f"s_waitcnt lgkmcnt(0)\ns_cmp_ge_u32 s2, {NMAIN}\ns_cbranch_scc1 L_end\ns_barrier\ns_setprio {self.gprio}")
            self.stamp("Gb0")

        def g_weights():
            a(f"""
            v_lshrrev_b32 v{vD}, 3, v2
            v_lshrrev_b32 v{vT}, 2, v2
            v_and_b32 v{vT}, 4, v{vT}
            v_and_b32 v{vM}, 7, v2
            v_xor_b32 v{vT}, v{vT}, v{vM}
            v_lshlrev_b32 v{vT}, 4, v{vT}
            v_lshl_add_u32 v{vD}, v{vD}, 9, v{vT}
            s_bfe_u32 s67, s2, 0x30003
            s_lshl_b32 s64, s31, 7
            s_lshl_b32 s65, s67, 14
            s_or_b32 s64, s64, s65
            v_add_u32 v{vD}, s64, v{vD}
            s_lshl_b32 s70, s31, 14
            s_add_u32 s70, s70, {WST}
            s_mov_b32 s71, 3072
            s_mov_b32 s72, 6144
            s_mov_b32 s73, 9216
            """)
            self.srd(WV, 22, 131072)

        def g_touch():
            lt = self.lab("touched")
            a(f"""
            s_and_b32 s64, s2, 8
            s_or_b32 s64, s64, s31
            s_cbranch_scc1 {lt}
            s_lshr_b32 s64, s2, 4
            s_and_b32 s68, s2, 7
            s_lshl3_add_u32 s64, s64, s68
            s_lshl_b32 s64, s64, 10
            v_lshl_add_u32 v26, v2, 4, s64
            global_load_dwordx4 v[20:23], v26, s[16:17]
            {lt}:
            """)

        def throttle(th):
            return f"s_waitcnt vmcnt({th - 1})\n" if th < 16 else ""

        def dma_list(srd, ks, th=False, m0=None):
            so = ["0", "s71", "s72", "s73"]
            slot = ks & 3
            ops = []
            for i in range(4):
                pre = (f"s_mov_b32 m0, {m0}\n" if m0 else f"s_add_u32 m0, s70, {slot*4096}\n") if i == 0 else ""
                t = throttle(th) if th else ""
                if i == 0 and not t:
                    t = "s_nop 0\n"
                post = f"\nv_xor_b32 v{vD}, {(ks ^ ((ks + 1) & 7)) << 14}, v{vD}" if i == 3 else ""
                ops.append(pre + t + f"buffer_load_dwordx4 v{vD}, s[{srd}:{srd+3}], {so[i]} offen offset:{i*1024} lds" + post)
            return ops

        def dma(srd, slot, th=False, m0=None):
            for o in dma_list(srd, slot, th, m0):
                a(o)

        WL_ = lambda jb, ks: 48 + (ks * 4 + jb) * 4 if ks < 2 else W(jb, ks - 2)

        def tr_list(ks, slot, reg=W):
            return [f"ds_read_b64_tr_b16 {r2(reg(jb, ks) + 2*hh)}, v{vTR[jb >> 1]} offset:{slot*4096 + hh*512 + (jb & 1)*8}"
                    for jb in range(4) for hh in range(2)]

        def tr(ks, slot, reg=W):
            a("\n".join(tr_list(ks, slot, reg)))

        for step in self.go:
            dict(c=g_common, x=g_x, p=g_pages, i=self.lds_init, b=g_barrier, w=g_weights, t=g_touch, d=lambda: dma(WV, 0))[step]()
        self.srd(WL, 16, 131072)
        self.srd(WS, 28, 0x100000)
        self.srd(OUT, 24, 5120000)
        a(f"""
        v_xor_b32 v{vT}, v{vG}, v{vN}
        v_lshlrev_b32 v{vT}, 4, v{vT}
        v_lshl_add_u32 v{vB[0]}, v{vN}, 9, v{vT}
        s_lshl_b32 s64, s67, 6
        v_xor_b32 v{vB[0]}, s64, v{vB[0]}
        v_xor_b32 v{vB[1]}, 64, v{vB[0]}
        v_xor_b32 v{vB[2]}, 0x80, v{vB[0]}
        v_xor_b32 v{vB[3]}, 0xc0, v{vB[0]}
        v_lshrrev_b32 v{vT}, 2, v{vN}
        v_lshl_add_u32 v{vT}, v{vG}, 3, v{vT}
        v_lshlrev_b32 v{vT}, 7, v{vT}
        v_lshrrev_b32 v{vM}, 1, v{vN}
        v_and_b32 v{vM}, 4, v{vM}
        v_and_b32 v0, 3, v{vN}
        v_xor_b32 v{vM}, v{vM}, v0
        v_lshl_add_u32 v{vT}, v{vM}, 4, v{vT}
        v_add_u32 v{vTR[0]}, s70, v{vT}
        v_xor_b32 v{vTR[1]}, 64, v{vTR[0]}
        v_and_b32 v0, 31, v2
        v_lshlrev_b32 v0, 2, v0
        s_and_b32 s64, s2, {self.nrep-1}
        s_lshl_b32 s64, s64, 9
        s_lshl_b32 s65, s31, 7
        s_add_u32 s64, s64, s65
        s_add_u32 s74, s64, {WS_FLAG}
        v_lshlrev_b32 v{vM}, 4, v2
        s_lshl_b32 s75, s31, 15
        s_lshl_b32 s64, s67, 12
        s_or_b32 s75, s75, s64
        s_add_u32 s75, s75, {WS_M}
        """)
        flagload = f"buffer_load_dword v1, v0, s[{WS}:{WS+3}], s74 offen sc1"

        def mload(n):
            s = f"buffer_load_dwordx4 {r4(MR(n))}, v{vM}, s[{WS}:{WS+3}], s75 offen offset:{(n & 3)*1024} sc1"
            if n & 3 == 3:
                s += f"\ns_xor_b32 s75, s75, {((n >> 2) ^ (((n >> 2) + 1) & 7)) << 12}"
            return s

        ngrp = 8
        fafter = ngrp - 1 - self.fpos
        order = ["X"] * 5 + ["D0"] * 4
        def issue_group(g):
            dma(WV if g < 8 else WL, g & 7, self.gthr0 if g < self.gstart else (thr if g < self.gfree else 0))
            order.extend([f"D{g}"] * 4)
            self.stamp(f"Gi{g}")
            if g == fafter:
                a(flagload)
                order.append("F")
        def wait_for(tag):
            last = max(i for i, o in enumerate(order) if o == tag)
            a(f"s_waitcnt vmcnt({len(order) - 1 - last})")
        def mstart():
            wait_for("F")
            self.stamp("Gf")
            l = self.lab("mchk")
            self.wait_cnt(C_HV, 1, vZ, 16, geth=True)
            rl = self.lab("mre")
            self.cold.append(f"""
            {rl}:
            s_sub_u32 s100, s100, 1
            s_cbranch_scc1 L_end
            s_sleep {self.msleep}
            {flagload}
            s_waitcnt vmcnt(0)
            s_branch {l}
            """)
            a(f"{l}:\nv_cmp_ne_u32 vcc, s30, v1\ns_cbranch_vccnz {rl}")
            self.stamp("Gm")
            for n in range(self.mring):
                a(mload(n))
            order.extend(["M"] * self.mring)
        for g in range(1, 4):
            if g == 1:
                xtile(self.xa, 5)
                a("s_barrier")
                self.warm()
            if g == self.mbar:
                lb = self.lab("nobar")
                a(f"s_bitcmp1_b32 s2, 3\ns_cbranch_scc1 {lb}\ns_barrier\n{lb}:")
            issue_group(g)
        started = False
        for ks in range(8):
            wait_for(f"D{ks}")
            self.stamp(f"Gd{ks}")
            if ks == 1:
                self.signal(C_XT, vZ, vOne)
            tr(ks, ks & 3)
            if ks + 4 < ngrp:
                a("s_waitcnt lgkmcnt(0)")
                issue_group(ks + 4)
            if not started and ks + 4 >= ngrp - 1 and ks >= min(fafter, 7):
                mstart()
                started = True
        assert started

        def bread(tile, ks, b, r, last=2):
            a(f"ds_read_b128 {r4(r)}, v{vB[ks & 3]} offset:{tile + b*8192}")
            if b == last:
                a(f"v_xor_b32 v{vB[ks & 3]}, 0x100, v{vB[ks & 3]}")

        a("; ---- G: T = x @ M, M streamed as ready-made fragments")
        self.wait_cnt(C_XT, 4, vZ, vT)
        follow = [mload(n) for n in range(self.mring, 32)]
        follow += sum((dma_list(WL, s) for s in range(4)), [])
        for b in range(3):
            bread(XT, 0, b, BF(0, b))
        inflight = self.mring
        for ks in range(8):
            if ks < 7:
                for b in range(3):
                    bread(XT, ks + 1, b, BF((ks + 1) & 1, b))
            a(f"s_waitcnt lgkmcnt({3 if ks < 7 else 0})")
            self.stamp(f"Gt{ks}")
            for jb in range(4):
                n = 4 * ks + jb
                a(f"s_waitcnt vmcnt({inflight - 1})")
                for b in range(3):
                    c = r4(ACC(b, jb)) if ks else "0"
                    a(f"{MF} {r4(ACC(b, jb))}, {r4(MR(n))}, {r4(BF(ks & 1, b))}, {c}")
                if follow and n < 32 - self.mring + self.wlin:
                    a(follow.pop(0))
                else:
                    inflight -= 1
        self.stamp("Gt8")
        a(f"""
        s_lshl_b32 s64, s31, 3
        v_add_u32 v0, s64, v{vG}
        v_xor_b32 v0, v0, v{vN}
        v_lshlrev_b32 v0, 4, v0
        v_lshl_add_u32 v0, v{vN}, 9, v0
        v_xor_b32 v1, 64, v0
        s_mov_b32 s76, 0x00ff00ff
        s_mov_b32 s77, 0x00ff00ff
        """)

        def pack(b, h, r):
            for k in range(2):
                s = ACC(b, 2 * h + k)
                a(f"v_cvt_pk_bf16_f32 v{r+2*k}, v{s}, v{s+1}\nv_cvt_pk_bf16_f32 v{r+2*k+1}, v{s+2}, v{s+3}")

        for b in range(3):
            if b == 2:
                a("s_mov_b64 exec, s[76:77]")
            for h in range(2):
                r = 16 + (b * 2 + h) * 4
                pack(b, h, r)
                a(f"ds_write_b128 v{h}, {r4(r)} offset:{TT + b*8192}")
        a("s_mov_b64 exec, -1\ns_waitcnt lgkmcnt(0)")
        self.stamp("Gtf")
        a("s_barrier")
        self.stamp("Gbt")
        for o in follow:
            a(o)
        a(f"""
        v_lshlrev_b32 v0, 4, v{vG}
        v_and_b32 v1, 7, v{vN}
        v_lshl_add_u32 v0, v1, 9, v0
        v_and_b32 v1, 8, v{vN}
        v_lshl_add_u32 v0, v1, 3, v0
        s_mul_i32 s74, s1, 20480
        s_lshl_b32 s64, s31, 7
        s_add_u32 s74, s74, s64
        s_waitcnt vmcnt(8)
        """)
        tr(0, 0, WL_)
        tr(1, 1, WL_)
        a("s_waitcnt lgkmcnt(8)")
        dma(WL, 4)
        a("s_waitcnt lgkmcnt(0)")
        dma(WL, 5)
        a(f"""
        s_lshl_b32 s64, s31, 12
        s_add_u32 s78, s64, {TT}
        s_add_u32 s79, s64, {LIST}
        s_cmp_eq_u32 s31, 3
        s_cselect_b32 s79, {TT + 16384}, s79
        s_sub_u32 s76, s78, s70
        s_sub_u32 s77, s79, s78
        """)
        vB8 = vB + [40, 41, 42, 43]
        for k in range(4):
            a(f"v_xor_b32 v{40+k}, 0x100, v{vB[k]}")
        a("s_barrier")
        self.stamp("Gbv")
        a("; ---- G: attention aggregate @ wv, w_l moves into the freed registers")
        dma(WL, 6, m0="s78")
        dma(WL, 7, m0="s79")
        lo = "s_setprio 0"
        hi = f"s_setprio {self.gprio}"
        a(lo)

        def wait_prog(target, sleep, off=C_AG):
            l = self.lab("prog")
            a(f"""
            {l}:
            ds_read_b128 v[16:19], v{vZ} offset:{off}
            s_waitcnt lgkmcnt(0)
            v_min3_u32 v16, v16, v17, v18
            v_min_u32 v16, v16, v19
            v_cmp_gt_u32 vcc, {target}, v16
            s_cbranch_vccnz {self.retry(l, sleep)}
            """)

        if self.gwait:
            wait_prog(self.gwait, 1)
        self.stamp("Gv0")
        rd = lambda tile, ks, b, r: f"ds_read_b128 {r4(r)}, v{vB8[ks]} offset:{tile + b*8192}"

        def weave(mf, fill):
            fill = list(fill)
            for m in mf:
                a(m)
                if fill:
                    a(fill.pop(0))
            for f in fill:
                a(f)

        for b in range(3):
            a(rd(XT, 0, b, BF(0, b)))
        a("s_waitcnt vmcnt(8)")
        young = 0
        for ks in range(8):
            a(f"s_waitcnt lgkmcnt({young})")
            mf = [f"{MF} {r4(ACC(b, jb))}, {r4(W(jb, ks))}, {r4(BF(ks & 1, b))}, {r4(ACC(b, jb)) if ks else 0}"
                  for jb in range(4) for b in range(3)]
            fill = [rd(XT, ks + 1, b, BF((ks + 1) & 1, b)) for b in range(3)] if ks < 7 else []
            young = 0
            if 1 <= ks <= 4:
                fill += tr_list(ks + 1, (ks + 1) & 3, WL_)
                young = 8
            if ks >= 6:
                d = 76 if ks == 6 else 77
                t = tr_list(ks, 0, WL_)
                t[0] = f"s_waitcnt vmcnt({4 * (7 - ks)})\n" + t[0]
                fill = [f"v_add_u32 v{vTR[0]}, s{d}, v{vTR[0]}\nv_add_u32 v{vTR[1]}, s{d}, v{vTR[1]}"] + fill + t
                young = 8
            weave(mf, fill)
        self.stamp("Gwl")
        a("; ---- G: edge aggregate @ w_l per row block, pack, store")
        FB = lambda ks: 16 + ks * 4 if ks < 6 else (44 if ks == 6 else 252)
        sf = " sc1"
        st = lambda r: f"buffer_store_dwordx4 {r4(r)}, v0, s[{OUT}:{OUT+3}], s74 offen{sf}"

        def packl(b, h, r):
            return [f"v_cvt_pk_bf16_f32 v{r+k}, v{ACC(b, 2*h) + 2*k}, v{ACC(b, 2*h) + 2*k + 1}" for k in range(4)]

        def epi(b, ra, rb):
            o = packl(b, 1, rb) + packl(b, 0, ra)
            if b < 2:
                o += packl(b, 0, 240)
            o += [f"v_mov_b32_dpp v{ra+k}, v{rb+k} row_ror:8 row_mask:0xf bank_mask:0xc" for k in range(4)]
            if b < 2:
                o += [f"v_mov_b32_dpp v{rb+k}, v{240+k} row_ror:8 row_mask:0xf bank_mask:0x3" for k in range(4)]
            return o

        a("s_add_u32 s75, s74, 4096\ns_add_u32 s76, s74, 8192\ns_add_u32 s77, s74, 12288\ns_add_u32 s78, s74, 16384")
        st = lambda r, i: f"buffer_store_dwordx4 {r4(r)}, v0, s[{OUT}:{OUT+3}], s{74+i} offen{sf}"
        for n, b in enumerate((2, 0, 1)):
            if n == 2:
                a(f"v_lshlrev_b32 v1, 4, v{vG}\nv_lshl_add_u32 v1, v{vN}, 9, v1")
            if n == 2:
                a("s_barrier")
            else:
                wait_prog((1, 3)[n], self.gsleep)
            self.stamp(f"Ga{n}")
            if n == 2:
                a(hi)
            for ks in range(8):
                a(rd(AG, ks, b, FB(ks)))
            mf = []
            if n == 2:
                st2 = lambda r, h: f"buffer_store_dwordx4 {r4(r)}, v1, s[{OUT}:{OUT+3}], s76 offen offset:{64*h}{sf}"
                for h in (1, 0):
                    for ks in range(8):
                        for i in range(2):
                            jb = 2 * h + i
                            w = f"s_waitcnt lgkmcnt({7-ks})\n" if i == 0 and h == 1 else ""
                            mf.append(w + f"{MF} {r4(ACC(b, jb))}, {r4(WL_(jb, ks))}, {r4(FB(ks))}, {r4(ACC(b, jb))}")
                weave(mf, [""] * 23 + packl(b, 1, 236) + [st2(236, 1)])
                a("s_nop 6")
                a("\n".join(packl(b, 0, 232)) + "\n" + st2(232, 0))
                continue
            for ks in range(8):
                for i, jb in enumerate((2, 3, 0, 1)):
                    w = f"s_waitcnt lgkmcnt({7-ks})\n" if i == 0 else ""
                    mf.append(w + f"{MF} {r4(ACC(b, jb))}, {r4(WL_(jb, ks))}, {r4(FB(ks))}, {r4(ACC(b, jb))}")
            weave(mf, epi(2, 244, 248) if n == 1 else [])
            if n == 1:
                a("s_nop 4")
                a("\n".join(epi(0, 224, 228)))
                wait_prog(1, self.gsleep, C_DR)
                self.stamp("Gst")
                a(f"{hi}\n{st(244, 4)}\n{st(224, 0)}\n{st(228, 1)}\n{lo}")
        l = self.lab("noepoch")
        a(f"""
        s_or_b32 s64, s2, s3
        s_cbranch_scc1 {l}
        v_mov_b32 v1, s30
        s_mov_b64 exec, 1
        {"" if self.noepoch else f"buffer_store_dword v1, v{vZ}, s[{WS}:{WS+3}], 0 offen sc1"}
        {l}:
        """)
        if self.prof:
            a("s_mov_b64 exec, -1\ns_waitcnt vmcnt(0)")
        self.stamp("Gend")
        self.dump()
        a("s_endpgm")
        self.flush_cold()

    def sparse_waves(self):
        a = self.a
        R = self.lag
        FPL = 2 if R <= 8 else (3 if R <= 12 else 4)
        NPRO = 16 + R - 4 * FPL
        AT = lambda t, h: 176 + t * 8 + 4 * h
        RG = lambda u, h: 48 + ((u >> 1) & 7) * 16 + 8 * h + 4 * (u & 1)
        vN, vG, vZ, vOne = 3, 4, 5, 6
        vLo, vEs, vFa = 7, 0, 2
        vL16 = 8
        MSK, vIx, ACC = 12, 14, 16
        A = [24, 28]
        vJ, vPa = 1, 10
        FS = lambda j: 176 + 2 * j
        EA = [32, 34, 36, 38]
        EW = [33, 35, 37, 39]
        vW, vAd = 205, 11
        X, DS, IB, TG, MK = 32, 36, 40, 44, 48
        sIdx = 27
        sP = [10, 11, 12, 13, 14]
        sK = [15, 16, 17, 18, 19]
        sQ = [20, 21, 22, 23, 24]
        sSlow, sJ, sT, sG = 25, 26, 49, 50
        sM, sF, sD, sGam, sRet, sMode, sDr, sAnc = 52, 53, 56, 57, 54, 62, 70, 72

        MQ, MKT = TT, DIS
        lb, lj = self.lab("mload"), self.lab("roled")
        a(f"""
        s_setprio 3
        s_bitcmp1_b32 s2, 3
        s_cbranch_scc0 {lb}
        s_lshr_b32 s66, s2, 4
        s_lshl3_add_u32 s68, s66, s67
        s_mul_i32 s64, s68, 5120
        s_sub_u32 s65, s64, 4096
        v_lshl_add_u32 v40, v0, 4, s65
        s_add_u32 s64, s64, 3072
        v_lshl_add_u32 v41, v0, 2, s64
        s_waitcnt lgkmcnt(0)
        global_load_dwordx4 v[48:51], v40, s[8:9] nt
        global_load_dword v52, v41, s[8:9] nt
        global_load_dwordx4 v[56:59], v40, s[6:7] nt
        global_load_dword v60, v41, s[6:7] nt
        s_mov_b32 s{sIdx}, s68
        s_branch {lj}
        {lb}:
        v_lshrrev_b32 v43, 5, v2
        v_lshl_add_u32 v44, s31, 2, v43
        v_and_b32 v46, 31, v2
        v_xor_b32 v46, v46, v44
        v_lshl_add_u32 v43, s31, 3, v43
        v_lshlrev_b32 v43, 9, v43
        v_lshl_add_u32 v46, v46, 4, v43
        v_lshl_add_u32 v44, s67, 14, v46
        s_and_b32 s65, s2, 0xe0
        s_and_b32 s66, s2, 16
        s_lshl2_add_u32 s65, s65, s66
        v_lshl_add_u32 v46, s65, 7, v46
        s_lshl_b32 s66, s31, 11
        s_add_u32 m0, s66, {MKT}
        s_waitcnt lgkmcnt(0)
        global_load_lds_dwordx4 v46, s[20:21]
        s_add_u32 m0, s66, {MQ}
        v_xor_b32 v46, 0x420, v46
        global_load_lds_dwordx4 v44, s[18:19]
        s_add_u32 m0, s66, {MQ + 8192 - 2048}
        v_xor_b32 v45, 0x420, v44
        global_load_lds_dwordx4 v44, s[18:19] offset:2048
        s_add_u32 m0, s66, {MKT + 1024}
        s_lshr_b32 s64, s2, 6
        global_load_lds_dwordx4 v46, s[20:21]
        s_add_u32 m0, s66, {MQ + 1024}
        s_lshl3_add_u32 s64, s64, s67
        global_load_lds_dwordx4 v45, s[18:19]
        s_add_u32 m0, s66, {MQ + 8192 + 1024 - 2048}
        s_bfe_u32 s65, s2, 0x20004
        global_load_lds_dwordx4 v45, s[18:19] offset:2048
        s_lshl2_add_u32 s{sIdx}, s64, s65
        {lj}:
        s_cmp_lg_u32 s31, 0
        s_cbranch_scc1 {lj}_b
        s_load_dword s30, s[28:29], 0
        {lj}_b:
        """)
        self.common()
        self.stamp("Sk")
        a(f"""
        v_lshrrev_b32 v42, 2, v{vN}
        v_and_b32 v43, 3, v{vN}
        v_lshl_add_u32 v42, v42, 4, v43
        s_lshl_b32 s64, s31, 1
        v_mov_b32 v43, s64
        v_lshlrev_b32 v44, 1, v43
        v_cmp_gt_u32 vcc, 8, v{vN}
        s_mul_i32 s65, s1, 640
        v_lshlrev_b32 v{vLo}, 4, v{vN}
        v_cndmask_b32 v43, v43, v44, vcc
        v_add_lshl_u32 v42, v42, v43, 4
        v_lshl_add_u32 v42, v{vG}, 2, v42
        v_add_u32 v42, s65, v42
        v_min_u32 v42, 159996, v42
        v_lshlrev_b32 v{vL16}, 4, v0
        v_and_b32 v{vL16}, 0xfff, v{vL16}
        global_load_dword v{vEs}, v42, s[10:11] nt
        s_barrier
        """)
        mrole = Asm()
        self.stamp("Sb0")
        self.srd(X, 4, 5120000)
        self.srd(DS, 14, 20000)
        self.srd(IB, 28, 125 * 16384, add=WS_INBOX)
        a(f"""
        v_and_b32 v40, 8, v{vN}
        v_lshlrev_b32 v40, 1, v40
        v_mov_b32 v41, 0xffff
        v_lshlrev_b32 v40, v40, v41
        s_mov_b32 s64, 0x0f0f0f0f
        s_mov_b32 s65, 0x0f0f0f0f
        v_cndmask_b32 v{MSK}, 0, v40, s[64:65]
        v_xor_b32 v{MSK+1}, v40, v{MSK}
        v_and_b32 v{vIx}, 3, v{vN}
        v_mul_u32_u24 v{vIx}, 0x5555, v{vIx}
        """)
        lh = self.lab("tagged")
        a(f"""
        s_cmp_lg_u32 s31, 0
        s_cbranch_scc1 {lh}
        s_waitcnt lgkmcnt(0)
        s_mul_i32 s30, s30, 0x9E3779B1
        s_add_u32 s30, s30, 0x7F4A7C15
        v_mov_b32 v40, 1
        v_mov_b32 v41, s30
        ds_write_b64 v{vZ}, v[40:41] offset:{C_HV}
        {lh}:
        """)

        def tags(dst):
            dst(f"""
            s_and_b32 s{TG}, s30, 0xffc00000
            s_lshl_b32 s{TG+1}, s30, 10
            s_and_b32 s{TG+1}, s{TG+1}, 0xffc00000
            s_lshl_b32 s{TG+2}, s30, 20
            s_and_b32 s{TG+2}, s{TG+2}, 0xffc00000
            s_lshl_b32 s{TG+3}, s30, 22
            """)

        lm2, lj2 = self.lab("mwork"), self.lab("worked")
        a(f"s_bitcmp1_b32 s2, 3\ns_cbranch_scc0 {lm2}")
        a("; ---- S: bin 1280 edges by destination bucket and publish them with the launch tag")
        a(f"""
        v_mov_b32 v43, 4
        v_mov_b32 v44, {OVF}
        s_mov_b32 s64, 0x3f0001
        v_lshrrev_b32 v40, 6, v{vL16}
        v_and_b32 v41, 0x30, v{vL16}
        v_lshl_add_u32 v40, v40, 14, v41
        s_lshl_b32 s68, s{sIdx}, 6
        s_add_u32 s69, s68, 0x100000
        s_add_u32 s70, s68, 8192
        s_add_u32 s71, s69, 8192
        s_mov_b32 s65, 0x203c
        s_waitcnt vmcnt(3)
        """)
        for k in range(5):
            a(f"""
            v_mul_u32_u24 v{64+k}, 52429, v{48+k}
            v_lshrrev_b32 v{72+k}, 22, v{64+k}
            v_lshlrev_b32 v{80+k}, 2, v{72+k}
            ds_add_rtn_u32 v{80+k}, v{80+k}, v43 offset:{BCNT}
            """)
        for k in range(5):
            a(f"""
            v_lshrrev_b32 v{64+k}, 21, v{64+k}
            v_mad_u32_u24 v{64+k}, v{64+k}, 24, v{48+k}
            v_mul_u32_u24 v{64+k}, 0x8001, v{64+k}
            v_bfe_u32 v{88+k}, v{72+k}, 1, 2
            v_lshl_or_b32 v{72+k}, v{72+k}, 2, v{88+k}
            v_lshlrev_b32 v{72+k}, 4, v{72+k}
            """)
        a(f"s_waitcnt vmcnt(1)")
        for k in range(5):
            a(f"v_lshlrev_b32 v{56+k}, 1, v{56+k}\nv_and_or_b32 v{64+k}, v{64+k}, s64, v{56+k}")
        a("s_waitcnt lgkmcnt(0)")
        for k in range(5):
            a(f"""
            v_cmp_gt_u32 vcc, 124, v{80+k}
            v_min_u32 v{80+k}, 124, v{80+k}
            v_lshl_or_b32 v{80+k}, v{80+k}, 7, v{80+k}
            v_cndmask_b32 v{64+k}, v44, v{64+k}, vcc
            v_bitop3_b32 v{80+k}, v{80+k}, s65, v{72+k} bitop3:0x6a
            ds_write_b32 v{80+k}, v{64+k} offset:{BST}
            """)
        a(f"s_waitcnt lgkmcnt(0)\ns_barrier\nds_read_b32 v44, v{vZ} offset:{C_H}")
        for i in range(4):
            a(f"ds_read_b128 {r4(48 + 4*i)}, v{vL16} offset:{BST + i*4096}")
        a("s_waitcnt lgkmcnt(4)\nv_readfirstlane_b32 s30, v44\ns_waitcnt vmcnt(0)")
        tags(a)
        for i in range(4):
            a(f"s_waitcnt lgkmcnt({3-i})")
            ls = self.lab("nosec")
            if i < 2:
                a(f"v_cmp_eq_u32 vcc, {EMPTY}, v{51+4*i}")
            else:
                a(f"s_not_b64 exec, s[{68+2*i}:{69+2*i}]\ns_cbranch_scc0 {ls}")
            for k in range(4):
                a(f"v_or_b32 v{48+4*i+k}, s{TG+k}, v{48+4*i+k}")
            a(f"buffer_store_dwordx4 {r4(48 + 4*i)}, v40, s[{IB}:{IB+3}], s{68+i} offen sc1")
            a(f"s_wqm_b64 s[{72+2*i}:{73+2*i}], vcc" if i < 2 else f"{ls}:")
        a("s_mov_b64 exec, -1")
        a(f"""
        s_cmp_ge_u32 s2, {NMAIN}
        s_cbranch_scc1 L_end
        {lj2}:
        """)
        mrole(f"""
        {lm2}:
        v_xor_b32 v44, v{vG}, v{vN}
        v_lshlrev_b32 v44, 4, v44
        v_lshl_add_u32 v44, v{vN}, 9, v44
        v_xor_b32 v45, 64, v44
        v_xor_b32 v46, 0x80, v44
        v_xor_b32 v47, 0xc0, v44
        s_cmp_lg_u32 s31, 0
        s_waitcnt vmcnt(1)
        s_barrier
        s_cbranch_scc1 {lj2}_w
        """)

        def mread(k):
            for n, base in enumerate((MKT, MQ, MQ + 8192)):
                mrole(f"ds_read_b128 {r4(48 + 12*k + 4*n)}, v{44 + (k & 3)} offset:{base + 256*(k >> 2)}")

        for k in range(3):
            mread(k)
        for k in range(8):
            if k < 5:
                mread(k + 3)
            mrole(f"s_waitcnt lgkmcnt({3 * min(3, 7 - k)})")
            for jj in range(2):
                c = r4(ACC + 4 * jj) if k else "0"
                mrole(f"{MF} {r4(ACC + 4*jj)}, {r4(52 + 12*k + 4*jj)}, {r4(48 + 12*k)}, {c}")
        mrole(f"""
        s_lshl_b32 s64, s{sIdx}, 10
        s_add_u32 s64, s64, {WS_M}
        v_lshl_add_u32 v40, v2, 4, s64
        s_lshl_b32 s64, s{sIdx}, 2
        s_add_u32 s64, s64, {WS_FLAG}
        v_lshl_add_u32 v41, v2, 9, s64
        v_mov_b32 v42, s30
        s_nop 1
        """)
        for k in range(4):
            mrole(f"v_cvt_pk_bf16_f32 v{44+k}, v{ACC+2*k}, v{ACC+2*k+1}")
        mrole("global_store_dwordx4 v40, v[44:47], s[28:29] sc1\ns_barrier")
        mrole(f"""
        s_waitcnt vmcnt(0)
        s_mov_b64 exec, {hex((1 << self.nrep) - 1)}
        global_store_dword v41, v42, s[28:29] sc1
        s_mov_b64 exec, -1
        """)
        mrole(f"""
        s_branch {lj2}
        {lj2}_w:
        s_barrier
        s_waitcnt vmcnt(0)
        s_branch {lj2}
        """)
        self.stamp("Srole")
        a("; ---- S: attention rows, deg_inv_sqrt table, incoming bins -> per node-pair lists")
        a(f"""
        v_lshlrev_b32 v{vEs}, 9, v{vEs}
        s_setprio {self.sprio}
        s_lshl_b32 s64, s31, 10
        s_lshr_b32 s10, s1, 1
        s_lshl_b32 s10, s10, 14
        s_add_u32 s11, s10, 4096
        s_add_u32 s12, s10, 8192
        s_add_u32 s13, s10, 12288
        v_cmp_gt_u32 vcc, 0xf40, v{vL16}
        s_mov_b64 s[14:15], vcc
        """)

        def arow(t, th):
            a(f"v_add_u32_dpp v9, v{vEs}, v{vLo} row_newbcast:{t} {DPPF}")
            if th:
                a(f"s_waitcnt vmcnt({self.sthr - 2})")
            for h in range(2):
                a(f"buffer_load_dwordx4 {r4(AT(t, h))}, v9, s[{X}:{X+3}], 0 offen offset:{256*h}")

        nd = 0
        for t in range(self.ipos):
            arow(t, True)
            self.stamp(f"Sr{t}")
            while nd < 5 and (nd + 1) * self.ipos <= 5 * (t + 1):
                if nd == 0:
                    a(f"s_bfe_u32 s65, s2, 0x30003\ns_min_u32 s65, s65, 4\ns_lshl_b32 s65, s65, 12\ns_add_u32 s64, s64, {DIS}")
                else:
                    a("s_add_u32 s65, s65, 4096\ns_cmp_eq_u32 s65, 20480\ns_cselect_b32 s65, 0, s65")
                a("s_add_u32 m0, s64, s65\ns_nop 0")
                a(f"buffer_load_dwordx4 v{vL16}, s[{DS}:{DS+3}], s65 offen lds")
                nd += 1
        assert nd == 5
        late = list(range(self.ipos, 10))
        late, late2 = late[:len(late) - self.lpos], late[len(late) - self.lpos:]
        self.stamp("Sat")
        l = self.lab("ipoll")
        iload = lambda i: f"buffer_load_dwordx4 {r4(48 + 4*i)}, v{vL16}, s[{IB}:{IB+3}], s{10+i} offen sc1"
        a(f"{l}:\n{iload(0)}\ns_mov_b64 exec, s[14:15]\n{iload(1)}\ns_mov_b64 exec, -1")
        self.wait_cnt(C_HV, 1, vZ, 44, geth=True)
        tags(a)
        a(f"s_and_b32 s64, s1, 1\ns_lshl_b32 s64, s64, 21\ns_xor_b32 s17, s64, {EMPTY}")
        for k in range(4):
            a(f"s_or_b32 s{TG+k}, s{TG+k}, s64\nv_mov_b32 v{68+k}, s17")
        a(f"s_mov_b32 s16, {20 << 16}\nv_mov_b32 v42, 2")

        def decode(i, m):
            for k in range(4):
                n = 4 * i + k
                a(f"v_cmp_gt_u32 s[{m+2*k}:{m+2*k+1}], s16, v{64+n}")
                a(f"v_lshlrev_b32_sdwa v{80+n}, 2, v{64+n} dst_sel:DWORD dst_unused:UNUSED_PAD src0_sel:DWORD src1_sel:WORD_1")

        for i in range(2):
            a(f"s_waitcnt vmcnt({1-i})")
            if i == 1:
                a("s_mov_b64 exec, s[14:15]")
            for k in range(4):
                a(f"v_xor_b32 v{64+4*i+k}, s{TG+k}, v{48+4*i+k}")
            if i == 1:
                a("s_mov_b64 exec, -1\nv_or3_b32 v40, v40, v68, v69\nv_or3_b32 v40, v40, v70, v71")
            else:
                a("v_or3_b32 v40, v64, v65, v66\nv_or_b32 v40, v40, v67")
            a(f"v_cmp_eq_u32 s[{72+2*i}:{73+2*i}], s17, v{67+4*i}")
            if i == 0:
                decode(0, MK)
        a(f"v_cmp_le_u32 vcc, 0x400000, v40\ns_cbranch_vccnz {self.retry(l, 4)}")
        self.stamp("Sin")
        for i in range(2):
            ln = self.lab("nosec")
            a(f"""
            s_wqm_b64 s[{72+2*i}:{73+2*i}], s[{72+2*i}:{73+2*i}]
            s_not_b64 exec, s[{72+2*i}:{73+2*i}]
            s_cbranch_scc0 {ln}
            {iload(2 + i)}
            {ln}:
            """)
        a("s_mov_b64 exec, -1")
        decode(1, MK + 8)
        for n in range(8):
            a(f"s_mov_b64 exec, s[{MK+2*n}:{MK+2*n+1}]\nds_add_rtn_u32 v{80+n}, v{80+n}, v42 offset:{LCNT}")
        a("s_mov_b64 exec, -1")
        nla = (len(late) + 1) // 2
        for t in late[:nla]:
            arow(t, False)
        for n in range(8):
            if n % 4 == 0:
                a("s_waitcnt lgkmcnt(4)")
            a(f"s_mov_b64 exec, s[{MK+2*n}:{MK+2*n+1}]\nds_write_b16 v{80+n}, v{64+n}")
        for i in (2, 3):
            lp, ld, lr = (self.lab(x) for x in ("sec", "secdone", "secload"))
            a(f"s_not_b64 exec, s[{68+2*i}:{69+2*i}]\ns_cbranch_scc0 {ld}\ns_waitcnt vmcnt({2 * nla})\n{lp}:")
            for k in range(4):
                a(f"v_xor_b32 v{64+4*i+k}, s{TG+k}, v{48+4*i+k}")
            a(f"""
            v_or3_b32 v40, v{64+4*i}, v{65+4*i}, v{66+4*i}
            v_or_b32 v40, v40, v{67+4*i}
            v_cmp_le_u32 vcc, 0x400000, v40
            s_cbranch_vccnz {self.retry(lr, 2)}
            v_and_b32 v40, {OVF}, v{67+4*i}
            v_cmp_eq_u32 vcc, {OVF}, v40
            """)
            decode(i, MK + 16)
            for k in range(4):
                a(f"s_mov_b64 exec, s[{MK+16+2*k}:{MK+17+2*k}]\nds_add_rtn_u32 v{80+4*i+k}, v{80+4*i+k}, v42 offset:{LCNT}")
            a(f"s_mov_b64 exec, vcc\nds_write_b32 v{vZ}, v{vOne} offset:{C_OVF}\ns_waitcnt lgkmcnt(0)")
            for k in range(4):
                a(f"s_mov_b64 exec, s[{MK+16+2*k}:{MK+17+2*k}]\nds_write_b16 v{80+4*i+k}, v{64+4*i+k}")
            a(f"{ld}:")
            self.cold.append(f"{lr}:\n{iload(i)}\ns_waitcnt vmcnt(0)\ns_branch {lp}")
        self.signal(C_LIST, vZ, vOne)
        self.stamp("Slw")
        for t in late[(len(late) + 1) // 2:]:
            arow(t, False)
        a(f"""
        s_lshl_b32 s{sQ[0]}, s31, 1
        s_add_u32 s{sQ[1]}, s{sQ[0]}, 1
        s_add_u32 s{sQ[2]}, s{sQ[0]}, 8
        s_add_u32 s{sQ[3]}, s{sQ[0]}, 9
        s_add_u32 s{sQ[4]}, s31, 16
        v_add_u32 v47, -1, v{vN}
        v_bfe_u32 v40, v47, 1, 1
        v_and_b32 v41, 1, v47
        v_lshl_add_u32 v40, v40, 3, v41
        v_add_u32 v40, s{sQ[0]}, v40
        v_mov_b32 v41, s{sQ[4]}
        v_cmp_ne_u32 vcc, 0, v{vN}
        v_min_u32 v47, 19, v2
        v_mul_u32_u24 v46, {LSTRIDE}, v47
        v_cndmask_b32 v40, v41, v40, vcc
        v_mul_u32_u24 v41, {LSTRIDE}, v40
        v_add_u32 v41, {LIST}, v41
        v_lshlrev_b32 v40, 2, v40
        v_add_u32 v46, {LIST + 2*LCAP}, v46
        v_lshlrev_b32 v47, 2, v47
        v_lshlrev_b32 v43, 3, v{vN}
        v_lshl_add_u32 v43, v{vG}, 1, v43
        """)
        self.wait_cnt(C_LIST, 4, vZ, 44)
        self.stamp("Sls")
        a(f"""
        ds_read_b32 v44, v40 offset:{LCNT}
        ds_read_b32 v47, v47 offset:{LCNT}
        ds_read_b32 v45, v{vZ} offset:{C_OVF}
        s_waitcnt lgkmcnt(2)
        v_sub_u32 v44, v44, v41
        v_max_u32 v44, 18, v44
        s_waitcnt lgkmcnt(0)
        v_cmp_gt_u32 vcc, v47, v46
        v_add_u32_dpp v48, v44, v44 row_shr:1 {DPPF} bound_ctrl:1
        v_readfirstlane_b32 s{sSlow}, v45
        s_or_b32 s64, vcc_lo, vcc_hi
        v_add_u32_dpp v48, v48, v48 row_shr:2 {DPPF} bound_ctrl:1
        s_or_b32 s{sSlow}, s{sSlow}, s64
        s_mov_b32 s{sF}, 0
        v_add_u32_dpp v48, v48, v48 row_shr:4 {DPPF} bound_ctrl:1
        v_sub_u32 v44, v48, v44
        v_sub_u32 v44, v41, v44
        """)
        BT, BU = 160, 40
        for j in range(5):
            a(f"v_readlane_b32 s{sP[j]}, v48, {j}")
        for j in range(5):
            a(f"v_add_u32_dpp v{BT+j}, v44, v43 row_newbcast:{j} {DPPF}")
        a(f"""
        s_add_u32 s{sG}, s{sP[4]}, 14
        s_lshr_b32 s{sG}, s{sG}, 4
        s_cmp_gt_u32 s{sG}, 32
        s_cselect_b32 s{sSlow}, 1, s{sSlow}
        s_max_u32 s{sG}, s{sG}, {8 + R // 2}
        """)

        def build(chunks):
            for c in chunks:
                a(f"v_add_u32 v{BU+c}, {128*c}, v43")
                for j in range(4):
                    a(f"v_cmp_le_u32 s[{64+2*j}:{65+2*j}], s{sP[j]}, v{BU+c}")
                for j in range(4):
                    a(f"v_cndmask_b32 v{BU+c}, v{BT if j == 0 else BU+c}, v{BT+1+j}, s[{64+2*j}:{65+2*j}]")
                a(f"ds_read_u16 v{BU+c}, v{BU+c} offset:{128*c}")
            for n, c in enumerate(chunks):
                a(f"""
                s_waitcnt lgkmcnt({len(chunks) - 1})
                v_and_b32 v{EA[c]}, 0x7ffe, v{BU+c}
                ds_read_u16 v{EW[c]}, v{EA[c]} offset:{DIS}
                v_lshlrev_b32 v{EA[c]}, 8, v{EA[c]}
                v_lshlrev_b32 v{BU+c}, 4, v{BU+c}
                """)

        def finish(chunks):
            for c in chunks:
                a(f"v_lshlrev_b32 v{EW[c]}, v{BU+c}, v{EW[c]}\nds_bpermute_b32 v{EW[c]}, v46, v{EW[c]}")

        def issue(u, halves=(0, 1)):
            a(f"v_add_u32_dpp v{vAd}, v{EA[u // 16]}, v{vLo} row_newbcast:{u % 16} {DPPF}")
            for h in halves:
                a(f"buffer_load_dwordx4 {r4(RG(u, h))}, v{vAd}, s[{X}:{X+3}], 0 offen offset:{256*h}")

        build([0, 1, 2, 3])
        self.stamp("Sent")
        for t in late2:
            arow(t, False)
        for u in range(self.npre):
            issue(u)
        pend, pend2 = list(range(self.npre, 12)), list(range(12, NPRO))
        a(f"s_mov_b32 s{sGam}, 0")
        for j in range(4, -1, -1):
            a(f"""
            s_sub_u32 s64, s{sP[j]}, 18
            s_lshr_b32 s65, s64, 4
            s_bitset1_b32 s{sF}, s65
            s_and_b32 s64, s64, 14
            s_lshl4_add_u32 s{sGam}, s{sGam}, s64
            s_and_b32 s65, s{sQ[j]}, 7
            s_lshl_b32 s65, s65, 5
            s_lshl_b32 s{sK[j]}, s{sQ[j]}, 10
            s_or_b32 s{sK[j]}, s{sK[j]}, s65
            """)
        TA = [144, 145, 146, 147, 148, 149]
        P = lambda t: 150 + t
        TF = lambda s, h: 160 + s * 8 + 4 * h
        a(f"""
        s_sub_u32 s64, s{sG}, {R // 2 + 1}
        s_lshl_b32 s{sD}, 1, s64
        s_or_b32 s{sM}, s{sD}, s{sF}
        v_and_b32 v46, 1, v{vN}
        v_lshl_add_u32 v46, v{vG}, 1, v46
        v_and_b32 v46, 3, v46
        v_and_b32 v47, 14, v{vN}
        v_lshl_add_u32 v46, v46, 4, v47
        v_lshrrev_b32 v47, 1, v{vG}
        v_add_lshl_u32 v46, v46, v47, 2
        v_lshrrev_b32 v44, 1, v{vG}
        v_mul_u32_u24 v44, 528, v44
        v_xor_b32 v44, v44, v{vLo}
        v_and_b32 v45, 1, v{vG}
        v_lshl_or_b32 v{vFa}, v45, 3, v44
        v_xor_b32 v{TA[0]}, s{sK[0]}, v{vLo}
        v_xor_b32 v{TA[2]}, s{sK[1]}, v{vLo}
        v_xor_b32 v{TA[4]}, s{sK[4]}, v{vLo}
        v_xor_b32 v{TA[1]}, 528, v{TA[0]}
        v_xor_b32 v{TA[3]}, 528, v{TA[2]}
        v_xor_b32 v{TA[5]}, 528, v{TA[4]}
        s_mul_i32 s64, s1, 80
        s_add_u32 s64, s64, {DIS}
        v_and_b32 v45, 2, v{vG}
        v_add_u32 v{vEs}, s64, v45
        s_getpc_b64 s[{sAnc}:{sAnc+1}]
        L_anc:
        v_lshlrev_b32 v{vG}, 2, v{vG}
        s_mov_b32 s{sMode}, L_fp1-L_anc
        s_mov_b32 s{sMode+1}, L_fp1-L_fp0
        s_mov_b32 s{sDr}, L_dr1-L_anc
        s_mov_b32 s{sDr+1}, L_dr1-L_dr0
        s_mov_b32 s{sJ}, 0
        s_mov_b32 s{sT}, 0
        v_mov_b32 v{vJ}, 0
        s_lshl_b32 s64, s31, 2
        v_mov_b32 v{vPa}, s64
        v_and_b32 v9, 8, v{vN}
        v_lshlrev_b32 v9, 1, v9
        s_mov_b32 s66, 0x22222222
        s_mov_b32 s67, 0x22222222
        s_mov_b32 s68, 0x44444444
        s_mov_b32 s69, 0x44444444
        """)
        for t in range(0, 10, 2):
            a(f"v_mov_b64 {r2(P(t))}, 0")
        for k in range(4):
            a(f"v_mov_b64 {r2(ACC + 2*k)}, 0")
        a("s_waitcnt lgkmcnt(0)")
        finish([0, 1, 2, 3])
        a(f"s_waitcnt vmcnt({2 * self.npre}) lgkmcnt(0)")
        self.stamp("Srdy")
        a("s_barrier")
        self.stamp("Sbt")

        def tread(t):
            ad, off = (TA[t & 3], 8192 * (t >> 2)) if t < 8 else (TA[t - 4], 0)
            for h in range(2):
                a(f"ds_read_b128 {r4(TF(t & 1, h))}, v{ad} offset:{TT + off + 256*h}")

        def level1(t):
            a(f"v_add_f32_dpp v{P(t)}, v{P(t)}, v{P(t)} row_ror:8 row_mask:0xf bank_mask:0x3")
            a(f"v_add_f32_dpp v{P(t)}, v{P(t+1)}, v{P(t+1)} row_ror:8 row_mask:0xf bank_mask:0xc")

        def level2(t):
            a(f"v_add_f32_dpp v{P(t)}, v{P(t)}, v{P(t)} row_half_mirror row_mask:0xf bank_mask:0x5")
            if t < 8:
                a(f"v_add_f32_dpp v{P(t)}, v{P(t+2)}, v{P(t+2)} row_half_mirror row_mask:0xf bank_mask:0xa")

        tread(0)
        for t in range(10):
            if t < 9:
                tread(t + 1)
            a(f"s_waitcnt lgkmcnt({2 if t < 9 else 0})")
            for h in range(2):
                for k in range(4):
                    a(f"v_dot2c_f32_bf16 v{P(t)}, v{AT(t, h)+k}, v{TF(t & 1, h)+k}")
            if t >= 2 and t % 2 == 0:
                level1(t - 2)
            if t in (5, 9):
                level2(t - 5)
            for _ in range(-(-len(pend) // (10 - t)) if t >= self.slate else 0):
                issue(pend.pop(0))
        self.stamp("Sdot")
        vE = P(0)
        a(f"""
        v_add_f32_dpp v{P(0)}, v{P(0)}, v{P(0)} quad_perm:[1,0,3,2] {DPPF}
        s_nop 0
        """)
        level1(8)
        a(f"""
        v_add_f32_dpp v{P(4)}, v{P(4)}, v{P(4)} quad_perm:[1,0,3,2] {DPPF}
        v_add_f32_dpp v{P(0)}, v{P(0)}, v{P(0)} quad_perm:[2,3,0,1] {DPPF}
        """)
        level2(8)
        a(f"""
        v_add_f32_dpp v{P(4)}, v{P(4)}, v{P(4)} quad_perm:[2,3,0,1] {DPPF}
        s_nop 0
        v_add_f32_dpp v{P(8)}, v{P(8)}, v{P(8)} quad_perm:[1,0,3,2] {DPPF}
        v_cndmask_b32 v{vE}, v{vE}, v{P(4)}, s[66:67]
        s_nop 0
        v_add_f32_dpp v{P(8)}, v{P(8)}, v{P(8)} quad_perm:[2,3,0,1] {DPPF}
        v_cndmask_b32 v{vE}, v{vE}, v{P(8)}, s[68:69]
        v_mul_f32 v{vE}, 0x3db8aa3b, v{vE}
        v_exp_f32 v{vE}, v{vE}
        s_nop 0
        v_mov_b32 v44, v{vE}
        v_mov_b32 v45, v{vE}
        s_nop 1
        v_permlane32_swap_b32 v44, v45
        v_add_f32 v44, v44, v45
        v_mov_b32 v45, v44
        s_nop 1
        v_permlane16_swap_b32 v44, v45
        v_add_f32 v44, v44, v45
        v_add_f32 v44, 0x3089705f, v44
        v_rcp_f32 v44, v44
        s_nop 0
        v_mul_f32 v{vE}, v{vE}, v44
        v_cvt_pk_bf16_f32 v{vE}, v{vE}, 0
        v_lshlrev_b32 v8, v9, v{vE}
        s_nop 1
        """)
        vE = 8
        self.stamp("Ssm")
        elane = lambda t: 4 * [0, 2, 1, 3][t & 3] + (t >> 2)

        def wops(src, lane, p):
            return [f"v_and_b32_dpp v{A[p]+r}, v{src}, v{MSK+r} row_newbcast:{lane} {DPPF}" for r in range(2)]

        def wops8(s_, p):
            return [f"v_and_b32_dpp v{A[p]+2*e+r}, v{EW[s_ // 8]}, v{MSK+r} row_newbcast:{2*(s_ % 8)+e} {DPPF}"
                    for e in range(2) for r in range(2)]

        AV = lambda j: 40 if j % 2 == 0 else ACC

        def zero(c):
            for k in range(4):
                self.mov2(c + 2 * k, None)

        def aflush(j):
            c, f = AV(j), FS((j + 1) % 5)
            a(f"v_xor_b32 v{f}, s{sK[j]}, v{vFa}\ns_lshl_b32 s64, s{sQ[j]}, 2\nv_add_u32 v9, s64, v{vEs}\nv_mov_b32 v{f+1}, 0")
            for h in range(2):
                a(f"""
                v_cvt_pk_bf16_f32 v{30}, v{c+4*h}, v{c+4*h+1}
                v_cvt_pk_bf16_f32 v{31}, v{c+4*h+2}, v{c+4*h+3}
                ds_write_b64 v{f}, v[30:31] offset:{XT + 256*h}
                """)
            a(f"ds_read_u16_d16_hi v{f+1}, v9")
            if j < 4:
                zero(c)

        for o in wops(vE, elane(0), 0):
            a(o)
        zero(40)
        for t in range(10):
            nxt = wops(vE, elane(t + 1), (t + 1) & 1) if t < 9 else wops8(0, 0)
            c0 = AV(t // 2)
            a(f"{SM} {r4(c0)}, {r2(A[t & 1])}, {r4(AT(t, 0))}, v{vIx}")
            a("\n".join(nxt))
            a(f"{SM} {r4(c0 + 4)}, {r2(A[t & 1])}, {r4(AT(t, 1))}, v{vIx}")
            if pend2 and t % 2 == 0:
                issue(pend2.pop(0))
            elif t & 1 and t >= 3:
                aflush(t // 2 - 1)
                a("s_nop 0")
            else:
                a("s_nop 0")
        aflush(4)
        assert not pend and not pend2
        a("s_waitcnt lgkmcnt(0)\ns_barrier")
        self.stamp("Sbv")
        a(f"s_cmp_lg_u32 s{sSlow}, 0\ns_cbranch_scc1 L_slow")

        def rotate():
            for c in range(3):
                self.mov2(EA[c], EA[c + 1])
            for m in (sM, sF, sD):
                a(f"s_lshr_b32 s{m}, s{m}, 8")

        a("; ---- S: gather ring (first pass, steady, drain), 8 edges per step")
        assert R % 2 == 0 and 12 <= NPRO <= 16
        for mode in ("fp", "st", "dr"):
            for t in range(8):
                nxt = wops8(t + 1, (t + 1) & 1)
                ladder = mode == "dr"
                a(f"L_{mode}{t}:\n" + (f"s_add_u32 s{sT}, s{sT}, 1" if ladder else f"s_bitcmp1_b32 s{sM}, {t}"))
                if mode == "dr":
                    a(f"ds_write_b32 v{vPa}, v{vOne} offset:{C_DR}")
                a(f"s_waitcnt vmcnt({2 * NPRO + FPL * t - 4 * (t + 1) if mode == 'fp' else 2*R - 4})")
                a(f"{SX} {r4(ACC)}, {r4(A[t & 1])}, {r8(RG(2*t, 0))}, v{vIx}")
                a(nxt[0] + "\n" + nxt[1])
                a(f"{SX} {r4(ACC+4)}, {r4(A[t & 1])}, {r8(RG(2*t, 1))}, v{vIx}")
                a(nxt[2] + "\n" + nxt[3])
                if mode == "st":
                    issue(2 * t + R)
                    issue(2 * t + R + 1)
                if mode == "fp":
                    ns = range(FPL * t, FPL * (t + 1))
                    for u in sorted({n // 2 for n in ns}):
                        issue(NPRO + u, [n % 2 for n in ns if n // 2 == u])
                if ladder:
                    nw = R // 2 - 1
                    for k in range(1, nw):
                        a(f"s_cmp_eq_u32 s{sT}, {k}\ns_cbranch_scc1 L_dw{t}_{k}")
                    for k in range(nw, 0, -1):
                        a(f"L_dw{t}_{k}:\ns_waitcnt vmcnt({2*R - 4 - 4*k})")
                    a(f"s_bitcmp1_b32 s{sM}, {t}")
                a(f"s_cbranch_scc1 L_ev{t}")
            a(f"L_{mode}8:")
            rotate()
            if mode == "fp":
                a(f"s_mov_b32 s{sMode}, L_st1-L_anc\ns_mov_b32 s{sMode+1}, L_st1-L_st0")
            else:
                a(f"s_branch L_{mode}0")
                if mode == "st":
                    a("L_pad8:\ns_setpc_b64 s[68:69]")
        a("; ---- S: list boundaries and flush")
        for t in range(8):
            n = (t + 1) & 7
            An = A[n & 1]
            a(f"L_pad{t}:\ns_setpc_b64 s[68:69]")
            a(f"""
            L_ev{t}:
            s_and_b32 s65, s{sGam}, 15
            v_cmp_ge_u32 s[66:67], s65, v{vG}
            v_cmp_gt_u32 s[68:69], s65, v{vG}
            s_bitcmp1_b32 s{sD}, {t}
            s_cselect_b64 s[{sMode}:{sMode+1}], s[{sDr}:{sDr+1}], s[{sMode}:{sMode+1}]
            v_cndmask_b32 v40, 0, v{An}, s[66:67]
            v_cndmask_b32 v41, 0, v{An+1}, s[66:67]
            v_cndmask_b32 v42, 0, v{An+2}, s[68:69]
            v_cndmask_b32 v43, 0, v{An+3}, s[68:69]
            s_mul_i32 s64, s{sMode+1}, {t}
            s_bitcmp1_b32 s{sF}, {t}
            s_cbranch_scc0 L_evret
            s_waitcnt vmcnt({2*R - 4})
            {SX} {r4(ACC)}, v[40:43], {r8(RG(2*n, 0))}, v{vIx}
            v_xor_b32 v{An}, v{An}, v40
            v_xor_b32 v{An+1}, v{An+1}, v41
            {SX} {r4(ACC+4)}, v[40:43], {r8(RG(2*n, 1))}, v{vIx}
            v_xor_b32 v{An+2}, v{An+2}, v42
            v_xor_b32 v{An+3}, v{An+3}, v43
            {"s_branch L_flush" if t < 7 else "s_nop 0"}
            """)
        a(f"""
        L_flush:
        s_lshr_b32 s{sGam}, s{sGam}, 4
        s_cmp_eq_u32 s{sJ}, 4
        v_add_u32 v{vJ}, 1, v{vJ}
        """)
        for h in range(2):
            for k in range(4):
                a(f"v_mul_f32 v{40+4*h+k}, v{FS(0)+1}, v{ACC+4*h+k}")
            a(f"""
            v_cvt_pk_bf16_f32 v{40+4*h}, v{40+4*h}, v{41+4*h}
            v_cvt_pk_bf16_f32 v{41+4*h}, v{42+4*h}, v{43+4*h}
            ds_write_b64 v{FS(0)}, v[{40+4*h}:{41+4*h}] offset:{AG + 256*h}
            """)
        a(f"ds_write_b32 v{vPa}, v{vJ} offset:{C_AG}\ns_cbranch_scc1 L_sdone")
        if self.prof and "Sfl" in self.st:
            a("s_waitcnt lgkmcnt(0)\ns_mov_b64 s[86:87], s[88:89]\ns_mov_b64 s[88:89], s[90:91]\ns_mov_b64 s[90:91], s[92:93]\ns_memrealtime s[92:93]")
        zero(ACC)
        a(f"s_add_u32 s{sJ}, s{sJ}, 1")
        for j in range(4):
            self.mov2(FS(j), FS(j + 1))
        a(f"""
        L_evret:
        s_add_u32 s64, s64, s{sMode}
        s_add_u32 s{sRet}, s{sAnc}, s64
        s_addc_u32 s{sRet+1}, s{sAnc+1}, 0
        s_setpc_b64 s[{sRet}:{sRet+1}]
        """)
        a("L_pad9:\ns_setpc_b64 s[68:69]")
        a("; ---- S: general path (any degree distribution): scan all edges per node pair")
        a(f"""
        L_slow:
        s_mov_b32 s{sMode}, L_slow_pair-L_anc
        v_mbcnt_lo_u32_b32 v200, -1, 0
        v_mbcnt_hi_u32_b32 v200, -1, v200
        L_slow_pair:
        v_lshlrev_b32 v201, 2, v200
        s_mul_i32 s70, s1, 40
        s_lshl1_add_u32 s70, s{sQ[4]}, s70
        s_mov_b32 s71, 0
        s_mov_b32 s{sQ[4]}, s{sQ[0]}
        s_mov_b32 s{sQ[0]}, s{sQ[1]}
        s_mov_b32 s{sQ[1]}, s{sQ[2]}
        s_mov_b32 s{sQ[2]}, s{sQ[3]}
        L_slow_chunk:
        global_load_dword v202, v201, s[8:9]
        global_load_dword v203, v201, s[6:7]
        v_add_u32 v201, 0x100, v201
        s_waitcnt vmcnt(0)
        v_subrev_u32 v202, s70, v202
        v_cmp_gt_u32 vcc, 2, v202
        v_lshlrev_b32 v204, 1, v203
        ds_read_u16 v204, v204 offset:{DIS}
        s_mov_b64 s[76:77], vcc
        v_lshlrev_b32 v202, 4, v202
        v_lshlrev_b32 v203, 9, v203
        s_waitcnt lgkmcnt(0)
        v_lshlrev_b32 v204, v202, v204
        L_slow_edge:
        s_cmp_eq_u64 s[76:77], 0
        s_cbranch_scc1 L_slow_next
        s_ff1_i32_b64 s74, s[76:77]
        s_bitset0_b64 s[76:77], s74
        v_readlane_b32 s64, v203, s74
        v_readlane_b32 s65, v204, s74
        v_mov_b32 v{vW}, 0
        v_mov_b32 v{vAd}, {OOB}
        s_mov_b64 exec, 0xffff
        v_mov_b32 v{vW}, s65
        v_add_u32 v{vAd}, s64, v{vLo}
        s_mov_b64 exec, -1
        buffer_load_dwordx4 v[208:211], v{vAd}, s[{X}:{X+3}], 0 offen
        buffer_load_dwordx4 v[212:215], v{vAd}, s[{X}:{X+3}], 0 offen offset:256
        """)
        for r in range(2):
            a(f"v_and_b32 v{A[0]+r}, v{vW}, v{MSK+r}")
        a(f"""
        s_nop 0
        s_waitcnt vmcnt(0)
        {SM} {r4(ACC)}, {r2(A[0])}, v[208:211], v{vIx}
        {SM} {r4(ACC+4)}, {r2(A[0])}, v[212:215], v{vIx}
        s_branch L_slow_edge
        L_slow_next:
        s_add_u32 s71, s71, 1
        s_cmp_lt_u32 s71, 2500
        s_cbranch_scc1 L_slow_chunk
        s_mov_b32 s64, 0
        s_nop 3
        s_branch L_flush
        L_sdone:
        ds_write_b32 v{vPa}, v{vOne} offset:{C_DR}
        s_waitcnt lgkmcnt(0)
        s_barrier
        """)
        self.stamp("Send")
        self.dump()
        a("s_endpgm")
        self.flush_cold()
        self.mrole = mrole

    def kernel(self, label):
        self.entry()
        self.sparse_waves()
        self.a.lines += self.mrole.lines
        self.gemm_waves()
        self.a("L_end:\ns_endpgm")
        return dict(label=label, body=self.a.text(), grid=NWG, block=512, lds=LDS_BYTES, vgpr=256)

    def build(self):
        return wrap([self.kernel(NAME + "_kernel")], ABOUT)


if __name__ == "__main__":
    opts = {k: (v if k in ("st", "go") else int(v)) for k, v in (kv.split("=") for kv in sys.argv[2:])}
    open(sys.argv[1], "w").write(Gen(**opts).build())
```

```python
import sys
from asmlib import *

NMAIN, NWG = 250, 253
WS_FLAG, WS_M, WS_INBOX, WS_STAMP = 0x1000, 0x10000, 0x100000, 0x8000000
C_BIN, C_XT, C_HV, C_H, C_LIST, C_OVF, C_AG, C_DR = 0, 4, 8, 12, 16, 20, 32, 48
LCNT, BCNT = 128, 512
XT, TT, AG, DIS, WST = 1024, 21504, 41984, 62464, 82944
LIST, LSTRIDE, LCAP = 148480, 264, 124
LDS_BYTES = 161792
BST = AG
EMPTY, OVF = 30 << 16, 31 << 16
PAD2 = 0x4E204E20
OOB = 0x80000000
DPPF = "row_mask:0xf bank_mask:0xf"
r4 = lambda r: f"v[{r}:{r+3}]"
MF = "v_mfma_f32_16x16x32_bf16"
SM = "v_smfmac_f32_16x16x32_bf16"
SX = "v_smfmac_f32_16x16x64_bf16"
r8 = lambda r: f"v[{r}:{r+7}]"
r2 = lambda r: f"v[{r}:{r+1}]"


ABOUT = """;
; alpha = exp(e) / (sum exp(e) + 1e-9),  e_j = (x[d] @ M) . x[esrc_j] / 16,  M = wq @ wk^T,  edst = repeat(arange(N), 4).
; from d_ws word 0 (advanced at the end of each launch) tells this launch's hand-offs from older contents.
"""


class Gen:
    def __init__(self, prof=0, st=None, spin=1 << 26, noepoch=0,
                 gprio=2, sprio=1, gsleep=1, msleep=2, nrep=8,
                 gstart=3, gthr0=10, gthr=7, gfree=7, fpos=1, mring=10, wlin=10, gwait=1,
                 sthr=6, ipos=7, lpos=0, npre=6, slate=4, lag=8, mbar=2, xa=2, go="icpbxwtd"):
        self.__dict__.update(locals())
        self.a = Asm()
        self.st = (st or "Gm,Gtf,Gbv,Gwl,Gst,Ga2,Srole,Sin,Sent,Srdy,Sbt,Sbv").split(",") + ["Gend", "Send"]
        self.uid = 0

    def lab(self, p):
        self.uid += 1
        return f"L_{p}_{self.uid}"

    def stamp(self, name):
        if self.prof:
            sel = [n for n in self.st if n[0] == name[0]]
            if name in sel:
                i = 7 if name[1:] == "end" else 1 + sel.index(name)
                self.a(f"s_memrealtime s[{80+2*i}:{81+2*i}]")

    def srd(self, r, p, size, add=0):
        a = self.a
        if add:
            a(f"s_add_u32 s{r}, s{p}, {add}\ns_addc_u32 s{r+1}, s{p+1}, 0\ns_and_b32 s{r+1}, s{r+1}, 0xffff")
        else:
            a(f"s_mov_b32 s{r}, s{p}\ns_and_b32 s{r+1}, s{p+1}, 0xffff")
        a(f"s_mov_b32 s{r+2}, {size}\ns_mov_b32 s{r+3}, 0x20000")

    def signal(self, off, vz, vone):
        self.a(f"""
        s_waitcnt lgkmcnt(0)
        s_mov_b64 exec, 1
        ds_add_u32 v{vz}, v{vone} offset:{off}
        s_mov_b64 exec, -1
        """)

    def retry(self, l, sleep):
        r = self.lab("retry")
        self.cold.append(f"""
        {r}:
        s_sub_u32 s100, s100, 1
        s_cbranch_scc1 L_end
        {f"s_sleep {sleep}" if sleep else ""}
        s_branch {l}
        """)
        return r

    def wait_cnt(self, off, target, vz, vt, geth=False, sleep=1):
        l = self.lab("spin")
        if geth:
            rd, v = f"ds_read_b128 {r4(vt)}, v{vz}", vt + off // 4
        else:
            rd, v = f"ds_read_b32 v{vt}, v{vz} offset:{off}", vt
        self.a(f"""
        {l}:
        {rd}
        s_waitcnt lgkmcnt(0)
        v_readfirstlane_b32 s101, v{v}
        """)
        if geth:
            self.a(f"v_readfirstlane_b32 s30, v{vt + C_H // 4}")
        self.a(f"s_cmp_ge_u32 s101, {target}\ns_cbranch_scc0 {self.retry(l, sleep)}")

    def mov2(self, d, src):
        self.a(f"v_mov_b64 {r2(d)}, {0 if src is None else r2(src)}")

    def warm(self):
        a = self.a
        a("; instruction-cache prefetch of the gather loop's branch targets (calls to bare returns)")
        done = self.lab("warmed")
        for w in range(4):
            nx = self.lab("nw")
            if w < 3:
                a(f"s_cmp_eq_u32 s31, {w}\ns_cbranch_scc0 {nx}")
            for p in [2 * w, 2 * w + 1] + ([8 + w] if w < 2 else []):
                a(f"s_call_b64 s[68:69], L_pad{p}")
            if w < 3:
                a(f"s_branch {done}\n{nx}:")
        a(f"{done}:")

    def flush_cold(self):
        for c in self.cold:
            self.a(c)
        self.cold = []

    def dump(self):
        if not self.prof:
            return
        a = self.a
        a("s_memtime s[98:99]\ns_waitcnt lgkmcnt(0)\nv_mov_b32 v10, 0")
        for i in range(20):
            a(f"v_writelane_b32 v10, s{80+i}, {i}")
        a(f"""
        s_getreg_b32 s64, hwreg(HW_REG_XCC_ID)
        v_writelane_b32 v10, s64, 20
        s_lshl_b32 s64, s2, 3
        s_add_u32 s64, s64, s3
        s_lshl_b32 s64, s64, 7
        s_add_u32 s64, s64, {WS_STAMP}
        v_mbcnt_lo_u32_b32 v11, -1, 0
        v_mbcnt_hi_u32_b32 v11, -1, v11
        v_cmp_gt_u32 vcc, 32, v11
        v_lshl_add_u32 v11, v11, 2, s64
        s_and_saveexec_b64 s[66:67], vcc
        global_store_dword v11, v10, s[28:29]
        """)

    def entry(self):
        a = self.a
        self.cold = []
        a("L_begin:")
        if self.prof:
            a("s_memrealtime s[80:81]\ns_memtime s[96:97]")
        a(f"""
        s_cmp_ge_u32 s2, {NWG}
        s_cbranch_scc1 L_end
        s_load_dwordx16 s[4:19], s[0:1], 0
        s_load_dwordx8 s[20:27], s[0:1], 64
        s_load_dwordx2 s[28:29], s[0:1], 96
        """)
        a(f"""
        s_and_b32 s64, s2, 0xf8
        s_cmp_lg_u32 s64, 8
        s_cbranch_scc1 L_nopf
        s_getpc_b64 s[32:33]
        L_pc:
        v_lshlrev_b32 v1, 6, v0
        v_min_u32 v1, L_end-L_pc, v1
        global_load_dword v255, v1, s[32:33]
        L_nopf:
        """)
        a("""
        v_lshrrev_b32 v1, 6, v0
        v_and_b32 v2, 63, v0
        v_readfirstlane_b32 s3, v1
        s_and_b32 s67, s2, 7
        s_and_b32 s31, s3, 3
        s_cmp_lt_u32 s3, 4
        s_cbranch_scc1 L_gemm
        """)

    def common(self):
        self.a(f"""
        v_and_b32 v3, 15, v2
        v_lshrrev_b32 v4, 4, v2
        v_mov_b32 v5, 0
        v_mov_b32 v6, 1
        s_mov_b32 s100, {self.spin}
        s_bfe_u32 s65, s2, 0x10003
        s_lshl1_add_u32 s64, s67, s65
        s_and_b32 s65, s2, 0xf0
        s_or_b32 s64, s64, s65
        s_cmp_lt_u32 s2, 240
        s_cselect_b32 s1, s64, s2
        """)
        if self.prof:
            for i in range(1, 8):
                self.a(f"s_mov_b64 s[{80+2*i}:{81+2*i}], 0")

    def lds_init(self):
        a = self.a
        a(f"""
        v_lshlrev_b32 v8, 4, v0
        v_lshlrev_b32 v10, 2, v0
        v_mov_b32 v32, {EMPTY}
        v_mov_b32 v33, {EMPTY}
        v_mov_b64 v[34:35], v[32:33]
        v_subrev_u32 v9, {LCNT // 4}, v0
        v_cmp_gt_u32 vcc, 20, v9
        """)
        for i in range(4):
            a(f"ds_write_b128 v8, v[32:35] offset:{BST + 4096*i}")
        a(f"""
        v_mul_u32_u24 v9, {LSTRIDE}, v9
        v_add_u32 v9, {LIST}, v9
        v_cndmask_b32 v9, 0, v9, vcc
        ds_write_b32 v10, v9
        v_mov_b32 v16, {PAD2}
        v_mov_b32 v17, {PAD2}
        v_mov_b64 v[18:19], v[16:17]
        v_add_u32 v9, {LIST}, v8
        ds_write_b128 v9, v[16:19]
        ds_write_b128 v9, v[16:19] offset:4096
        """)

    def gemm_waves(self):
        a = self.a
        W = lambda jb, ks: 128 + (ks * 4 + jb) * 4
        ACC = lambda b, jb: 80 + (b * 4 + jb) * 4
        MR = lambda n: 40 + (n % 10) * 4
        BF = lambda s, b: 16 + (s * 3 + b) * 4
        vN, vG, vZ, vOne = 3, 4, 5, 6
        vB = [7, 8, 9, 10]
        vTR = [11, 12]
        vD, vM, vT = 13, 14, 15
        X, WV, WL, WS, OUT = 32, 36, 40, 44, 48
        thr = self.gthr

        a("L_gemm:")
        a("; ---- G waves: LDS initialisation, first touches, x tile and wv staging (LDS-DMA + transposing reads)")

        def xtile(lo=0, hi=5):
            for i in range(lo, hi):
                a(f"s_add_u32 m0, s66, {XT + i*4096}")
                a("s_add_u32 s63, s63, 4096" if i else "s_nop 0")
                a(f"buffer_load_dwordx4 v{30 + (i & 1)}, s[{X}:{X+3}], s63 offen lds")

        def g_common():
            self.common()
            a(f"""
            v_lshrrev_b32 v28, 5, v0
            v_and_b32 v1, 31, v2
            v_xor_b32 v1, v1, v28
            v_lshlrev_b32 v1, 4, v1
            v_lshl_add_u32 v30, v28, 9, v1
            v_xor_b32 v31, 0x80, v30
            s_mul_i32 s63, s1, 20480
            s_lshl_b32 s66, s31, 10
            s_waitcnt lgkmcnt(0)
            """)
            self.srd(X, 4, 5120000)

        def g_x():
            self.stamp("Gx")
            xtile(0, self.xa)

        def g_pages():
            a("; address-translation prefetch: one discarded read per page that is first used much later")
            a(f"""
            s_min_u32 s64, s1, {NMAIN - 1}
            s_mul_i32 s64, s64, 20480
            s_cmp_eq_u32 s31, 0
            s_cselect_b64 s[68:69], s[24:25], s[16:17]
            s_cselect_b32 s64, s64, 0
            s_cmp_eq_u32 s31, 2
            s_cselect_b64 s[68:69], s[28:29], s[68:69]
            s_cselect_b32 s64, 0x800, s64
            s_cselect_b32 s76, 0x2f8000, 0
            s_cmp_eq_u32 s31, 3
            s_cselect_b64 s[68:69], s[4:5], s[68:69]
            s_cselect_b32 s76, 0x200000, s76
            s_cselect_b32 s77, 2, 1
            v_min_u32 v27, s77, v2
            v_mul_lo_u32 v27, v27, s76
            v_add_u32 v27, s64, v27
            global_load_dword v24, v27, s[68:69]
            """)

        def g_barrier():
            a(f"s_waitcnt lgkmcnt(0)\ns_cmp_ge_u32 s2, {NMAIN}\ns_cbranch_scc1 L_end\ns_barrier\ns_setprio {self.gprio}")
            self.stamp("Gb0")

        def g_weights():
            a(f"""
            v_lshrrev_b32 v{vD}, 3, v2
            v_lshrrev_b32 v{vT}, 2, v2
            v_and_b32 v{vT}, 4, v{vT}
            v_and_b32 v{vM}, 7, v2
            v_xor_b32 v{vT}, v{vT}, v{vM}
            v_lshlrev_b32 v{vT}, 4, v{vT}
            v_lshl_add_u32 v{vD}, v{vD}, 9, v{vT}
            s_bfe_u32 s67, s2, 0x30003
            s_lshl_b32 s64, s31, 7
            s_lshl_b32 s65, s67, 14
            s_or_b32 s64, s64, s65
            v_add_u32 v{vD}, s64, v{vD}
            s_lshl_b32 s70, s31, 14
            s_add_u32 s70, s70, {WST}
            s_mov_b32 s71, 3072
            s_mov_b32 s72, 6144
            s_mov_b32 s73, 9216
            """)
            self.srd(WV, 22, 131072)

        def g_touch():
            lt = self.lab("touched")
            a(f"""
            s_and_b32 s64, s2, 8
            s_or_b32 s64, s64, s31
            s_cbranch_scc1 {lt}
            s_lshr_b32 s64, s2, 4
            s_and_b32 s68, s2, 7
            s_lshl3_add_u32 s64, s64, s68
            s_lshl_b32 s64, s64, 10
            v_lshl_add_u32 v26, v2, 4, s64
            global_load_dwordx4 v[20:23], v26, s[16:17]
            {lt}:
            """)

        def throttle(th):
            return f"s_waitcnt vmcnt({th - 1})\n" if th < 16 else ""

        def dma_list(srd, ks, th=False, m0=None):
            so = ["0", "s71", "s72", "s73"]
            slot = ks & 3
            ops = []
            for i in range(4):
                pre = (f"s_mov_b32 m0, {m0}\n" if m0 else f"s_add_u32 m0, s70, {slot*4096}\n") if i == 0 else ""
                t = throttle(th) if th else ""
                if i == 0 and not t:
                    t = "s_nop 0\n"
                post = f"\nv_xor_b32 v{vD}, {(ks ^ ((ks + 1) & 7)) << 14}, v{vD}" if i == 3 else ""
                ops.append(pre + t + f"buffer_load_dwordx4 v{vD}, s[{srd}:{srd+3}], {so[i]} offen offset:{i*1024} lds" + post)
            return ops

        def dma(srd, slot, th=False, m0=None):
            for o in dma_list(srd, slot, th, m0):
                a(o)

        WL_ = lambda jb, ks: 48 + (ks * 4 + jb) * 4 if ks < 2 else W(jb, ks - 2)

        def tr_list(ks, slot, reg=W):
            return [f"ds_read_b64_tr_b16 {r2(reg(jb, ks) + 2*hh)}, v{vTR[jb >> 1]} offset:{slot*4096 + hh*512 + (jb & 1)*8}"
                    for jb in range(4) for hh in range(2)]

        def tr(ks, slot, reg=W):
            a("\n".join(tr_list(ks, slot, reg)))

        for step in self.go:
            dict(c=g_common, x=g_x, p=g_pages, i=self.lds_init, b=g_barrier, w=g_weights, t=g_touch, d=lambda: dma(WV, 0))[step]()
        self.srd(WL, 16, 131072)
        self.srd(WS, 28, 0x100000)
        self.srd(OUT, 24, 5120000)
        a(f"""
        v_xor_b32 v{vT}, v{vG}, v{vN}
        v_lshlrev_b32 v{vT}, 4, v{vT}
        v_lshl_add_u32 v{vB[0]}, v{vN}, 9, v{vT}
        s_lshl_b32 s64, s67, 6
        v_xor_b32 v{vB[0]}, s64, v{vB[0]}
        v_xor_b32 v{vB[1]}, 64, v{vB[0]}
        v_xor_b32 v{vB[2]}, 0x80, v{vB[0]}
        v_xor_b32 v{vB[3]}, 0xc0, v{vB[0]}
        v_lshrrev_b32 v{vT}, 2, v{vN}
        v_lshl_add_u32 v{vT}, v{vG}, 3, v{vT}
        v_lshlrev_b32 v{vT}, 7, v{vT}
        v_lshrrev_b32 v{vM}, 1, v{vN}
        v_and_b32 v{vM}, 4, v{vM}
        v_and_b32 v0, 3, v{vN}
        v_xor_b32 v{vM}, v{vM}, v0
        v_lshl_add_u32 v{vT}, v{vM}, 4, v{vT}
        v_add_u32 v{vTR[0]}, s70, v{vT}
        v_xor_b32 v{vTR[1]}, 64, v{vTR[0]}
        v_and_b32 v0, 31, v2
        v_lshlrev_b32 v0, 2, v0
        s_and_b32 s64, s2, {self.nrep-1}
        s_lshl_b32 s64, s64, 9
        s_lshl_b32 s65, s31, 7
        s_add_u32 s64, s64, s65
        s_add_u32 s74, s64, {WS_FLAG}
        v_lshlrev_b32 v{vM}, 4, v2
        s_lshl_b32 s75, s31, 15
        s_lshl_b32 s64, s67, 12
        s_or_b32 s75, s75, s64
        s_add_u32 s75, s75, {WS_M}
        """)
        flagload = f"buffer_load_dword v1, v0, s[{WS}:{WS+3}], s74 offen sc1"

        def mload(n):
            s = f"buffer_load_dwordx4 {r4(MR(n))}, v{vM}, s[{WS}:{WS+3}], s75 offen offset:{(n & 3)*1024} sc1"
            if n & 3 == 3:
                s += f"\ns_xor_b32 s75, s75, {((n >> 2) ^ (((n >> 2) + 1) & 7)) << 12}"
            return s

        ngrp = 8
        fafter = ngrp - 1 - self.fpos
        order = ["X"] * 5 + ["D0"] * 4
        def issue_group(g):
            dma(WV if g < 8 else WL, g & 7, self.gthr0 if g < self.gstart else (thr if g < self.gfree else 0))
            order.extend([f"D{g}"] * 4)
            self.stamp(f"Gi{g}")
            if g == fafter:
                a(flagload)
                order.append("F")
        def wait_for(tag):
            last = max(i for i, o in enumerate(order) if o == tag)
            a(f"s_waitcnt vmcnt({len(order) - 1 - last})")
        def mstart():
            wait_for("F")
            self.stamp("Gf")
            l = self.lab("mchk")
            self.wait_cnt(C_HV, 1, vZ, 16, geth=True)
            rl = self.lab("mre")
            self.cold.append(f"""
            {rl}:
            s_sub_u32 s100, s100, 1
            s_cbranch_scc1 L_end
            s_sleep {self.msleep}
            {flagload}
            s_waitcnt vmcnt(0)
            s_branch {l}
            """)
            a(f"{l}:\nv_cmp_ne_u32 vcc, s30, v1\ns_cbranch_vccnz {rl}")
            self.stamp("Gm")
            for n in range(self.mring):
                a(mload(n))
            order.extend(["M"] * self.mring)
        for g in range(1, 4):
            if g == 1:
                xtile(self.xa, 5)
                a("s_barrier")
                self.warm()
            if g == self.mbar:
                lb = self.lab("nobar")
                a(f"s_bitcmp1_b32 s2, 3\ns_cbranch_scc1 {lb}\ns_barrier\n{lb}:")
            issue_group(g)
        started = False
        for ks in range(8):
            wait_for(f"D{ks}")
            self.stamp(f"Gd{ks}")
            if ks == 1:
                self.signal(C_XT, vZ, vOne)
            tr(ks, ks & 3)
            if ks + 4 < ngrp:
                a("s_waitcnt lgkmcnt(0)")
                issue_group(ks + 4)
            if not started and ks + 4 >= ngrp - 1 and ks >= min(fafter, 7):
                mstart()
                started = True
        assert started

        def bread(tile, ks, b, r, last=2):
            a(f"ds_read_b128 {r4(r)}, v{vB[ks & 3]} offset:{tile + b*8192}")
            if b == last:
                a(f"v_xor_b32 v{vB[ks & 3]}, 0x100, v{vB[ks & 3]}")

        a("; ---- G: T = x @ M, M streamed as ready-made fragments")
        self.wait_cnt(C_XT, 4, vZ, vT)
        follow = [mload(n) for n in range(self.mring, 32)]
        follow += sum((dma_list(WL, s) for s in range(4)), [])
        for b in range(3):
            bread(XT, 0, b, BF(0, b))
        inflight = self.mring
        for ks in range(8):
            if ks < 7:
                for b in range(3):
                    bread(XT, ks + 1, b, BF((ks + 1) & 1, b))
            a(f"s_waitcnt lgkmcnt({3 if ks < 7 else 0})")
            self.stamp(f"Gt{ks}")
            for jb in range(4):
                n = 4 * ks + jb
                a(f"s_waitcnt vmcnt({inflight - 1})")
                for b in range(3):
                    c = r4(ACC(b, jb)) if ks else "0"
                    a(f"{MF} {r4(ACC(b, jb))}, {r4(MR(n))}, {r4(BF(ks & 1, b))}, {c}")
                if follow and n < 32 - self.mring + self.wlin:
                    a(follow.pop(0))
                else:
                    inflight -= 1
        self.stamp("Gt8")
        a(f"""
        s_lshl_b32 s64, s31, 3
        v_add_u32 v0, s64, v{vG}
        v_xor_b32 v0, v0, v{vN}
        v_lshlrev_b32 v0, 4, v0
        v_lshl_add_u32 v0, v{vN}, 9, v0
        v_xor_b32 v1, 64, v0
        s_mov_b32 s76, 0x00ff00ff
        s_mov_b32 s77, 0x00ff00ff
        """)

        def pack(b, h, r):
            for k in range(2):
                s = ACC(b, 2 * h + k)
                a(f"v_cvt_pk_bf16_f32 v{r+2*k}, v{s}, v{s+1}\nv_cvt_pk_bf16_f32 v{r+2*k+1}, v{s+2}, v{s+3}")

        for b in range(3):
            if b == 2:
                a("s_mov_b64 exec, s[76:77]")
            for h in range(2):
                r = 16 + (b * 2 + h) * 4
                pack(b, h, r)
                a(f"ds_write_b128 v{h}, {r4(r)} offset:{TT + b*8192}")
        a("s_mov_b64 exec, -1\ns_waitcnt lgkmcnt(0)")
        self.stamp("Gtf")
        a("s_barrier")
        self.stamp("Gbt")
        for o in follow:
            a(o)
        a(f"""
        v_lshlrev_b32 v0, 4, v{vG}
        v_and_b32 v1, 7, v{vN}
        v_lshl_add_u32 v0, v1, 9, v0
        v_and_b32 v1, 8, v{vN}
        v_lshl_add_u32 v0, v1, 3, v0
        s_mul_i32 s74, s1, 20480
        s_lshl_b32 s64, s31, 7
        s_add_u32 s74, s74, s64
        s_waitcnt vmcnt(8)
        """)
        tr(0, 0, WL_)
        tr(1, 1, WL_)
        a("s_waitcnt lgkmcnt(8)")
        dma(WL, 4)
        a("s_waitcnt lgkmcnt(0)")
        dma(WL, 5)
        a(f"""
        s_lshl_b32 s64, s31, 12
        s_add_u32 s78, s64, {TT}
        s_add_u32 s79, s64, {LIST}
        s_cmp_eq_u32 s31, 3
        s_cselect_b32 s79, {TT + 16384}, s79
        s_sub_u32 s76, s78, s70
        s_sub_u32 s77, s79, s78
        """)
        vB8 = vB + [40, 41, 42, 43]
        for k in range(4):
            a(f"v_xor_b32 v{40+k}, 0x100, v{vB[k]}")
        a("s_barrier")
        self.stamp("Gbv")
        a("; ---- G: attention aggregate @ wv, w_l moves into the freed registers")
        dma(WL, 6, m0="s78")
        dma(WL, 7, m0="s79")
        lo = "s_setprio 0"
        hi = f"s_setprio {self.gprio}"
        a(lo)

        def wait_prog(target, sleep, off=C_AG):
            l = self.lab("prog")
            a(f"""
            {l}:
            ds_read_b128 v[16:19], v{vZ} offset:{off}
            s_waitcnt lgkmcnt(0)
            v_min3_u32 v16, v16, v17, v18
            v_min_u32 v16, v16, v19
            v_cmp_gt_u32 vcc, {target}, v16
            s_cbranch_vccnz {self.retry(l, sleep)}
            """)

        if self.gwait:
            wait_prog(self.gwait, 1)
        self.stamp("Gv0")
        rd = lambda tile, ks, b, r: f"ds_read_b128 {r4(r)}, v{vB8[ks]} offset:{tile + b*8192}"

        def weave(mf, fill):
            fill = list(fill)
            for m in mf:
                a(m)
                if fill:
                    a(fill.pop(0))
            for f in fill:
                a(f)

        for b in range(3):
            a(rd(XT, 0, b, BF(0, b)))
        a("s_waitcnt vmcnt(8)")
        young = 0
        for ks in range(8):
            a(f"s_waitcnt lgkmcnt({young})")
            mf = [f"{MF} {r4(ACC(b, jb))}, {r4(W(jb, ks))}, {r4(BF(ks & 1, b))}, {r4(ACC(b, jb)) if ks else 0}"
                  for jb in range(4) for b in range(3)]
            fill = [rd(XT, ks + 1, b, BF((ks + 1) & 1, b)) for b in range(3)] if ks < 7 else []
            young = 0
            if 1 <= ks <= 4:
                fill += tr_list(ks + 1, (ks + 1) & 3, WL_)
                young = 8
            if ks >= 6:
                d = 76 if ks == 6 else 77
                t = tr_list(ks, 0, WL_)
                t[0] = f"s_waitcnt vmcnt({4 * (7 - ks)})\n" + t[0]
                fill = [f"v_add_u32 v{vTR[0]}, s{d}, v{vTR[0]}\nv_add_u32 v{vTR[1]}, s{d}, v{vTR[1]}"] + fill + t
                young = 8
            weave(mf, fill)
        self.stamp("Gwl")
        a("; ---- G: edge aggregate @ w_l per row block, pack, store")
        FB = lambda ks: 16 + ks * 4 if ks < 6 else (44 if ks == 6 else 252)
        sf = " sc1"
        st = lambda r: f"buffer_store_dwordx4 {r4(r)}, v0, s[{OUT}:{OUT+3}], s74 offen{sf}"

        def packl(b, h, r):
            return [f"v_cvt_pk_bf16_f32 v{r+k}, v{ACC(b, 2*h) + 2*k}, v{ACC(b, 2*h) + 2*k + 1}" for k in range(4)]

        def epi(b, ra, rb):
            o = packl(b, 1, rb) + packl(b, 0, ra)
            if b < 2:
                o += packl(b, 0, 240)
            o += [f"v_mov_b32_dpp v{ra+k}, v{rb+k} row_ror:8 row_mask:0xf bank_mask:0xc" for k in range(4)]
            if b < 2:
                o += [f"v_mov_b32_dpp v{rb+k}, v{240+k} row_ror:8 row_mask:0xf bank_mask:0x3" for k in range(4)]
            return o

        a("s_add_u32 s75, s74, 4096\ns_add_u32 s76, s74, 8192\ns_add_u32 s77, s74, 12288\ns_add_u32 s78, s74, 16384")
        st = lambda r, i: f"buffer_store_dwordx4 {r4(r)}, v0, s[{OUT}:{OUT+3}], s{74+i} offen{sf}"
        for n, b in enumerate((2, 0, 1)):
            if n == 2:
                a(f"v_lshlrev_b32 v1, 4, v{vG}\nv_lshl_add_u32 v1, v{vN}, 9, v1")
            if n == 2:
                a("s_barrier")
            else:
                wait_prog((1, 3)[n], self.gsleep)
            self.stamp(f"Ga{n}")
            if n == 2:
                a(hi)
            for ks in range(8):
                a(rd(AG, ks, b, FB(ks)))
            mf = []
            if n == 2:
                st2 = lambda r, h: f"buffer_store_dwordx4 {r4(r)}, v1, s[{OUT}:{OUT+3}], s76 offen offset:{64*h}{sf}"
                for h in (1, 0):
                    for ks in range(8):
                        for i in range(2):
                            jb = 2 * h + i
                            w = f"s_waitcnt lgkmcnt({7-ks})\n" if i == 0 and h == 1 else ""
                            mf.append(w + f"{MF} {r4(ACC(b, jb))}, {r4(WL_(jb, ks))}, {r4(FB(ks))}, {r4(ACC(b, jb))}")
                weave(mf, [""] * 23 + packl(b, 1, 236) + [st2(236, 1)])
                a("s_nop 6")
                a("\n".join(packl(b, 0, 232)) + "\n" + st2(232, 0))
                continue
            for ks in range(8):
                for i, jb in enumerate((2, 3, 0, 1)):
                    w = f"s_waitcnt lgkmcnt({7-ks})\n" if i == 0 else ""
                    mf.append(w + f"{MF} {r4(ACC(b, jb))}, {r4(WL_(jb, ks))}, {r4(FB(ks))}, {r4(ACC(b, jb))}")
            weave(mf, epi(2, 244, 248) if n == 1 else [])
            if n == 1:
                a("s_nop 4")
                a("\n".join(epi(0, 224, 228)))
                wait_prog(1, self.gsleep, C_DR)
                self.stamp("Gst")
                a(f"{hi}\n{st(244, 4)}\n{st(224, 0)}\n{st(228, 1)}\n{lo}")
        a("; workgroup 0 has seen a hand-off from every workgroup: store this launch's tag as the next epoch word")
        l = self.lab("noepoch")
        a(f"""
        s_or_b32 s64, s2, s3
        s_cbranch_scc1 {l}
        v_mov_b32 v1, s30
        s_mov_b64 exec, 1
        {"" if self.noepoch else f"buffer_store_dword v1, v{vZ}, s[{WS}:{WS+3}], 0 offen sc1"}
        {l}:
        """)
        if self.prof:
            a("s_mov_b64 exec, -1\ns_waitcnt vmcnt(0)")
        self.stamp("Gend")
        self.dump()
        a("s_endpgm")
        self.flush_cold()

    def sparse_waves(self):
        a = self.a
        R = self.lag
        FPL = 2 if R <= 8 else (3 if R <= 12 else 4)
        NPRO = 16 + R - 4 * FPL
        AT = lambda t, h: 176 + t * 8 + 4 * h
        RG = lambda u, h: 48 + ((u >> 1) & 7) * 16 + 8 * h + 4 * (u & 1)
        vN, vG, vZ, vOne = 3, 4, 5, 6
        vLo, vEs, vFa = 7, 0, 2
        vL16 = 8
        MSK, vIx, ACC = 12, 14, 16
        A = [24, 28]
        vJ, vPa = 1, 10
        FS = lambda j: 176 + 2 * j
        EA = [32, 34, 36, 38]
        EW = [33, 35, 37, 39]
        vW, vAd = 205, 11
        X, DS, IB, TG, MK = 32, 36, 40, 44, 48
        sIdx = 27
        sP = [10, 11, 12, 13, 14]
        sK = [15, 16, 17, 18, 19]
        sQ = [20, 21, 22, 23, 24]
        sSlow, sJ, sT, sG = 25, 26, 49, 50
        sM, sF, sD, sGam, sRet, sMode, sDr, sAnc = 52, 53, 56, 57, 54, 62, 70, 72

        MQ, MKT = TT, DIS
        lb, lj = self.lab("mload"), self.lab("roled")
        a(f"""
        s_setprio 3
        s_bitcmp1_b32 s2, 3
        s_cbranch_scc0 {lb}
        s_lshr_b32 s66, s2, 4
        s_lshl3_add_u32 s68, s66, s67
        s_mul_i32 s64, s68, 5120
        s_sub_u32 s65, s64, 4096
        v_lshl_add_u32 v40, v0, 4, s65
        s_add_u32 s64, s64, 3072
        v_lshl_add_u32 v41, v0, 2, s64
        s_waitcnt lgkmcnt(0)
        global_load_dwordx4 v[48:51], v40, s[8:9] nt
        global_load_dword v52, v41, s[8:9] nt
        global_load_dwordx4 v[56:59], v40, s[6:7] nt
        global_load_dword v60, v41, s[6:7] nt
        s_mov_b32 s{sIdx}, s68
        s_branch {lj}
        {lb}:
        v_lshrrev_b32 v43, 5, v2
        v_lshl_add_u32 v44, s31, 2, v43
        v_and_b32 v46, 31, v2
        v_xor_b32 v46, v46, v44
        v_lshl_add_u32 v43, s31, 3, v43
        v_lshlrev_b32 v43, 9, v43
        v_lshl_add_u32 v46, v46, 4, v43
        v_lshl_add_u32 v44, s67, 14, v46
        s_and_b32 s65, s2, 0xe0
        s_and_b32 s66, s2, 16
        s_lshl2_add_u32 s65, s65, s66
        v_lshl_add_u32 v46, s65, 7, v46
        s_lshl_b32 s66, s31, 11
        s_add_u32 m0, s66, {MKT}
        s_waitcnt lgkmcnt(0)
        global_load_lds_dwordx4 v46, s[20:21]
        s_add_u32 m0, s66, {MQ}
        v_xor_b32 v46, 0x420, v46
        global_load_lds_dwordx4 v44, s[18:19]
        s_add_u32 m0, s66, {MQ + 8192 - 2048}
        v_xor_b32 v45, 0x420, v44
        global_load_lds_dwordx4 v44, s[18:19] offset:2048
        s_add_u32 m0, s66, {MKT + 1024}
        s_lshr_b32 s64, s2, 6
        global_load_lds_dwordx4 v46, s[20:21]
        s_add_u32 m0, s66, {MQ + 1024}
        s_lshl3_add_u32 s64, s64, s67
        global_load_lds_dwordx4 v45, s[18:19]
        s_add_u32 m0, s66, {MQ + 8192 + 1024 - 2048}
        s_bfe_u32 s65, s2, 0x20004
        global_load_lds_dwordx4 v45, s[18:19] offset:2048
        s_lshl2_add_u32 s{sIdx}, s64, s65
        {lj}:
        s_cmp_lg_u32 s31, 0
        s_cbranch_scc1 {lj}_b
        s_load_dword s30, s[28:29], 0
        {lj}_b:
        """)
        self.common()
        self.stamp("Sk")
        a(f"""
        v_lshrrev_b32 v42, 2, v{vN}
        v_and_b32 v43, 3, v{vN}
        v_lshl_add_u32 v42, v42, 4, v43
        s_lshl_b32 s64, s31, 1
        v_mov_b32 v43, s64
        v_lshlrev_b32 v44, 1, v43
        v_cmp_gt_u32 vcc, 8, v{vN}
        s_mul_i32 s65, s1, 640
        v_lshlrev_b32 v{vLo}, 4, v{vN}
        v_cndmask_b32 v43, v43, v44, vcc
        v_add_lshl_u32 v42, v42, v43, 4
        v_lshl_add_u32 v42, v{vG}, 2, v42
        v_add_u32 v42, s65, v42
        v_min_u32 v42, 159996, v42
        v_lshlrev_b32 v{vL16}, 4, v0
        v_and_b32 v{vL16}, 0xfff, v{vL16}
        global_load_dword v{vEs}, v42, s[10:11] nt
        s_barrier
        """)
        mrole = Asm()
        mrole("; ---- S: one 32x16 fragment of M, flagged after its store has completed")
        self.stamp("Sb0")
        self.srd(X, 4, 5120000)
        self.srd(DS, 14, 20000)
        self.srd(IB, 28, 125 * 16384, add=WS_INBOX)
        a(f"""
        v_and_b32 v40, 8, v{vN}
        v_lshlrev_b32 v40, 1, v40
        v_mov_b32 v41, 0xffff
        v_lshlrev_b32 v40, v40, v41
        s_mov_b32 s64, 0x0f0f0f0f
        s_mov_b32 s65, 0x0f0f0f0f
        v_cndmask_b32 v{MSK}, 0, v40, s[64:65]
        v_xor_b32 v{MSK+1}, v40, v{MSK}
        v_and_b32 v{vIx}, 3, v{vN}
        v_mul_u32_u24 v{vIx}, 0x5555, v{vIx}
        """)
        lh = self.lab("tagged")
        a(f"""
        s_cmp_lg_u32 s31, 0
        s_cbranch_scc1 {lh}
        s_waitcnt lgkmcnt(0)
        s_mul_i32 s30, s30, 0x9E3779B1
        s_add_u32 s30, s30, 0x7F4A7C15
        v_mov_b32 v40, 1
        v_mov_b32 v41, s30
        ds_write_b64 v{vZ}, v[40:41] offset:{C_HV}
        {lh}:
        """)

        def tags(dst):
            dst(f"""
            s_and_b32 s{TG}, s30, 0xffc00000
            s_lshl_b32 s{TG+1}, s30, 10
            s_and_b32 s{TG+1}, s{TG+1}, 0xffc00000
            s_lshl_b32 s{TG+2}, s30, 20
            s_and_b32 s{TG+2}, s{TG+2}, 0xffc00000
            s_lshl_b32 s{TG+3}, s30, 22
            """)

        lm2, lj2 = self.lab("mwork"), self.lab("worked")
        a(f"s_bitcmp1_b32 s2, 3\ns_cbranch_scc0 {lm2}")
        a("; ---- S: bin 1280 edges by destination bucket and publish them with the launch tag")
        a(f"""
        v_mov_b32 v43, 4
        v_mov_b32 v44, {OVF}
        s_mov_b32 s64, 0x3f0001
        v_lshrrev_b32 v40, 6, v{vL16}
        v_and_b32 v41, 0x30, v{vL16}
        v_lshl_add_u32 v40, v40, 14, v41
        s_lshl_b32 s68, s{sIdx}, 6
        s_add_u32 s69, s68, 0x100000
        s_add_u32 s70, s68, 8192
        s_add_u32 s71, s69, 8192
        s_mov_b32 s65, 0x203c
        s_waitcnt vmcnt(3)
        """)
        for k in range(5):
            a(f"""
            v_mul_u32_u24 v{64+k}, 52429, v{48+k}
            v_lshrrev_b32 v{72+k}, 22, v{64+k}
            v_lshlrev_b32 v{80+k}, 2, v{72+k}
            ds_add_rtn_u32 v{80+k}, v{80+k}, v43 offset:{BCNT}
            """)
        for k in range(5):
            a(f"""
            v_lshrrev_b32 v{64+k}, 21, v{64+k}
            v_mad_u32_u24 v{64+k}, v{64+k}, 24, v{48+k}
            v_mul_u32_u24 v{64+k}, 0x8001, v{64+k}
            v_bfe_u32 v{88+k}, v{72+k}, 1, 2
            v_lshl_or_b32 v{72+k}, v{72+k}, 2, v{88+k}
            v_lshlrev_b32 v{72+k}, 4, v{72+k}
            """)
        a(f"s_waitcnt vmcnt(1)")
        for k in range(5):
            a(f"v_lshlrev_b32 v{56+k}, 1, v{56+k}\nv_and_or_b32 v{64+k}, v{64+k}, s64, v{56+k}")
        a("s_waitcnt lgkmcnt(0)")
        for k in range(5):
            a(f"""
            v_cmp_gt_u32 vcc, 124, v{80+k}
            v_min_u32 v{80+k}, 124, v{80+k}
            v_lshl_or_b32 v{80+k}, v{80+k}, 7, v{80+k}
            v_cndmask_b32 v{64+k}, v44, v{64+k}, vcc
            v_bitop3_b32 v{80+k}, v{80+k}, s65, v{72+k} bitop3:0x6a
            ds_write_b32 v{80+k}, v{64+k} offset:{BST}
            """)
        a(f"s_waitcnt lgkmcnt(0)\ns_barrier\nds_read_b32 v44, v{vZ} offset:{C_H}")
        for i in range(4):
            a(f"ds_read_b128 {r4(48 + 4*i)}, v{vL16} offset:{BST + i*4096}")
        a("s_waitcnt lgkmcnt(4)\nv_readfirstlane_b32 s30, v44\ns_waitcnt vmcnt(0)")
        tags(a)
        for i in range(4):
            a(f"s_waitcnt lgkmcnt({3-i})")
            ls = self.lab("nosec")
            if i < 2:
                a(f"v_cmp_eq_u32 vcc, {EMPTY}, v{51+4*i}")
            else:
                a(f"s_not_b64 exec, s[{68+2*i}:{69+2*i}]\ns_cbranch_scc0 {ls}")
            for k in range(4):
                a(f"v_or_b32 v{48+4*i+k}, s{TG+k}, v{48+4*i+k}")
            a(f"buffer_store_dwordx4 {r4(48 + 4*i)}, v40, s[{IB}:{IB+3}], s{68+i} offen sc1")
            a(f"s_wqm_b64 s[{72+2*i}:{73+2*i}], vcc" if i < 2 else f"{ls}:")
        a("s_mov_b64 exec, -1")
        a(f"""
        s_cmp_ge_u32 s2, {NMAIN}
        s_cbranch_scc1 L_end
        {lj2}:
        """)
        mrole(f"""
        {lm2}:
        v_xor_b32 v44, v{vG}, v{vN}
        v_lshlrev_b32 v44, 4, v44
        v_lshl_add_u32 v44, v{vN}, 9, v44
        v_xor_b32 v45, 64, v44
        v_xor_b32 v46, 0x80, v44
        v_xor_b32 v47, 0xc0, v44
        s_cmp_lg_u32 s31, 0
        s_waitcnt vmcnt(1)
        s_barrier
        s_cbranch_scc1 {lj2}_w
        """)

        def mread(k):
            for n, base in enumerate((MKT, MQ, MQ + 8192)):
                mrole(f"ds_read_b128 {r4(48 + 12*k + 4*n)}, v{44 + (k & 3)} offset:{base + 256*(k >> 2)}")

        for k in range(3):
            mread(k)
        for k in range(8):
            if k < 5:
                mread(k + 3)
            mrole(f"s_waitcnt lgkmcnt({3 * min(3, 7 - k)})")
            for jj in range(2):
                c = r4(ACC + 4 * jj) if k else "0"
                mrole(f"{MF} {r4(ACC + 4*jj)}, {r4(52 + 12*k + 4*jj)}, {r4(48 + 12*k)}, {c}")
        mrole(f"""
        s_lshl_b32 s64, s{sIdx}, 10
        s_add_u32 s64, s64, {WS_M}
        v_lshl_add_u32 v40, v2, 4, s64
        s_lshl_b32 s64, s{sIdx}, 2
        s_add_u32 s64, s64, {WS_FLAG}
        v_lshl_add_u32 v41, v2, 9, s64
        v_mov_b32 v42, s30
        s_nop 1
        """)
        for k in range(4):
            mrole(f"v_cvt_pk_bf16_f32 v{44+k}, v{ACC+2*k}, v{ACC+2*k+1}")
        mrole("global_store_dwordx4 v40, v[44:47], s[28:29] sc1\ns_barrier")
        mrole(f"""
        s_waitcnt vmcnt(0)
        s_mov_b64 exec, {hex((1 << self.nrep) - 1)}
        global_store_dword v41, v42, s[28:29] sc1
        s_mov_b64 exec, -1
        """)
        mrole(f"""
        s_branch {lj2}
        {lj2}_w:
        s_barrier
        s_waitcnt vmcnt(0)
        s_branch {lj2}
        """)
        self.stamp("Srole")
        a("; ---- S: attention rows, deg_inv_sqrt table, incoming bins -> per node-pair lists")
        a(f"""
        v_lshlrev_b32 v{vEs}, 9, v{vEs}
        s_setprio {self.sprio}
        s_lshl_b32 s64, s31, 10
        s_lshr_b32 s10, s1, 1
        s_lshl_b32 s10, s10, 14
        s_add_u32 s11, s10, 4096
        s_add_u32 s12, s10, 8192
        s_add_u32 s13, s10, 12288
        v_cmp_gt_u32 vcc, 0xf40, v{vL16}
        s_mov_b64 s[14:15], vcc
        """)

        def arow(t, th):
            a(f"v_add_u32_dpp v9, v{vEs}, v{vLo} row_newbcast:{t} {DPPF}")
            if th:
                a(f"s_waitcnt vmcnt({self.sthr - 2})")
            for h in range(2):
                a(f"buffer_load_dwordx4 {r4(AT(t, h))}, v9, s[{X}:{X+3}], 0 offen offset:{256*h}")

        nd = 0
        for t in range(self.ipos):
            arow(t, True)
            self.stamp(f"Sr{t}")
            while nd < 5 and (nd + 1) * self.ipos <= 5 * (t + 1):
                if nd == 0:
                    a(f"s_bfe_u32 s65, s2, 0x30003\ns_min_u32 s65, s65, 4\ns_lshl_b32 s65, s65, 12\ns_add_u32 s64, s64, {DIS}")
                else:
                    a("s_add_u32 s65, s65, 4096\ns_cmp_eq_u32 s65, 20480\ns_cselect_b32 s65, 0, s65")
                a("s_add_u32 m0, s64, s65\ns_nop 0")
                a(f"buffer_load_dwordx4 v{vL16}, s[{DS}:{DS+3}], s65 offen lds")
                nd += 1
        assert nd == 5
        late = list(range(self.ipos, 10))
        late, late2 = late[:len(late) - self.lpos], late[len(late) - self.lpos:]
        self.stamp("Sat")
        l = self.lab("ipoll")
        iload = lambda i: f"buffer_load_dwordx4 {r4(48 + 4*i)}, v{vL16}, s[{IB}:{IB+3}], s{10+i} offen sc1"
        a(f"{l}:\n{iload(0)}\ns_mov_b64 exec, s[14:15]\n{iload(1)}\ns_mov_b64 exec, -1")
        self.wait_cnt(C_HV, 1, vZ, 44, geth=True)
        tags(a)
        a(f"s_and_b32 s64, s1, 1\ns_lshl_b32 s64, s64, 21\ns_xor_b32 s17, s64, {EMPTY}")
        for k in range(4):
            a(f"s_or_b32 s{TG+k}, s{TG+k}, s64\nv_mov_b32 v{68+k}, s17")
        a(f"s_mov_b32 s16, {20 << 16}\nv_mov_b32 v42, 2")

        def decode(i, m):
            for k in range(4):
                n = 4 * i + k
                a(f"v_cmp_gt_u32 s[{m+2*k}:{m+2*k+1}], s16, v{64+n}")
                a(f"v_lshlrev_b32_sdwa v{80+n}, 2, v{64+n} dst_sel:DWORD dst_unused:UNUSED_PAD src0_sel:DWORD src1_sel:WORD_1")

        for i in range(2):
            a(f"s_waitcnt vmcnt({1-i})")
            if i == 1:
                a("s_mov_b64 exec, s[14:15]")
            for k in range(4):
                a(f"v_xor_b32 v{64+4*i+k}, s{TG+k}, v{48+4*i+k}")
            if i == 1:
                a("s_mov_b64 exec, -1\nv_or3_b32 v40, v40, v68, v69\nv_or3_b32 v40, v40, v70, v71")
            else:
                a("v_or3_b32 v40, v64, v65, v66\nv_or_b32 v40, v40, v67")
            a(f"v_cmp_eq_u32 s[{72+2*i}:{73+2*i}], s17, v{67+4*i}")
            if i == 0:
                decode(0, MK)
        a(f"v_cmp_le_u32 vcc, 0x400000, v40\ns_cbranch_vccnz {self.retry(l, 4)}")
        self.stamp("Sin")
        for i in range(2):
            ln = self.lab("nosec")
            a(f"""
            s_wqm_b64 s[{72+2*i}:{73+2*i}], s[{72+2*i}:{73+2*i}]
            s_not_b64 exec, s[{72+2*i}:{73+2*i}]
            s_cbranch_scc0 {ln}
            {iload(2 + i)}
            {ln}:
            """)
        a("s_mov_b64 exec, -1")
        decode(1, MK + 8)
        for n in range(8):
            a(f"s_mov_b64 exec, s[{MK+2*n}:{MK+2*n+1}]\nds_add_rtn_u32 v{80+n}, v{80+n}, v42 offset:{LCNT}")
        a("s_mov_b64 exec, -1")
        nla = (len(late) + 1) // 2
        for t in late[:nla]:
            arow(t, False)
        for n in range(8):
            if n % 4 == 0:
                a("s_waitcnt lgkmcnt(4)")
            a(f"s_mov_b64 exec, s[{MK+2*n}:{MK+2*n+1}]\nds_write_b16 v{80+n}, v{64+n}")
        for i in (2, 3):
            lp, ld, lr = (self.lab(x) for x in ("sec", "secdone", "secload"))
            a(f"s_not_b64 exec, s[{68+2*i}:{69+2*i}]\ns_cbranch_scc0 {ld}\ns_waitcnt vmcnt({2 * nla})\n{lp}:")
            for k in range(4):
                a(f"v_xor_b32 v{64+4*i+k}, s{TG+k}, v{48+4*i+k}")
            a(f"""
            v_or3_b32 v40, v{64+4*i}, v{65+4*i}, v{66+4*i}
            v_or_b32 v40, v40, v{67+4*i}
            v_cmp_le_u32 vcc, 0x400000, v40
            s_cbranch_vccnz {self.retry(lr, 2)}
            v_and_b32 v40, {OVF}, v{67+4*i}
            v_cmp_eq_u32 vcc, {OVF}, v40
            """)
            decode(i, MK + 16)
            for k in range(4):
                a(f"s_mov_b64 exec, s[{MK+16+2*k}:{MK+17+2*k}]\nds_add_rtn_u32 v{80+4*i+k}, v{80+4*i+k}, v42 offset:{LCNT}")
            a(f"s_mov_b64 exec, vcc\nds_write_b32 v{vZ}, v{vOne} offset:{C_OVF}\ns_waitcnt lgkmcnt(0)")
            for k in range(4):
                a(f"s_mov_b64 exec, s[{MK+16+2*k}:{MK+17+2*k}]\nds_write_b16 v{80+4*i+k}, v{64+4*i+k}")
            a(f"{ld}:")
            self.cold.append(f"{lr}:\n{iload(i)}\ns_waitcnt vmcnt(0)\ns_branch {lp}")
        self.signal(C_LIST, vZ, vOne)
        self.stamp("Slw")
        for t in late[(len(late) + 1) // 2:]:
            arow(t, False)
        a(f"""
        s_lshl_b32 s{sQ[0]}, s31, 1
        s_add_u32 s{sQ[1]}, s{sQ[0]}, 1
        s_add_u32 s{sQ[2]}, s{sQ[0]}, 8
        s_add_u32 s{sQ[3]}, s{sQ[0]}, 9
        s_add_u32 s{sQ[4]}, s31, 16
        v_add_u32 v47, -1, v{vN}
        v_bfe_u32 v40, v47, 1, 1
        v_and_b32 v41, 1, v47
        v_lshl_add_u32 v40, v40, 3, v41
        v_add_u32 v40, s{sQ[0]}, v40
        v_mov_b32 v41, s{sQ[4]}
        v_cmp_ne_u32 vcc, 0, v{vN}
        v_min_u32 v47, 19, v2
        v_mul_u32_u24 v46, {LSTRIDE}, v47
        v_cndmask_b32 v40, v41, v40, vcc
        v_mul_u32_u24 v41, {LSTRIDE}, v40
        v_add_u32 v41, {LIST}, v41
        v_lshlrev_b32 v40, 2, v40
        v_add_u32 v46, {LIST + 2*LCAP}, v46
        v_lshlrev_b32 v47, 2, v47
        v_lshlrev_b32 v43, 3, v{vN}
        v_lshl_add_u32 v43, v{vG}, 1, v43
        """)
        self.wait_cnt(C_LIST, 4, vZ, 44)
        self.stamp("Sls")
        a(f"""
        ds_read_b32 v44, v40 offset:{LCNT}
        ds_read_b32 v47, v47 offset:{LCNT}
        ds_read_b32 v45, v{vZ} offset:{C_OVF}
        s_waitcnt lgkmcnt(2)
        v_sub_u32 v44, v44, v41
        v_max_u32 v44, 18, v44
        s_waitcnt lgkmcnt(0)
        v_cmp_gt_u32 vcc, v47, v46
        v_add_u32_dpp v48, v44, v44 row_shr:1 {DPPF} bound_ctrl:1
        v_readfirstlane_b32 s{sSlow}, v45
        s_or_b32 s64, vcc_lo, vcc_hi
        v_add_u32_dpp v48, v48, v48 row_shr:2 {DPPF} bound_ctrl:1
        s_or_b32 s{sSlow}, s{sSlow}, s64
        s_mov_b32 s{sF}, 0
        v_add_u32_dpp v48, v48, v48 row_shr:4 {DPPF} bound_ctrl:1
        v_sub_u32 v44, v48, v44
        v_sub_u32 v44, v41, v44
        """)
        BT, BU = 160, 40
        for j in range(5):
            a(f"v_readlane_b32 s{sP[j]}, v48, {j}")
        for j in range(5):
            a(f"v_add_u32_dpp v{BT+j}, v44, v43 row_newbcast:{j} {DPPF}")
        a(f"""
        s_add_u32 s{sG}, s{sP[4]}, 14
        s_lshr_b32 s{sG}, s{sG}, 4
        s_cmp_gt_u32 s{sG}, 32
        s_cselect_b32 s{sSlow}, 1, s{sSlow}
        s_max_u32 s{sG}, s{sG}, {8 + R // 2}
        """)

        def build(chunks):
            for c in chunks:
                a(f"v_add_u32 v{BU+c}, {128*c}, v43")
                for j in range(4):
                    a(f"v_cmp_le_u32 s[{64+2*j}:{65+2*j}], s{sP[j]}, v{BU+c}")
                for j in range(4):
                    a(f"v_cndmask_b32 v{BU+c}, v{BT if j == 0 else BU+c}, v{BT+1+j}, s[{64+2*j}:{65+2*j}]")
                a(f"ds_read_u16 v{BU+c}, v{BU+c} offset:{128*c}")
            for n, c in enumerate(chunks):
                a(f"""
                s_waitcnt lgkmcnt({len(chunks) - 1})
                v_and_b32 v{EA[c]}, 0x7ffe, v{BU+c}
                ds_read_u16 v{EW[c]}, v{EA[c]} offset:{DIS}
                v_lshlrev_b32 v{EA[c]}, 8, v{EA[c]}
                v_lshlrev_b32 v{BU+c}, 4, v{BU+c}
                """)

        def finish(chunks):
            for c in chunks:
                a(f"v_lshlrev_b32 v{EW[c]}, v{BU+c}, v{EW[c]}\nds_bpermute_b32 v{EW[c]}, v46, v{EW[c]}")

        def issue(u, halves=(0, 1)):
            a(f"v_add_u32_dpp v{vAd}, v{EA[u // 16]}, v{vLo} row_newbcast:{u % 16} {DPPF}")
            for h in halves:
                a(f"buffer_load_dwordx4 {r4(RG(u, h))}, v{vAd}, s[{X}:{X+3}], 0 offen offset:{256*h}")

        build([0, 1, 2, 3])
        self.stamp("Sent")
        for t in late2:
            arow(t, False)
        for u in range(self.npre):
            issue(u)
        pend, pend2 = list(range(self.npre, 12)), list(range(12, NPRO))
        a(f"s_mov_b32 s{sGam}, 0")
        for j in range(4, -1, -1):
            a(f"""
            s_sub_u32 s64, s{sP[j]}, 18
            s_lshr_b32 s65, s64, 4
            s_bitset1_b32 s{sF}, s65
            s_and_b32 s64, s64, 14
            s_lshl4_add_u32 s{sGam}, s{sGam}, s64
            s_and_b32 s65, s{sQ[j]}, 7
            s_lshl_b32 s65, s65, 5
            s_lshl_b32 s{sK[j]}, s{sQ[j]}, 10
            s_or_b32 s{sK[j]}, s{sK[j]}, s65
            """)
        TA = [144, 145, 146, 147, 148, 149]
        P = lambda t: 150 + t
        TF = lambda s, h: 160 + s * 8 + 4 * h
        a(f"""
        s_sub_u32 s64, s{sG}, {R // 2 + 1}
        s_lshl_b32 s{sD}, 1, s64
        s_or_b32 s{sM}, s{sD}, s{sF}
        v_and_b32 v46, 1, v{vN}
        v_lshl_add_u32 v46, v{vG}, 1, v46
        v_and_b32 v46, 3, v46
        v_and_b32 v47, 14, v{vN}
        v_lshl_add_u32 v46, v46, 4, v47
        v_lshrrev_b32 v47, 1, v{vG}
        v_add_lshl_u32 v46, v46, v47, 2
        v_lshrrev_b32 v44, 1, v{vG}
        v_mul_u32_u24 v44, 528, v44
        v_xor_b32 v44, v44, v{vLo}
        v_and_b32 v45, 1, v{vG}
        v_lshl_or_b32 v{vFa}, v45, 3, v44
        v_xor_b32 v{TA[0]}, s{sK[0]}, v{vLo}
        v_xor_b32 v{TA[2]}, s{sK[1]}, v{vLo}
        v_xor_b32 v{TA[4]}, s{sK[4]}, v{vLo}
        v_xor_b32 v{TA[1]}, 528, v{TA[0]}
        v_xor_b32 v{TA[3]}, 528, v{TA[2]}
        v_xor_b32 v{TA[5]}, 528, v{TA[4]}
        s_mul_i32 s64, s1, 80
        s_add_u32 s64, s64, {DIS}
        v_and_b32 v45, 2, v{vG}
        v_add_u32 v{vEs}, s64, v45
        s_getpc_b64 s[{sAnc}:{sAnc+1}]
        L_anc:
        v_lshlrev_b32 v{vG}, 2, v{vG}
        s_mov_b32 s{sMode}, L_fp1-L_anc
        s_mov_b32 s{sMode+1}, L_fp1-L_fp0
        s_mov_b32 s{sDr}, L_dr1-L_anc
        s_mov_b32 s{sDr+1}, L_dr1-L_dr0
        s_mov_b32 s{sJ}, 0
        s_mov_b32 s{sT}, 0
        v_mov_b32 v{vJ}, 0
        s_lshl_b32 s64, s31, 2
        v_mov_b32 v{vPa}, s64
        v_and_b32 v9, 8, v{vN}
        v_lshlrev_b32 v9, 1, v9
        s_mov_b32 s66, 0x22222222
        s_mov_b32 s67, 0x22222222
        s_mov_b32 s68, 0x44444444
        s_mov_b32 s69, 0x44444444
        """)
        for t in range(0, 10, 2):
            a(f"v_mov_b64 {r2(P(t))}, 0")
        for k in range(4):
            a(f"v_mov_b64 {r2(ACC + 2*k)}, 0")
        a("s_waitcnt lgkmcnt(0)")
        finish([0, 1, 2, 3])
        a(f"s_waitcnt vmcnt({2 * self.npre}) lgkmcnt(0)")
        self.stamp("Srdy")
        a("s_barrier")
        self.stamp("Sbt")

        def tread(t):
            ad, off = (TA[t & 3], 8192 * (t >> 2)) if t < 8 else (TA[t - 4], 0)
            for h in range(2):
                a(f"ds_read_b128 {r4(TF(t & 1, h))}, v{ad} offset:{TT + off + 256*h}")

        def level1(t):
            a(f"v_add_f32_dpp v{P(t)}, v{P(t)}, v{P(t)} row_ror:8 row_mask:0xf bank_mask:0x3")
            a(f"v_add_f32_dpp v{P(t)}, v{P(t+1)}, v{P(t+1)} row_ror:8 row_mask:0xf bank_mask:0xc")

        def level2(t):
            a(f"v_add_f32_dpp v{P(t)}, v{P(t)}, v{P(t)} row_half_mirror row_mask:0xf bank_mask:0x5")
            if t < 8:
                a(f"v_add_f32_dpp v{P(t)}, v{P(t+2)}, v{P(t+2)} row_half_mirror row_mask:0xf bank_mask:0xa")

        tread(0)
        for t in range(10):
            if t < 9:
                tread(t + 1)
            a(f"s_waitcnt lgkmcnt({2 if t < 9 else 0})")
            for h in range(2):
                for k in range(4):
                    a(f"v_dot2c_f32_bf16 v{P(t)}, v{AT(t, h)+k}, v{TF(t & 1, h)+k}")
            if t >= 2 and t % 2 == 0:
                level1(t - 2)
            if t in (5, 9):
                level2(t - 5)
            for _ in range(-(-len(pend) // (10 - t)) if t >= self.slate else 0):
                issue(pend.pop(0))
        self.stamp("Sdot")
        vE = P(0)
        a(f"""
        v_add_f32_dpp v{P(0)}, v{P(0)}, v{P(0)} quad_perm:[1,0,3,2] {DPPF}
        s_nop 0
        """)
        level1(8)
        a(f"""
        v_add_f32_dpp v{P(4)}, v{P(4)}, v{P(4)} quad_perm:[1,0,3,2] {DPPF}
        v_add_f32_dpp v{P(0)}, v{P(0)}, v{P(0)} quad_perm:[2,3,0,1] {DPPF}
        """)
        level2(8)
        a(f"""
        v_add_f32_dpp v{P(4)}, v{P(4)}, v{P(4)} quad_perm:[2,3,0,1] {DPPF}
        s_nop 0
        v_add_f32_dpp v{P(8)}, v{P(8)}, v{P(8)} quad_perm:[1,0,3,2] {DPPF}
        v_cndmask_b32 v{vE}, v{vE}, v{P(4)}, s[66:67]
        s_nop 0
        v_add_f32_dpp v{P(8)}, v{P(8)}, v{P(8)} quad_perm:[2,3,0,1] {DPPF}
        v_cndmask_b32 v{vE}, v{vE}, v{P(8)}, s[68:69]
        v_mul_f32 v{vE}, 0x3db8aa3b, v{vE}
        v_exp_f32 v{vE}, v{vE}
        s_nop 0
        v_mov_b32 v44, v{vE}
        v_mov_b32 v45, v{vE}
        s_nop 1
        v_permlane32_swap_b32 v44, v45
        v_add_f32 v44, v44, v45
        v_mov_b32 v45, v44
        s_nop 1
        v_permlane16_swap_b32 v44, v45
        v_add_f32 v44, v44, v45
        v_add_f32 v44, 0x3089705f, v44
        v_rcp_f32 v44, v44
        s_nop 0
        v_mul_f32 v{vE}, v{vE}, v44
        v_cvt_pk_bf16_f32 v{vE}, v{vE}, 0
        v_lshlrev_b32 v8, v9, v{vE}
        s_nop 1
        """)
        vE = 8
        self.stamp("Ssm")
        elane = lambda t: 4 * [0, 2, 1, 3][t & 3] + (t >> 2)

        def wops(src, lane, p):
            return [f"v_and_b32_dpp v{A[p]+r}, v{src}, v{MSK+r} row_newbcast:{lane} {DPPF}" for r in range(2)]

        def wops8(s_, p):
            return [f"v_and_b32_dpp v{A[p]+2*e+r}, v{EW[s_ // 8]}, v{MSK+r} row_newbcast:{2*(s_ % 8)+e} {DPPF}"
                    for e in range(2) for r in range(2)]

        AV = lambda j: 40 if j % 2 == 0 else ACC

        def zero(c):
            for k in range(4):
                self.mov2(c + 2 * k, None)

        def aflush(j):
            c, f = AV(j), FS((j + 1) % 5)
            a(f"v_xor_b32 v{f}, s{sK[j]}, v{vFa}\ns_lshl_b32 s64, s{sQ[j]}, 2\nv_add_u32 v9, s64, v{vEs}\nv_mov_b32 v{f+1}, 0")
            for h in range(2):
                a(f"""
                v_cvt_pk_bf16_f32 v{30}, v{c+4*h}, v{c+4*h+1}
                v_cvt_pk_bf16_f32 v{31}, v{c+4*h+2}, v{c+4*h+3}
                ds_write_b64 v{f}, v[30:31] offset:{XT + 256*h}
                """)
            a(f"ds_read_u16_d16_hi v{f+1}, v9")
            if j < 4:
                zero(c)

        for o in wops(vE, elane(0), 0):
            a(o)
        zero(40)
        for t in range(10):
            nxt = wops(vE, elane(t + 1), (t + 1) & 1) if t < 9 else wops8(0, 0)
            c0 = AV(t // 2)
            a(f"{SM} {r4(c0)}, {r2(A[t & 1])}, {r4(AT(t, 0))}, v{vIx}")
            a("\n".join(nxt))
            a(f"{SM} {r4(c0 + 4)}, {r2(A[t & 1])}, {r4(AT(t, 1))}, v{vIx}")
            if pend2 and t % 2 == 0:
                issue(pend2.pop(0))
            elif t & 1 and t >= 3:
                aflush(t // 2 - 1)
                a("s_nop 0")
            else:
                a("s_nop 0")
        aflush(4)
        assert not pend and not pend2
        a("s_waitcnt lgkmcnt(0)\ns_barrier")
        self.stamp("Sbv")
        a(f"s_cmp_lg_u32 s{sSlow}, 0\ns_cbranch_scc1 L_slow")

        def rotate():
            for c in range(3):
                self.mov2(EA[c], EA[c + 1])
            for m in (sM, sF, sD):
                a(f"s_lshr_b32 s{m}, s{m}, 8")

        a("; ---- S: gather ring (first pass, steady, drain), 8 edges per step")
        assert R % 2 == 0 and 12 <= NPRO <= 16
        for mode in ("fp", "st", "dr"):
            for t in range(8):
                nxt = wops8(t + 1, (t + 1) & 1)
                ladder = mode == "dr"
                a(f"L_{mode}{t}:\n" + (f"s_add_u32 s{sT}, s{sT}, 1" if ladder else f"s_bitcmp1_b32 s{sM}, {t}"))
                if mode == "dr":
                    a(f"ds_write_b32 v{vPa}, v{vOne} offset:{C_DR}")
                a(f"s_waitcnt vmcnt({2 * NPRO + FPL * t - 4 * (t + 1) if mode == 'fp' else 2*R - 4})")
                a(f"{SX} {r4(ACC)}, {r4(A[t & 1])}, {r8(RG(2*t, 0))}, v{vIx}")
                a(nxt[0] + "\n" + nxt[1])
                a(f"{SX} {r4(ACC+4)}, {r4(A[t & 1])}, {r8(RG(2*t, 1))}, v{vIx}")
                a(nxt[2] + "\n" + nxt[3])
                if mode == "st":
                    issue(2 * t + R)
                    issue(2 * t + R + 1)
                if mode == "fp":
                    ns = range(FPL * t, FPL * (t + 1))
                    for u in sorted({n // 2 for n in ns}):
                        issue(NPRO + u, [n % 2 for n in ns if n // 2 == u])
                if ladder:
                    nw = R // 2 - 1
                    for k in range(1, nw):
                        a(f"s_cmp_eq_u32 s{sT}, {k}\ns_cbranch_scc1 L_dw{t}_{k}")
                    for k in range(nw, 0, -1):
                        a(f"L_dw{t}_{k}:\ns_waitcnt vmcnt({2*R - 4 - 4*k})")
                    a(f"s_bitcmp1_b32 s{sM}, {t}")
                a(f"s_cbranch_scc1 L_ev{t}")
            a(f"L_{mode}8:")
            rotate()
            if mode == "fp":
                a(f"s_mov_b32 s{sMode}, L_st1-L_anc\ns_mov_b32 s{sMode+1}, L_st1-L_st0")
            else:
                a(f"s_branch L_{mode}0")
                if mode == "st":
                    a("L_pad8:\ns_setpc_b64 s[68:69]")
        a("; ---- S: list boundaries and flush")
        for t in range(8):
            n = (t + 1) & 7
            An = A[n & 1]
            a(f"L_pad{t}:\ns_setpc_b64 s[68:69]")
            a(f"""
            L_ev{t}:
            s_and_b32 s65, s{sGam}, 15
            v_cmp_ge_u32 s[66:67], s65, v{vG}
            v_cmp_gt_u32 s[68:69], s65, v{vG}
            s_bitcmp1_b32 s{sD}, {t}
            s_cselect_b64 s[{sMode}:{sMode+1}], s[{sDr}:{sDr+1}], s[{sMode}:{sMode+1}]
            v_cndmask_b32 v40, 0, v{An}, s[66:67]
            v_cndmask_b32 v41, 0, v{An+1}, s[66:67]
            v_cndmask_b32 v42, 0, v{An+2}, s[68:69]
            v_cndmask_b32 v43, 0, v{An+3}, s[68:69]
            s_mul_i32 s64, s{sMode+1}, {t}
            s_bitcmp1_b32 s{sF}, {t}
            s_cbranch_scc0 L_evret
            s_waitcnt vmcnt({2*R - 4})
            {SX} {r4(ACC)}, v[40:43], {r8(RG(2*n, 0))}, v{vIx}
            v_xor_b32 v{An}, v{An}, v40
            v_xor_b32 v{An+1}, v{An+1}, v41
            {SX} {r4(ACC+4)}, v[40:43], {r8(RG(2*n, 1))}, v{vIx}
            v_xor_b32 v{An+2}, v{An+2}, v42
            v_xor_b32 v{An+3}, v{An+3}, v43
            {"s_branch L_flush" if t < 7 else "s_nop 0"}
            """)
        a(f"""
        L_flush:
        s_lshr_b32 s{sGam}, s{sGam}, 4
        s_cmp_eq_u32 s{sJ}, 4
        v_add_u32 v{vJ}, 1, v{vJ}
        """)
        for h in range(2):
            for k in range(4):
                a(f"v_mul_f32 v{40+4*h+k}, v{FS(0)+1}, v{ACC+4*h+k}")
            a(f"""
            v_cvt_pk_bf16_f32 v{40+4*h}, v{40+4*h}, v{41+4*h}
            v_cvt_pk_bf16_f32 v{41+4*h}, v{42+4*h}, v{43+4*h}
            ds_write_b64 v{FS(0)}, v[{40+4*h}:{41+4*h}] offset:{AG + 256*h}
            """)
        a(f"ds_write_b32 v{vPa}, v{vJ} offset:{C_AG}\ns_cbranch_scc1 L_sdone")
        if self.prof and "Sfl" in self.st:
            a("s_waitcnt lgkmcnt(0)\ns_mov_b64 s[86:87], s[88:89]\ns_mov_b64 s[88:89], s[90:91]\ns_mov_b64 s[90:91], s[92:93]\ns_memrealtime s[92:93]")
        zero(ACC)
        a(f"s_add_u32 s{sJ}, s{sJ}, 1")
        for j in range(4):
            self.mov2(FS(j), FS(j + 1))
        a(f"""
        L_evret:
        s_add_u32 s64, s64, s{sMode}
        s_add_u32 s{sRet}, s{sAnc}, s64
        s_addc_u32 s{sRet+1}, s{sAnc+1}, 0
        s_setpc_b64 s[{sRet}:{sRet+1}]
        """)
        a("L_pad9:\ns_setpc_b64 s[68:69]")
        a("; ---- S: general path (any degree distribution): scan all edges per node pair")
        a(f"""
        L_slow:
        s_mov_b32 s{sMode}, L_slow_pair-L_anc
        v_mbcnt_lo_u32_b32 v200, -1, 0
        v_mbcnt_hi_u32_b32 v200, -1, v200
        L_slow_pair:
        v_lshlrev_b32 v201, 2, v200
        s_mul_i32 s70, s1, 40
        s_lshl1_add_u32 s70, s{sQ[4]}, s70
        s_mov_b32 s71, 0
        s_mov_b32 s{sQ[4]}, s{sQ[0]}
        s_mov_b32 s{sQ[0]}, s{sQ[1]}
        s_mov_b32 s{sQ[1]}, s{sQ[2]}
        s_mov_b32 s{sQ[2]}, s{sQ[3]}
        L_slow_chunk:
        global_load_dword v202, v201, s[8:9]
        global_load_dword v203, v201, s[6:7]
        v_add_u32 v201, 0x100, v201
        s_waitcnt vmcnt(0)
        v_subrev_u32 v202, s70, v202
        v_cmp_gt_u32 vcc, 2, v202
        v_lshlrev_b32 v204, 1, v203
        ds_read_u16 v204, v204 offset:{DIS}
        s_mov_b64 s[76:77], vcc
        v_lshlrev_b32 v202, 4, v202
        v_lshlrev_b32 v203, 9, v203
        s_waitcnt lgkmcnt(0)
        v_lshlrev_b32 v204, v202, v204
        L_slow_edge:
        s_cmp_eq_u64 s[76:77], 0
        s_cbranch_scc1 L_slow_next
        s_ff1_i32_b64 s74, s[76:77]
        s_bitset0_b64 s[76:77], s74
        v_readlane_b32 s64, v203, s74
        v_readlane_b32 s65, v204, s74
        v_mov_b32 v{vW}, 0
        v_mov_b32 v{vAd}, {OOB}
        s_mov_b64 exec, 0xffff
        v_mov_b32 v{vW}, s65
        v_add_u32 v{vAd}, s64, v{vLo}
        s_mov_b64 exec, -1
        buffer_load_dwordx4 v[208:211], v{vAd}, s[{X}:{X+3}], 0 offen
        buffer_load_dwordx4 v[212:215], v{vAd}, s[{X}:{X+3}], 0 offen offset:256
        """)
        for r in range(2):
            a(f"v_and_b32 v{A[0]+r}, v{vW}, v{MSK+r}")
        a(f"""
        s_nop 0
        s_waitcnt vmcnt(0)
        {SM} {r4(ACC)}, {r2(A[0])}, v[208:211], v{vIx}
        {SM} {r4(ACC+4)}, {r2(A[0])}, v[212:215], v{vIx}
        s_branch L_slow_edge
        L_slow_next:
        s_add_u32 s71, s71, 1
        s_cmp_lt_u32 s71, 2500
        s_cbranch_scc1 L_slow_chunk
        s_mov_b32 s64, 0
        s_nop 3
        s_branch L_flush
        L_sdone:
        ds_write_b32 v{vPa}, v{vOne} offset:{C_DR}
        s_waitcnt lgkmcnt(0)
        s_barrier
        """)
        self.stamp("Send")
        self.dump()
        a("s_endpgm")
        self.flush_cold()
        self.mrole = mrole

    def kernel(self, label):
        self.entry()
        self.sparse_waves()
        self.a.lines += self.mrole.lines
        self.gemm_waves()
        self.a("L_end:\ns_endpgm")
        return dict(label=label, body=self.a.text(), grid=NWG, block=512, lds=LDS_BYTES, vgpr=256)

    def build(self):
        return wrap([self.kernel(NAME + "_kernel")], ABOUT)


if __name__ == "__main__":
    opts = {k: (v if k in ("st", "go") else int(v)) for k, v in (kv.split("=") for kv in sys.argv[2:])}
    open(sys.argv[1], "w").write(Gen(**opts).build())
```
